```python
import torch

def _softmax(x, axis=-1):
    return torch.softmax(x, dim=axis)
def _gelu(x):
    return torch.nn.functional.gelu(x, approximate="tanh")
def _silu(x):
    return torch.nn.functional.silu(x)
def _sigmoid(x):
    return torch.sigmoid(x)
def _layernorm(x, axis=-1, eps=1e-5):
    m = x.mean(dim=axis, keepdim=True)
    v = x.var(dim=axis, keepdim=True, unbiased=False)
    return (x - m) / torch.sqrt(v + eps)
def _scatter_add(tgt, idx, src, axis=0):
    return tgt.clone().index_add_(axis, idx, src)
def _segment_sum(src, seg, n):
    out = torch.zeros((n,) + src.shape[1:], dtype=src.dtype)
    return out.index_add_(0, seg, src)
def _pad(x, pw):
    flat = tuple(v for pair in reversed(pw) for v in pair)
    return torch.nn.functional.pad(x, flat)

kernel_name = 'parallel_sum__spectral_fnet__geglu_ffn__prompt'

def setup_inputs():

    _w = (lambda a: (lambda t: t.to(torch.bfloat16) if t.is_floating_point() else t)(torch.as_tensor(a)))
    def _A_setup():
        B, S, D = 1, 2048, 640
        ns = torch.arange(S)[:, None] * torch.arange(S)[None, :]
        nd = torch.arange(D)[:, None] * torch.arange(D)[None, :]
        Ws_re = torch.cos(-2.0 * torch.pi * ns / S).to(float)
        Ws_im = torch.sin(-2.0 * torch.pi * ns / S).to(float)
        Wd_re = torch.cos(-2.0 * torch.pi * nd / D).to(float)
        Wd_im = torch.sin(-2.0 * torch.pi * nd / D).to(float)
        return {
            "x": _w((lambda *s: torch.randn(*s, dtype=torch.bfloat16) * 0.05)(B, S, D)),
            "dft_seq_re": _w(Ws_re),
            "dft_seq_im": _w(Ws_im),
            "dft_hid_re": _w(Wd_re),
            "dft_hid_im": _w(Wd_im),
        }
    _A_in = _A_setup()

    def _B_setup():
        B, S, D, F = 1, 2048, 640, 1728
        return {
            "x": _w((lambda *s: torch.randn(*s, dtype=torch.bfloat16) * 0.05)(B, S, D)),
            "w_gate": _w((lambda *s: torch.randn(*s, dtype=torch.bfloat16) * 0.2)(D, F)),
            "w_up": _w((lambda *s: torch.randn(*s, dtype=torch.bfloat16) * 0.2)(D, F)),
            "w_down": _w((lambda *s: torch.randn(*s, dtype=torch.bfloat16) * 0.2)(F, D)),
        }
    _B_in = _B_setup()

    return {
        "A_x": _A_in["x"],
        "A_dft_seq_re": _A_in["dft_seq_re"],
        "A_dft_seq_im": _A_in["dft_seq_im"],
        "A_dft_hid_re": _A_in["dft_hid_re"],
        "A_dft_hid_im": _A_in["dft_hid_im"],
        "B_x": _B_in["x"],
        "B_w_gate": _B_in["w_gate"],
        "B_w_up": _B_in["w_up"],
        "B_w_down": _B_in["w_down"],
    }

def reference(A_x, A_dft_seq_re, A_dft_seq_im, A_dft_hid_re, A_dft_hid_im, B_x, B_w_gate, B_w_up, B_w_down):
    def _A_ref(x, dft_seq_re, dft_seq_im, dft_hid_re, dft_hid_im):
        a = torch.einsum("bsd,ed->bse", x, dft_hid_re)
        b = torch.einsum("bsd,ed->bse", x, dft_hid_im)
        y = torch.einsum("ts,bse->bte", dft_seq_re, a) - torch.einsum("ts,bse->bte", dft_seq_im, b)
        return y

    def _B_ref(x, w_gate, w_up, w_down):
        return (_gelu(x @ w_gate) * (x @ w_up)) @ w_down

    x = A_x
    xn = _layernorm(x, axis=-1)
    return x + _A_ref(xn, A_dft_seq_re, A_dft_seq_im, A_dft_hid_re, A_dft_hid_im) + _B_ref(xn, B_w_gate, B_w_up, B_w_down)
```

```python
class Asm:
    def __init__(self):
        self.lines = []
    def __call__(self, s=""):
        for l in s.split("\n"):
            self.lines.append(l)
    def label(self, n):
        self.lines.append(n + ":")
    def text(self):
        return "\n".join(self.lines) + "\n"

def kernel_head(a, name):
    a(f".globl {name}\n.p2align 8\n.type {name},@function\n{name}:")

def kd(name, vgpr, sgpr=102, accum=None):
    if accum is None:
        accum = (vgpr + 3) // 4 * 4
        if accum > 256: accum = 256
    return f""".p2align 6
.amdhsa_kernel {name}
  .amdhsa_next_free_vgpr {vgpr}
  .amdhsa_next_free_sgpr {sgpr}
  .amdhsa_accum_offset {accum}
  .amdhsa_group_segment_fixed_size 0
  .amdhsa_kernarg_size 96
  .amdhsa_user_sgpr_count 2
  .amdhsa_user_sgpr_kernarg_segment_ptr 1
  .amdhsa_system_sgpr_workgroup_id_x 1
.end_amdhsa_kernel
"""

def srd(a, d, base, nbytes):
    a(f"    s_mov_b32 s{d}, s{base}")
    a(f"    s_and_b32 s{d+1}, s{base+1}, 0xffff")
    a(f"    s_mov_b32 s{d+2}, {nbytes}")
    a(f"    s_mov_b32 s{d+3}, 0x00020000")
```

```python
import sys, math, struct
from asmlib import *

NAME = "parallel_sum__spectral_fnet__geglu_ffn__prompt_kernel"
opt = dict(prof=0, xo=2, irot=1, rot2=1, la=3, nodma=0, wrot=1, thr=3, pslp=3, touch=0, pp=0, cp=0, slp=0, nt=2, ost=0, sch=8, ssch=1, wdnt=0, wdt=0)
for a_ in sys.argv[2:]:
    k, v = a_.split("="); assert k in opt, k; opt[k] = int(v)
PROF = opt["prof"]

WS_STATS, WS_FLAGS, WS_WF, WS_CSP, WS_H, WS_G = 0, 0x8000, 0x10000, 0x300000, 0x400000, 0xC00000
WS_EF, WS_F2, WS_EPOCH = 0x4000, 0x4400, 0x4800
WS_SIZE = 0x1000000
WS_PROF = 0xF80000
WFT = 54 * 5120
STG = 49152
L_SCR, L_STAT, L_CS, L_CNT = 147456, 157696, 161792, 162304
O_CNT, O_REL, O_RDY, O_LAND, O_WOK, O_TAG, O_S1, O_WL, O_PF = 0, 4, 8, 12, 16, 20, 24, 28, 32
PSTR = 176
K1C = 2.0 * math.sqrt(2.0 / math.pi) * math.log2(math.e)
K2C = K1C * 0.044715
def f2u(x): return struct.unpack("<I", struct.pack("<f", x))[0]

a = Asm()
HDR = open("parallel_sum__spectral_fnet__geglu_ffn__prompt.s.ref").read().split("; Override launch")[0]
a(HDR.rstrip())
a("; @launch grid=(256,1,1) block=(512,1,1) lds=163840")
a('.amdgcn_target "amdgcn-amd-amdhsa--gfx950"\n.text')
kernel_head(a, NAME)

SX, SWA, SWB, SWS, SWD, SOUT, SDBG = 4, 8, 12, 16, 20, 32, 36
sM, sNT, sW, sDFT, sT1, sJ2, sMI = 40, 41, 42, 43, 44, 45, 48
P_X, P_HRE, P_HIM, P_WG, P_WU, P_WD, P_OUT, P_DBG, P_WS = 64, 70, 72, 76, 78, 80, 82, 84, 86
def S(b): return f"s[{b}:{b+3}]"
def V(b, n=4): return f"v[{b}:{b+n-1}]"
def P2(r): return f"v[{r}:{r+1}]"
def mk_x(): srd(a, SX, P_X, 2621440)
def mk_ws(): srd(a, SWS, P_WS, WS_SIZE)
def mk_wd(): srd(a, SWD, P_WD, 1728 * 1280)
def mk_out(): srd(a, SOUT, P_OUT, 2621440)
def mk_dbg(): srd(a, SDBG, P_DBG, 256)
def st_txt(k): return f"    s_memtime s[88:89]\n    s_waitcnt lgkmcnt(0)\n    s_sub_u32 s{90+k}, s88, s100"
def stamp(k):
    if PROF == 1: a(st_txt(k))
    if PROF == 4: a(f"    s_memrealtime s[88:89]\n    s_waitcnt lgkmcnt(0)\n    s_sub_u32 s{90+k}, s88, s100")
def st3(k):
    if PROF == 3: a(st_txt(k))
def bar(name, k=None):
    a(f"    s_barrier            ; {name}")
    if PROF == 2 and k is not None: a(st_txt(k))
def mfma(d, x, y, c=None): return f"    v_mfma_f32_16x16x32_bf16 {V(d)}, {V(x)}, {V(y)}, {V(d) if c is None else c}"
ACC2 = 176
_u = [0]
def uniq():
    _u[0] += 1
    return _u[0]
PBASE = [0, 40960, 81920, 117760]
def lds_spin(tag, off, target, va, vd):
    if isinstance(off, int): a(f"    v_mov_b32 v{va}, {L_CNT + off}")
    else: a(f"    v_mov_b32 v{va}, {off}")
    a(f"""    s_mov_b32 s60, 0
L_{tag}:
    ds_read_b32 v{vd}, v{va}
    s_add_u32 s60, s60, 1
    s_waitcnt lgkmcnt(0)
    v_cmp_gt_u32 vcc, {target}, v{vd}
    s_cbranch_vccz L_{tag}d
    s_sleep 1
    s_cmp_lt_u32 s60, 0x400000
    s_cbranch_scc1 L_{tag}
L_{tag}d:""")
def lds_add(off, va, vd):
    a(f"""    v_mov_b32 v{va}, {L_CNT + off}
    v_mov_b32 v{vd}, 1
    s_mov_b64 exec, 1
    ds_add_u32 v{va}, v{vd}
    s_mov_b64 exec, -1""")
def poll(tag, vaddr, soff, vd, cmp, slp):
    a(f"""    s_mov_b32 s60, 0
L_{tag}:
    buffer_load_dword v{vd}, v{vaddr}, {S(SWS)}, {soff} offen sc1
    s_add_u32 s60, s60, 1
    s_waitcnt vmcnt(0)
    v_cmp_ne_u32 vcc, {cmp}, v{vd}
    s_cbranch_vccz L_{tag}d
    s_sleep {slp}
    s_cmp_lt_u32 s60, 0x40000
    s_cbranch_scc1 L_{tag}
L_{tag}d:""")
def rot_next(c, n):
    a(f"    s_add_u32 s{c}, s{c}, 1\n    s_cmp_eq_u32 s{c}, {n}\n    s_cselect_b32 s{c}, 0, s{c}")
def k2_setup():
    a(f"""    v_lshlrev_b32 v1, 4, v0
    s_mul_i32 s24, s{sJ2}, {WFT}
    s_add_u32 s24, s24, {WS_WF}
    s_add_u32 s28, s{sJ2}, s{sMI}
    s_cmp_ge_u32 s28, 6
    s_cselect_b32 s30, 6, 0
    s_sub_u32 s28, s28, s30""")
    if not opt["rot2"]: a("    s_mov_b32 s28, 0")
    a(f"""    s_mul_i32 s26, s49, 6
    s_add_u32 s26, s26, 30
    s_mul_i32 s25, s26, 5120
    s_add_u32 s25, s25, s24
    s_lshl_b32 s26, s26, 17
    s_lshl_b32 s27, s{sT1}, 12
    s_add_u32 s26, s26, s27
    s_add_u32 s26, s26, {WS_H}
    s_mov_b32 s27, s28
    s_mov_b32 s29, 0""")
def own_slot(sl):
    a("    s_mul_i32 s30, s27, 5120\n    s_add_u32 s30, s30, s25\n    s_add_u32 s31, s30, 4096")
    for nb in range(5):
        if nb < 4: a(f"    buffer_load_dwordx4 {V(8+20*sl+4*nb)}, v1, {S(SWS)}, s30 offen offset:{nb*1024} sc1")
        else: a(f"    buffer_load_dwordx4 {V(8+20*sl+4*nb)}, v1, {S(SWS)}, s31 offen sc1")
    rot_next(27, 6)
def own_w(s0, s1, thr=0):
    for sl in range(s0, s1):
        if thr: a(f"    s_waitcnt vmcnt({thr})")
        own_slot(sl)
def x_init_load():
    mk_x()
    a(f"""    v_and_b32 v2, 15, v0
    v_lshlrev_b32 v2, 6, v2
    v_add_u32 v2, s{sT1}, v2
    v_mul_u32_u24 v2, 1280, v2
    v_lshrrev_b32 v3, 4, v0
    v_lshl_add_u32 v2, v3, 3, v2
    s_and_b32 s30, s49, 1
    s_mul_i32 s30, s30, {1024*1280}
    s_lshr_b32 s31, s49, 1
    s_mul_i32 s31, s31, {32*1280}
    s_add_u32 s30, s30, s31
    s_mul_i32 s31, s{sJ2}, 160
    s_add_u32 s30, s30, s31""")
    for nb in range(5):
        a(f"    buffer_load_dwordx2 {P2(160+2*nb)}, v2, {S(SX)}, s30 offen offset:{32*nb}")
def trig4(t, d_cos, d_sin, mask, scale, neg):
    for i in range(4): a(f"    v_and_b32 v{t+i}, {mask}, v{t+i}")
    for i in range(4): a(f"    v_cvt_f32_u32 v{t+i}, v{t+i}")
    for i in range(4): a(f"    v_mul_f32 v{t+i}, {f2u(scale):#x}, v{t+i}")
    for i in range(4): a(f"    v_cos_f32 v{t+4+i}, v{t+i}")
    for i in range(4): a(f"    v_sin_f32 v{t+i}, {'-' if neg else ''}v{t+i}")
    a(f"""    v_cvt_pk_bf16_f32 v{d_cos}, v{t+4}, v{t+5}
    v_cvt_pk_bf16_f32 v{d_cos+1}, v{t+6}, v{t+7}
    v_cvt_pk_bf16_f32 v{d_sin}, v{t}, v{t+1}
    v_cvt_pk_bf16_f32 v{d_sin+1}, v{t+2}, v{t+3}""")

def trig_rows(young):
    a(f"""    s_cmp_ge_u32 s{sJ2}, 4
    s_cselect_b32 s58, -1, 0
    s_and_b32 s57, s58, 1
    v_and_b32 v2, 15, v0
    v_lshlrev_b32 v144, 6, v2
    v_add_u32 v144, s{sT1}, v144
    v_lshrrev_b32 v3, 4, v0
    s_lshl_b32 s52, s49, 4
    v_lshl_add_u32 v145, v3, 2, s52""")
    for ts in range(4):
        a(f"""    v_add_u32 v146, {1024*(ts&1) + 32*(ts>>1)}, v144
    v_xor_b32 v146, s58, v146
    v_add_u32 v146, s57, v146
    v_and_b32 v146, 2047, v146
    v_mul_u32_u24 v148, v146, v145
    v_add_u32 v149, v148, v146
    v_add_u32 v150, v149, v146
    v_add_u32 v151, v150, v146""")
        trig4(148, 128 + 4 * ts, 130 + 4 * ts, 2047, 1 / 2048, True)
    for r in range(ACC2, 256): a(f"    v_mov_b32 v{r}, 0")
    u = uniq()
    a(f"    s_waitcnt vmcnt({young})")
    for ts in range(4):
        a(f"    s_cmp_lg_u32 s49, {ts}\n    s_cbranch_scc1 L_xi{u}_{ts}")
        for nb in range(5):
            d = ACC2 + 4 * (nb * 4 + ts); x = 160 + 2 * nb
            a(f"""    v_lshlrev_b32 v{d}, 16, v{x}
    v_and_b32 v{d+1}, 0xffff0000, v{x}
    v_lshlrev_b32 v{d+2}, 16, v{x+1}
    v_and_b32 v{d+3}, 0xffff0000, v{x+1}""")
        a(f"L_xi{u}_{ts}:")

a(f"""    s_cmp_ge_u32 s2, 256
    s_cbranch_scc1 L_end
    s_load_dwordx16 s[64:79], s[0:1], 0
    s_load_dwordx8 s[80:87], s[0:1], 64""")
if PROF:
    a("    s_memtime s[100:101]" if PROF != 4 else "    s_memrealtime s[100:101]")
    for k in range(10): a(f"    s_mov_b32 s{90+k}, 0")
a(f"""    v_lshrrev_b32 v1, 6, v0
    v_and_b32 v0, 63, v0
    v_readfirstlane_b32 s{sW}, v1
    s_and_b32 s46, s2, 7
    s_lshr_b32 s47, s2, 3
    s_and_b32 s{sM}, s46, 1
    s_lshl_b32 s{sM}, s{sM}, 2
    s_and_b32 s{sMI}, s47, 3
    s_add_u32 s{sM}, s{sM}, s{sMI}
    s_lshr_b32 s{sJ2}, s47, 2
    s_lshl_b32 s{sNT}, s{sJ2}, 2
    s_lshr_b32 s47, s46, 1             ; n-group g
    s_add_u32 s{sNT}, s{sNT}, s47
    s_lshl_b32 s{sT1}, s46, 2
    s_add_u32 s{sT1}, s{sT1}, s{sMI}
    s_cmp_ge_u32 s{sNT}, 27
    s_cselect_b32 s{sDFT}, 1, 0
    s_cmp_lt_u32 s{sW}, 4
    s_cbranch_scc1 L_cons
    s_setprio 3
    s_sub_u32 s49, s{sW}, 4
    s_cmp_eq_u32 s{sW}, 7
    s_cbranch_scc1 L_serv
    v_lshrrev_b32 v2, 3, v0
    v_and_b32 v3, 7, v0
    v_lshrrev_b32 v5, 1, v2
    s_lshl_b32 s63, s47, 2
    s_lshr_b32 s63, {[0, 0x3210, 0x8530][opt['xo']]:#x}, s63
    s_and_b32 s63, s63, 15
    s_and_b32 s62, s46, 1
    s_mul_i32 s62, s62, 5
    s_add_u32 s63, s63, s62
    s_cmp_ge_u32 s63, 10
    s_cselect_b32 s62, 10, 0
    s_sub_u32 s63, s63, s62
    s_cmp_eq_u32 s{sW}, 6
    s_cbranch_scc1 L_prodw
    v_mul_u32_u24 v4, 81920, v2
    v_xor_b32 v3, v3, v5
    v_lshl_add_u32 v8, v3, 4, v4
    v_xor_b32 v9, 64, v8
    s_lshl_b32 s50, s49, 5
    s_lshl_b32 s51, s{sM}, 2
    s_add_u32 s50, s50, s51
    s_mul_i32 s50, s50, 1280
    s_lshl_b32 s52, s63, 7
    s_add_u32 s50, s50, s52
    s_lshl_b32 s51, s49, 14
    s_lshl_b32 s57, s{sJ2}, 1""")
if not opt["irot"]: a("    s_mov_b32 s57, 0")
a(f"""    s_lshl_b32 s53, s57, 10
    s_mov_b32 s54, 0x3fff
    s_mov_b32 s55, 0
    s_mov_b32 s56, 128
    s_mov_b32 s62, 1280
    s_waitcnt lgkmcnt(0)""")
srd(a, SWA, P_X, 2621440); srd(a, SWB, P_X, 2621440)
def dma(n, isw=0):
    a(f"""    s_add_u32 m0, s51, s53
    s_add_u32 s53, s53, 1024
    s_and_b32 s53, s53, s54""")
    if not opt["nodma"]: a(f"    buffer_load_dwordx4 v{128+n}, {S(SWA if n < 8 else SWB)}, s50 offen{' nt' if opt['nt'] >> isw & 1 else ''} lds")
for n in range(16):
    a(f"""    s_add_u32 s52, s57, {n}
    s_and_b32 s58, s52, 3
    s_mul_i32 s58, s58, {512*1280}
    s_bfe_u32 s52, s52, 0x20002
    s_mul_i32 s52, s52, 1280
    s_add_u32 s52, s52, s58
    v_add_u32 v{128+n}, s52, v{8 + (n & 1)}""")
    dma(n)
a(f"""    s_branch L_pfirst
L_prodw:
    s_mov_b32 s51, 32768
    s_lshl_b32 s57, s{sMI}, 1""")
if not opt["irot"]: a("    s_mov_b32 s57, 0")
a(f"""    s_lshl_b32 s53, s57, 10
    s_mov_b32 s54, 0x1fff
    s_mov_b32 s55, 8192
    s_cmp_eq_u32 s{sDFT}, 1
    s_cbranch_scc1 L_prodw_dft
    v_mul_u32_u24 v4, 3456, v2
    v_and_b32 v5, 1, v5
    v_lshlrev_b32 v5, 1, v5
    v_xor_b32 v3, v3, v5
    v_lshl_add_u32 v8, v3, 4, v4
    v_xor_b32 v9, 64, v8
    s_lshl_b32 s50, s{sNT}, 7
    s_mov_b32 s58, {8*3456}
    s_mov_b32 s56, {64*3456}
    s_waitcnt lgkmcnt(0)""")
srd(a, SWA, P_WG, 640 * 3456); srd(a, SWB, P_WU, 640 * 3456)
a(f"""    s_branch L_prodw_go
L_prodw_dft:
    v_mul_u32_u24 v4, 1280, v2
    v_xor_b32 v3, v3, v5
    v_lshl_add_u32 v8, v3, 4, v4
    v_xor_b32 v9, 64, v8
    s_sub_u32 s50, s{sNT}, 27
    s_lshl_b32 s50, s50, 6
    s_add_u32 s50, s50, 1
    s_mul_i32 s50, s50, 1280
    s_mov_b32 s58, {8*1280}
    s_mov_b32 s56, 128
    s_waitcnt lgkmcnt(0)""")
srd(a, SWA, P_HRE, 640 * 1280); srd(a, SWB, P_HIM, 640 * 1280)
a(f"""L_prodw_go:
    s_mul_i32 s52, s63, s56
    s_add_u32 s50, s50, s52
    s_mul_i32 s62, s56, 10""")
for n in range(8):
    a(f"""    s_add_u32 s52, s57, {n}
    s_and_b32 s52, s52, 7
    s_mul_i32 s52, s52, s58
    v_add_u32 v{128+n}, s52, v{8 + (n & 1)}
    v_add_u32 v{136+n}, s52, v{8 + (n & 1)}""")
    dma(n, 1)
a("    s_add_u32 s51, s51, s55")
for n in range(8, 16): dma(n, 1)
a.label("L_pfirst")
mk_ws()
k2_setup()
a(f"""    v_mov_b32 v144, {L_CNT}
    s_mov_b32 s60, 0
    s_branch L_pnext
L_ploop:""")
if opt["nt"] in (1, 2):
    a(f"    s_cmp_eq_u32 s{sW}, 6\n    s_cbranch_scc0 L_ploopx")
    for n in range(16):
        if n == 8: a("    s_add_u32 s51, s51, s55")
        dma(n, 1)
    a("    s_branch L_pnext\nL_ploopx:")
for n in range(16):
    if n == 8: a("    s_add_u32 s51, s51, s55")
    dma(n)
a(f"""L_pnext:
    s_sub_u32 s51, s51, s55
    s_add_u32 s50, s50, s56
    s_add_u32 s63, s63, 1
    s_cmp_eq_u32 s63, 10
    s_cselect_b32 s63, 0, s63
    s_cselect_b32 s52, s62, 0
    s_sub_u32 s50, s50, s52
    s_add_u32 s51, s51, {STG}
    s_cmp_ge_u32 s51, {3*STG}
    s_cselect_b32 s52, {3*STG}, 0
    s_sub_u32 s51, s51, s52
    s_add_u32 s60, s60, 1
    s_cmp_lt_u32 s60, 2
    s_cbranch_scc1 L_ploop
    s_waitcnt vmcnt(16)
    s_barrier
    s_cmp_lt_u32 s60, 10
    s_cbranch_scc1 L_ploop""")
stamp(0)
def wpart(start, cnt, thr=0):
    a(f"""    s_mul_i32 s50, s49, {cnt*1024}
    s_add_u32 s50, s50, {start*1024}
    s_lshl_b32 s51, s{sMI}, 12""")
    if not opt["wrot"]: a("    s_mov_b32 s51, 0")
    for g in range(4):
        if thr: a(f"    s_waitcnt vmcnt({thr})")
        a(f"""    s_add_u32 m0, s50, s51
    s_add_u32 s52, m0, s24
    s_add_u32 s51, s51, 4096
    s_and_b32 s51, s51, 0x3fff""")
        for i in range(4):
            a(f"    buffer_load_dwordx4 v1, {S(SWS)}, s52 offen offset:{i*1024} sc1 lds")
    if cnt > 16:
        a(f"    s_add_u32 m0, s50, 16384\n    s_add_u32 s52, m0, s24")
        for i in range(cnt - 16):
            a(f"    buffer_load_dwordx4 v1, {S(SWS)}, s52 offen offset:{i*1024} sc1 lds")
T = opt["thr"]
a("    s_waitcnt vmcnt(0)")
lds_add(O_LAND, 144, 145)
lds_spin("wok", O_WOK, 1, 144, 145)
SCH = ["A o0 o1 r4 B X t o2 r8 o3 dr u C o4 o5 T",
       "A o0 o1 r4 B X o2 r8 t C o3 o4 o5 T",
       "A o0 o1 r4 B X r8 t C o2 dr u o3 o4 o5 T",
       "A o0 r4 B X o1 r8 t o2 C dr u o3 o4 o5 T",
       "A o0 o1 r4 B X r8 dr C o2 o3 o4 o5 T",
       "A o0 o1 r4 B X o2 r8 C o3 o4 o5 T",
       "A X o0 o1 r4 B r8 t C o2 o3 T dr u o4 o5",
       "A o0 o1 r4 B X t o2 r8 o3 pd u C o4 o5 T",
       "A o0 o1 r4 B X r8 pd C o2 o3 o4 o5 T"][opt["sch"]]
def run_sched(sch, tag):
    thr = 0; young = None
    for tok in sch.split():
        n = 0
        if tok == "t": thr = T
        elif tok == "u": thr = 0
        elif tok == "A": wpart(48, 16, thr); n = 16
        elif tok == "B": a("    s_waitcnt vmcnt(40)"); wpart(96, 18, thr); n = 18
        elif tok == "C": a("    s_waitcnt vmcnt(40)"); wpart(0, 16, thr); n = 16
        elif tok == "X": x_init_load(); young = 0
        elif tok[0] == "o": own_w(int(tok[1]), int(tok[1]) + 1, thr); n = 5
        elif tok == "r4": lds_spin(tag + "r4", O_REL, 4, 144, 145)
        elif tok == "r8":
            lds_spin(tag + "r8", O_REL, 8, 144, 145); stamp(1); a("    s_setprio 0")
        elif tok == "dr": lds_spin(tag + "dr", O_CNT, 4, 144, 145)
        elif tok == "pd":
            a(f"    s_cmp_eq_u32 s{sDFT}, 1\n    s_cbranch_scc1 L_{tag}pdd")
            lds_spin(tag + "pd", O_CNT, 4, 144, 145)
        elif tok == "p0": a("    s_setprio 0")
        elif tok == "T": trig_rows(min(young, 63))
        if young is not None: young += n
run_sched(SCH, "p")
a("    s_branch L_pown")

a.label("L_serv")
a(f"""    s_lshr_b32 s53, s2, 2
    s_and_b32 s54, s2, 3
    s_mul_i32 s51, s53, {32*1280}
    s_mul_i32 s52, s54, 320
    s_add_u32 s51, s51, s52
    s_cmp_ge_u32 s2, 216
    s_cselect_b32 s51, 0x40000000, s51
    s_mov_b32 s56, 3277""")
for q in range(10):
    a(f"""    v_add_u32 v6, {64*q}, v0
    v_mul_u32_u24 v7, s56, v6
    v_lshrrev_b32 v7, 16, v7
    v_mul_u32_u24 v8, 20, v7
    v_sub_u32 v6, v6, v8
    v_mul_u32_u24 v7, 1280, v7
    v_lshl_add_u32 v{88+q}, v6, 4, v7""")
a(f"""    ; column sums: k32-step (m & 1) of matrix (m >> 1) & 1 in the first five stages, on the matrix core
    v_mov_b32 v60, 0x3f803f80
    v_mov_b32 v61, v60
    v_mov_b32 v62, v60
    v_mov_b32 v63, v60
    v_lshrrev_b32 v3, 4, v0
    v_bfe_u32 v6, v0, 2, 2                ; rho
    v_and_b32 v7, 3, v0                   ; gamma
    v_lshl_add_u32 v15, v3, 2, v6
    v_mul_u32_u24 v15, 320, v15
    v_lshl_add_u32 v15, v7, 3, v15
    v_add_u32 v15, {L_SCR}, v15
    s_and_b32 s57, s{sMI}, 1
    s_lshr_b32 s58, s{sMI}, 1
    s_lshl_b32 s52, s58, 13
    s_add_u32 s52, s52, 32768
    s_cmp_eq_u32 s{sDFT}, 1
    s_cbranch_scc1 L_sa_d
    v_lshl_add_u32 v5, v3, 3, v6
    v_lshlrev_b32 v5, 7, v5
    v_lshl_add_u32 v5, v7, 3, v5
    v_lshrrev_b32 v6, 1, v6
    v_and_b32 v7, 1, v3
    v_lshl_add_u32 v6, v7, 1, v6
    v_lshl_add_u32 v5, v6, 5, v5
    s_lshl_b32 s57, s57, 12
    s_add_u32 s52, s52, s57
    v_add_u32 v16, s52, v5
    v_xor_b32 v17, 32, v16
    v_xor_b32 v18, 64, v16
    v_xor_b32 v19, 96, v16
    s_branch L_sa_e
L_sa_d:
    s_lshl_b32 s57, s57, 2
    v_add_u32 v7, s57, v3
    v_bfe_u32 v6, v0, 1, 3
    v_xor_b32 v7, v7, v6
    v_and_b32 v6, 15, v0
    v_lshlrev_b32 v5, 7, v6
    v_lshl_add_u32 v5, v7, 4, v5
    v_add_u32 v16, s52, v5
    v_add_u32 v17, 2048, v16
    v_add_u32 v18, 4096, v16
    v_add_u32 v19, 6144, v16
L_sa_e:
    v_lshlrev_b32 v1, 4, v0
    v_lshlrev_b32 v9, 2, v0
    v_add_u32 v9, {L_CNT}, v9
    v_mov_b32 v7, 0
    s_mov_b64 exec, 0xffff
    ds_write_b32 v9, v7
    s_mov_b64 exec, -1
    v_mov_b32 v10, {L_CNT}
    v_mov_b32 v11, 1""")
for r in range(144, 160): a(f"    v_mov_b32 v{r}, 0")
a("    s_waitcnt lgkmcnt(0)")
mk_ws()
a(f"""    s_mov_b32 s47, {WS_EPOCH}
    buffer_load_dword v57, v7, {S(SWS)}, s47 offen sc1""")
mk_wd()
def cs_pass(j):
    a(f"    s_cmp_eq_u32 s{sDFT}, 1\n    s_cbranch_scc1 L_cs{j}_d")
    for i in range(4):
        a(f"    ds_read_b64_tr_b16 {P2(64+4*i)}, v{16+i}")
        a(f"    ds_read_b64_tr_b16 {P2(66+4*i)}, v{16+i} offset:512")
    a(f"    s_branch L_cs{j}_e\nL_cs{j}_d:")
    for i in range(4): a(f"    ds_read_b128 {V(64+4*i)}, v{16+i}")
    d = STG if j % 3 != 2 else -2 * STG
    a(f"L_cs{j}_e:\n    s_mov_b32 s52, {d}")
    for i in range(4): a(f"    v_add_u32 v{16+i}, s52, v{16+i}")
    a("    s_waitcnt lgkmcnt(0)")
    for i in range(4): a(mfma(144 + 4 * i, 64 + 4 * i, 60))
k2_setup()
bar("B_-1", 0)
cs_pass(0)
def wd_dma():
    for q in range(10):
        a(f"    s_mov_b32 m0, {L_SCR + q*1024}\n    s_nop 0\n    buffer_load_dwordx4 v{88+q}, {S(SWD)}, s51 offen{' nt' if opt['wdnt'] else ''} lds")
if opt["wdt"] == 0: wd_dma()
bar("B_0", 1)
cs_pass(1)
if opt["wdt"] == 1: wd_dma()
bar("B_1", 2)
cs_pass(2)
a(f"""    s_waitcnt vmcnt(0)
    v_add_u32 v57, 1, v57
    ds_write_b32 v10, v57 offset:{O_TAG}
    v_readfirstlane_b32 s47, v57
    s_cmp_ge_u32 s2, 216
    s_cbranch_scc1 L_serv_nowf""")
for jj in range(2):
    for nb in range(5):
        r = 88 + 4 * (5 * jj + nb); o = jj * 160 + nb * 32
        a(f"    ds_read_b64_tr_b16 v[{r}:{r+1}], v15 offset:{o}")
        a(f"    ds_read_b64_tr_b16 v[{r+2}:{r+3}], v15 offset:{o+5120}")
a(f"""    s_mul_i32 s51, s54, {2*WFT}
    s_mul_i32 s52, s53, 5120
    s_add_u32 s51, s51, s52
    s_add_u32 s51, s51, {WS_WF}
    s_waitcnt lgkmcnt(0)""")
for jj in range(2):
    for nb in range(5):
        r = 88 + 4 * (5 * jj + nb)
        if nb == 4:
            a(f"    s_add_u32 s52, s51, 4096\n    buffer_store_dwordx4 {V(r)}, v1, {S(SWS)}, s52 offen sc1")
        else:
            a(f"    buffer_store_dwordx4 {V(r)}, v1, {S(SWS)}, s51 offen offset:{nb*1024} sc1")
    if jj == 0: a(f"    s_add_u32 s51, s51, {WFT}")
a.label("L_serv_nowf")
bar("B_2", 3)
cs_pass(3)
a(f"""    s_lshl_b32 s52, s54, 6
    s_add_u32 s52, s52, s53
    s_lshl_b32 s52, s52, 2
    s_add_u32 s52, s52, {WS_EF}
    s_lshl_b32 s53, s{sNT}, 3
    s_add_u32 s53, s53, s{sM}
    s_lshl_b32 s53, s53, 9
    s_lshl_b32 s58, s58, 8
    s_add_u32 s53, s53, s58
    s_add_u32 s53, s53, {WS_CSP}
    v_and_b32 v173, 48, v0
    ; F2 flags to wait for: lanes 0..31 (m, lane), lanes 32.. (lane & 7, nt)
    s_lshl_b32 s50, s{sM}, 5
    v_add_u32 v171, s50, v0
    v_and_b32 v170, 7, v0
    v_lshlrev_b32 v170, 5, v170
    v_add_u32 v170, s{sNT}, v170
    v_cmp_gt_u32 vcc, 32, v0
    s_add_u32 s50, s50, s{sNT}
    s_lshl_b32 s50, s50, 2
    v_cndmask_b32 v171, v170, v171, vcc
    v_lshlrev_b32 v171, 2, v171
    v_min_u32 v170, 53, v0
    v_lshlrev_b32 v170, 2, v170
    s_add_u32 s50, s50, {WS_F2}
    s_lshr_b32 s51, s{sJ2}, 1
    s_lshl_b32 s51, s51, 8
    s_add_u32 s51, s51, {WS_EF}
    v_mov_b32 v172, s47
    v_mov_b32 v174, {L_CNT}
    v_mov_b32 v175, 1
    s_mov_b32 s59, 0
    s_waitcnt vmcnt(0)
    s_mov_b64 exec, 1
    buffer_store_dword v172, v7, {S(SWS)}, s52 offen sc1
    s_mov_b64 exec, -1""")
def look(tag):
    a(f"""    s_cmp_eq_u32 s59, 1
    s_cbranch_scc1 L_{tag}_ok
    buffer_load_dword v6, v170, {S(SWS)}, s51 offen sc1
    s_waitcnt vmcnt(0)
    v_cmp_ne_u32 vcc, s47, v6
    s_cbranch_vccnz L_{tag}_e
    s_mov_b32 s59, 1
    ds_write_b32 v174, v175 offset:{O_WOK}
    s_branch L_{tag}_e
L_{tag}_ok:""")
bar("B_3", 4)
cs_pass(4)
a("""    s_nop 7
    s_mov_b32 exec_lo, 0x00010001
    s_mov_b32 exec_hi, 0x00010001""")
for i in range(4): a(f"    buffer_store_dwordx4 {V(144+4*i)}, v173, {S(SWS)}, s53 offen offset:{i*64} sc1")
a("    s_mov_b64 exec, -1")
bar("B_4", 5)
a(f"""    s_waitcnt vmcnt(0)
    s_mov_b64 exec, 1
    buffer_store_dword v172, v7, {S(SWS)}, s50 offen sc1     ; row statistics were drained before B_0
    s_mov_b64 exec, -1""")
bar("B_5", 6)
look("k6"); a("L_k6_e:")
bar("B_6", 7)
a(f"""    s_mov_b32 s50, {WS_F2}
    s_mov_b32 s60, 0
L_p3:
    buffer_load_dword v6, v171, {S(SWS)}, s50 offen sc1
    s_add_u32 s60, s60, 1
    s_waitcnt vmcnt(0)
    v_cmp_ne_u32 vcc, s47, v6
    s_cbranch_vccz L_p3d
    s_cmp_lg_u32 s60, 1
    s_cbranch_scc1 L_p3s
    s_barrier
L_p3s:
    s_sleep 3
    s_cmp_lt_u32 s60, 0x40000
    s_cbranch_scc1 L_p3
L_p3d:
    v_lshlrev_b32 v6, 3, v0
    v_lshrrev_b32 v5, 5, v0
    v_lshl_add_u32 v5, v5, 10, v6
    s_lshl_b32 s50, s{sM}, 11
    s_lshl_b32 s52, s{sNT}, 12
    s_add_u32 s52, s52, {WS_CSP}""")
for n in range(4):
    a(f"    buffer_load_dwordx2 v[{128+4*n}:{129+4*n}], v6, {S(SWS)}, s50 offen offset:{n*512} sc1")
for n in range(4):
    a(f"    buffer_load_dwordx2 {P2(144+2*n)}, v5, {S(SWS)}, s52 offen offset:{(n>>1)*2048+(n&1)*512} sc1")
a(f"""    s_cmp_lg_u32 s60, 1
    s_cbranch_scc1 L_b7d
    s_barrier            ; B_7
L_b7d:""")
if PROF == 2: a(st_txt(8))
stamp(0)
a(f"""    s_cmp_eq_u32 s59, 1
    s_cbranch_scc1 L_p1e""")
poll("p1", 170, "s51", 5, "s47", 3)
a(f"    ds_write_b32 v174, v175 offset:{O_WOK}\nL_p1e:")
a(f"    s_waitcnt vmcnt(0)")
for n in range(4): a(f"    v_rsq_f32 v{152+n}, v{129+4*n}")
for n in range(1, 4): a(f"    v_add_f32 v144, v144, v{144+2*n}\n    v_add_f32 v145, v145, v{145+2*n}")
a(f"""    v_add_u32 v6, {L_CS}, v6
    ds_write_b64 v6, v[144:145]
    s_cmp_eq_u32 s{sDFT}, 1
    s_cbranch_scc1 L_serv_cdft
    v_add_u32 v6, {L_STAT}, v1""")
for n in range(4):
    b = 128 + 4 * n
    a(f"""    v_mov_b32 v{b+3}, v{b+1}
    v_mul_f32 v156, v{152+n}, v{152+n}
    v_xor_b32 v{b}, 0x80000000, v{b}
    v_mul_f32 v{b+1}, {f2u(-K1C):#x}, v{152+n}
    v_mul_f32 v156, v156, v{152+n}
    v_mul_f32 v{b+2}, {f2u(-K2C):#x}, v156
    ds_write_b128 v6, {V(b)} offset:{n*1024}""")
a(f"""    s_branch L_serv_cd
L_serv_cdft:
    v_lshlrev_b32 v6, 2, v0
    v_add_u32 v6, {L_STAT}, v6""")
for n in range(4):
    b = 128 + 4 * n
    a(f"""    v_mul_f32 v{b}, v{b}, v{152+n}
    v_xor_b32 v{b}, 0x80000000, v{b}
    ds_write_b32 v6, v{152+n} offset:{n*256}
    ds_write_b32 v6, v{b} offset:{1024+n*256}""")
a(f"""L_serv_cd:
    ds_write_b32 v174, v175 offset:{O_RDY}""")
stamp(1)
a("    s_waitcnt lgkmcnt(0)")
SSCH = ["X o0 o1 o2 o3 p0 t o4 o5 pd T", "X o0 o1 o2 o3 p0 T t o4 o5 pd", "X o0 o1 o2 o3 o4 o5 T p0 pd", "X o0 o1 T p0 t o2 o3 o4 o5 pd"][opt["ssch"]]
run_sched(SSCH, "s")

def item(vit, va, vg, t0):
    t1, t2 = t0 + 1, t0 + 2
    a(f"""    v_mul_u32_u24 v{t0}, s50, v{vit}
    v_lshrrev_b32 v{t0}, 16, v{t0}
    v_mul_u32_u24 v{t1}, 20, v{t0}
    v_sub_u32 v{t1}, v{vit}, v{t1}
    v_and_b32 v{vg}, 31, v{t0}
    v_lshlrev_b32 v{vg}, 6, v{vg}
    v_and_b32 v{t2}, 32, v{t0}
    v_add3_u32 v{vg}, v{vg}, v{t2}, s{sT1}
    v_mul_u32_u24 v{vg}, 1280, v{vg}
    v_lshl_add_u32 v{vg}, v{t1}, 3, v{vg}
    v_mul_u32_u24 v{va}, {PSTR}, v{t0}
    v_lshl_add_u32 v{va}, v{t1}, 3, v{va}""")
def fin_addr(tb):
    a(f"""    s_mov_b32 s50, 3277
    s_lshl_b32 s51, s{sW}, 7
    v_add_u32 v{tb}, s51, v0""")
    item(tb, 4, 6, tb + 1)
    a(f"    v_add_u32 v{tb}, 64, v{tb}")
    item(tb, 5, 7, tb + 1)
    a(f"    s_mul_i32 s59, s{sJ2}, 160")
    mk_out()
def x_loads(r):
    a(f"""    buffer_load_dwordx4 {V(r)}, v6, {S(SX)}, s59 offen
    s_mov_b64 exec, 0xffff
    buffer_load_dwordx4 {V(r+4)}, v7, {S(SX)}, s59 offen
    s_mov_b64 exec, -1""")
def part_addr(t0):
    a(f"""    v_and_b32 v{t0}, 15, v0
    v_lshrrev_b32 v{t0+1}, 4, v0
    v_mul_u32_u24 v{t0}, {PSTR}, v{t0}
    v_lshl_add_u32 v{t0}, v{t0+1}, 3, v{t0}""")
def k2_mfma(wbase, hbase):
    for nb in range(5):
        for ts in range(4): a(mfma(ACC2 + 4 * (nb * 4 + ts), wbase + 4 * nb, hbase + 4 * ts))
def h_load(hbase, cnt, n, oob=None, base=61):
    a(f"    s_lshl_b32 s52, s{cnt}, 17\n    s_add_u32 s52, s52, s{base}")
    if oob: a(oob)
    for ts in range(4):
        a(f"    buffer_load_dwordx4 {V(hbase+4*ts)}, v1, {S(SWS)}, s52 offen offset:{ts*1024} sc1")
    rot_next(cnt, n)
def put(nb, ts, t, pr=None):
    d = ACC2 + 4 * (nb * 4 + ts)
    if pr is not None:
        a(f"""    v_lshlrev_b32 v{t}, 16, v{pr}
    v_and_b32 v{t+1}, 0xffff0000, v{pr}
    v_lshlrev_b32 v{t+2}, 16, v{pr+1}
    v_and_b32 v{t+3}, 0xffff0000, v{pr+1}""")
        for i in range(4): a(f"    v_add_f32 v{d+i}, v{d+i}, v{t+i}")
    a(f"""    v_cvt_pk_bf16_f32 v{d}, v{d}, v{d+1}
    v_cvt_pk_bf16_f32 v{d+1}, v{d+2}, v{d+3}
    ds_write_b64 v2, {P2(d)} offset:{ts*16*PSTR+nb*32}""")
def tail(steps, t, PR=None):
    for nb in range(5):
        i = 0
        if nb == 1 and PR: a("    s_waitcnt lgkmcnt(0)")
        for wb, hb in steps:
            for ts in range(4):
                a(mfma(ACC2 + 4 * (nb * 4 + ts), wb + 4 * nb, hb + 4 * ts))
                i += 1
                if nb and i >= 5: put(nb - 1, i - 5, t, PR(nb - 1, i - 5) if PR else None)
    stamp(5); st3(7)
    a("    s_nop 7")
    for ts in range(4): put(4, ts, t, PR(4, ts) if PR else None)

a.label("L_pown")
a(f"    v_mov_b32 v160, {L_CNT}\n    ds_read_b32 v161, v160 offset:{O_TAG}")
fin_addr(144)
a(f"""    s_mul_i32 s52, s{sJ2}, 80
    v_add_u32 v2, s52, v2             ; e (nb = 0)
    v_mul_u32_u24 v3, 5120, v3
    s_xor_b32 s56, s{sT1}, s58
    s_add_u32 s56, s56, s57
    s_and_b32 s56, s56, 31
    s_mul_i32 s56, s56, 81920
    s_mul_i32 s52, s49, {4*5120}
    s_add_u32 s56, s56, s52
    s_add_u32 s56, s56, {WS_G}
    s_cmp_ge_u32 s{sJ2}, 4
    s_cselect_b32 s57, 640, -1
    s_waitcnt lgkmcnt(0)
    v_readfirstlane_b32 s47, v161
    s_cmp_eq_u32 s{sW}, 7
    s_cbranch_scc1 L_sv2
    s_waitcnt vmcnt(0)""")
lds_add(O_WL, 144, 145)
stamp(4)
lds_spin("s1", O_S1, 1, 144, 145)
a(f"""    s_branch L_k2p
L_sv2:
"""[:-1])
a(f"""    s_lshr_b32 s50, s{sT1}, 2
    s_lshl_b32 s50, s50, 5
    v_min_u32 v144, 26, v0
    v_add_u32 v144, s50, v144
    v_lshlrev_b32 v144, 7, v144
    s_mov_b32 s50, {WS_FLAGS}""")
stamp(2)
if opt["slp"]: a(f"    s_sleep {opt['slp']}")
poll("p2", 144, "s50", 145, "s47", opt["pslp"])
stamp(4)
a(f"""    v_mov_b32 v145, 1
    ds_write_b32 v160, v145 offset:{O_S1}
L_k2p:""")
stamp(3); st3(0)
hl = [144, 160, 144, 8, 160, 28]
a(f"    s_setprio {opt['pp']}")
def ph(i): h_load(hl[i], 28, 6, base=26)
ph(0); ph(1)
a("    s_waitcnt vmcnt(4)")
st3(1)
k2_mfma(8, hl[0])
ph(2); ph(3)
a(f"""    s_sub_u32 s50, 7, s{sJ2}
    s_min_u32 s50, s50, s{sJ2}
    s_add_u32 s50, s50, 27
    v_and_b32 v24, 7, v0
    v_lshlrev_b32 v24, 5, v24
    v_bfe_u32 v25, v0, 3, 1
    v_add3_u32 v24, v24, v25, s50
    v_lshlrev_b32 v24, 7, v24
    s_mov_b32 s50, {WS_FLAGS}
    s_waitcnt vmcnt(8)""")
st3(2)
k2_mfma(28, hl[1])
a(f"    buffer_load_dword v25, v24, {S(SWS)}, s50 offen sc1")
ph(4); ph(5)
a("    s_setprio 0\n    s_waitcnt vmcnt(13)")
st3(3)
k2_mfma(48, hl[2])
a(f"""    s_waitcnt vmcnt(8)
    v_cmp_ne_u32 vcc, s47, v25
    s_cbranch_vccz L_pgd""")
poll("pg", 24, "s50", 25, "s47", 2)
for nb in range(5):
    a(f"""    v_add_u32 v144, {16*nb}, v2
    v_xor_b32 v145, s58, v144
    v_add_u32 v145, s57, v145
    v_lshl_add_u32 v145, v145, 4, v3""")
    if nb == 0:
        a("""    v_cmp_eq_u32 vcc, 0, v144
    v_mov_b32 v146, 0x40000000
    s_nop 0
    v_cndmask_b32 v145, v145, v146, vcc""")
    a(f"    buffer_load_dwordx4 {V(48+4*nb)}, v145, {S(SWS)}, s56 offen sc1")
st3(4)
k2_mfma(68, hl[3])
a("    s_waitcnt vmcnt(9)")
st3(5)
k2_mfma(88, hl[4])
part_addr(16)
a(f"""    s_mul_i32 s50, s49, 40960
    s_cmp_eq_u32 s49, 3
    s_cselect_b32 s50, {PBASE[3]}, s50
    s_add_u32 s50, s50, {64*PSTR}
    v_add_u32 v2, s50, v16
    s_lshl_b32 s50, s49, 2
    s_add_u32 s50, s50, {L_CNT + O_PF}""")
lds_spin("pf", "s50", 1, 16, 17)
a("    s_waitcnt vmcnt(0)")
st3(6)
tail(((108, hl[5]), (48, 128)), 16)
a("    s_branch L_final")

a.label("L_cons")
sNH, sSH = 47, 49
a(f"""    s_and_b32 s{sNH}, s{sW}, 1
    s_lshr_b32 s{sSH}, s{sW}, 1
    v_and_b32 v2, 15, v0
    v_lshrrev_b32 v3, 4, v0
    v_bfe_u32 v6, v0, 1, 3
    s_lshl_b32 s50, s{sSH}, 14
    v_lshlrev_b32 v1, 7, v2
    v_add_u32 v1, s50, v1
    v_xor_b32 v7, v3, v6
    v_lshl_add_u32 v8, v7, 4, v1
    v_xor_b32 v9, 64, v8
    s_add_u32 s52, s{sW}, 1
    s_and_b32 s52, s52, 2
    s_cmp_eq_u32 s52, 0
    s_cbranch_scc1 L_ch3
    v_mul_u32_u24 v6, 1280, v3
    v_lshl_add_u32 v6, v2, 4, v6
    s_sub_u32 s52, s{sW}, 1
    s_lshl_b32 s50, s{sNT}, 6
    s_lshl_b32 s51, s52, 5
    s_add_u32 s50, s50, s51
    s_lshl_b32 s51, s{sM}, 2
    s_add_u32 s50, s50, s51
    s_mul_i32 s50, s50, 1280
    s_waitcnt lgkmcnt(0)""")
mk_x()
for j in range(5): a(f"    buffer_load_dwordx4 {V(16+4*j)}, v6, {S(SX)}, s50 offen offset:{j*256}")
mk_ws()
for r in range(128, 256): a(f"    v_mov_b32 v{r}, 0")
for r in range(40, 48): a(f"    v_mov_b32 v{r}, 0")
a(f"""    s_lshl_b32 s50, s{sM}, 11
    s_lshl_b32 s51, s52, 10
    s_add_u32 s50, s50, s51
    s_lshl_b32 s51, s{sNT}, 3
    s_add_u32 s50, s50, s51
    v_lshlrev_b32 v4, 8, v3
    s_waitcnt vmcnt(0)
    v_lshlrev_b32 v36, 16, v16
    s_nop 1
    v_mov_b32_dpp v36, v36 row_newbcast:0 row_mask:0xf bank_mask:0xf""")
for g in range(0, 20, 4):
    for i in range(g, g + 4): a(f"    v_lshlrev_b32 v{48+2*(i&3)}, 16, v{16+i}\n    v_and_b32 v{49+2*(i&3)}, 0xffff0000, v{16+i}")
    for i in range(g, g + 4): a(f"    v_pk_add_f32 {P2(48+2*(i&3))}, {P2(48+2*(i&3))}, v[36:37] op_sel_hi:[1,0] neg_lo:[0,1] neg_hi:[0,1]")
    for i in range(g, g + 4): a(f"    v_pk_add_f32 {P2(40+2*(i&1))}, {P2(40+2*(i&1))}, {P2(48+2*(i&3))}")
    for i in range(g, g + 4): a(f"    v_pk_fma_f32 {P2(44+2*(i&1))}, {P2(48+2*(i&3))}, {P2(48+2*(i&3))}, {P2(44+2*(i&1))}")
a("""    v_pk_add_f32 v[40:41], v[40:41], v[42:43]
    v_pk_add_f32 v[44:45], v[44:45], v[46:47]
    v_add_f32 v40, v40, v41
    v_add_f32 v44, v44, v45""")
for mode in ("quad_perm:[1,0,3,2]", "quad_perm:[2,3,0,1]", "row_half_mirror", "row_mirror"):
    a("    s_nop 1")
    for r in (40, 44): a(f"    v_add_f32_dpp v{r}, v{r}, v{r} {mode} row_mask:0xf bank_mask:0xf")
a(f"""    v_mul_f32 v40, {f2u(1/640):#x}, v40
    v_mov_b32 v39, {f2u(1e-5):#x}
    v_fmac_f32 v39, {f2u(1/640):#x}, v44
    v_add_f32 v38, v40, v36
    v_fma_f32 v39, -v40, v40, v39
    v_max_f32 v39, {f2u(1e-5):#x}, v39
    s_mov_b32 exec_lo, 0x00010001
    s_mov_b32 exec_hi, 0x00010001
    buffer_store_dwordx2 v[38:39], v4, {S(SWS)}, s50 offen sc1
    s_mov_b64 exec, -1
    s_branch L_chd
L_ch3:
    s_waitcnt lgkmcnt(0)""")
if opt["touch"]:
    a(f"""    v_lshlrev_b32 v6, 7, v0
    s_lshl_b32 s52, s2, 13
    v_add_u32 v6, s52, v6
    s_cmp_eq_u32 s{sW}, 0
    s_cselect_b32 s50, s{P_WG}, s{P_WU}
    s_cselect_b32 s51, s{P_WG+1}, s{P_WU+1}
    global_load_dword v127, v6, s[50:51]""")
mk_ws()
for r in range(128, 256): a(f"    v_mov_b32 v{r}, 0")
a(f"""L_chd:
    s_mov_b32 s60, 10
    s_mov_b32 s61, 0
    v_mov_b32 v120, {L_CNT}
    v_mov_b32 v121, 1
    s_cmp_eq_u32 s{sDFT}, 1
    s_cbranch_scc1 L_cdft""")

XF = 16
WF = [48, 64]
def acc(i, st): return 128 + 16 * st + 4 * i
def xr(st, kk): return f"    ds_read_b128 {V(XF+4*st)}, v{8+kk} offset:{st*2048}"
def wr(dft, kk):
    b = WF[kk]
    if dft: return [[f"    ds_read_b128 {V(b+4*i)}, v{12+kk} offset:{(i>>1)*8192+(i&1)*2048}"] for i in range(4)]
    return [[f"    ds_read_b64_tr_b16 {P2(b+4*i)}, v{12+(i&1)} offset:{kk*4096+(i>>1)*8192}",
             f"    ds_read_b64_tr_b16 {P2(b+4*i+2)}, v{12+(i&1)} offset:{kk*4096+(i>>1)*8192+512}"] for i in range(4)]
def main_loop(dft, tag):
    nw = 1 if dft else 2
    stamp(8)
    bar("B_-1")
    stamp(0)
    W = wr(dft, 0)
    a(xr(0, 0)); a(xr(1, 0))
    for st in range(2, 8):
        a(xr(st, 0))
        if st < 6:
            for r in W[st - 2]: a(r)
    a(".p2align 3")
    a.label(f"L_{tag}_loop")
    for kk in range(2):
        W = wr(dft, 1 - kk)
        for st in range(8):
            if st == 0: a(f"    s_waitcnt lgkmcnt({2 if kk == 0 else 4})")
            if st == 4 and kk == 0: a(f"    s_waitcnt lgkmcnt({4 + 4*nw})")
            if kk == 1 and st == 2:
                a(f"""    s_cmp_le_u32 s60, 2
    s_cbranch_scc1 L_{tag}_rel
    s_waitcnt vmcnt(0) lgkmcnt(0)
    s_barrier
L_{tag}_reld:""")
                a(xr(0, 0)); a(xr(1, 0))
            ex = []
            if kk == 0: ex = [xr(st, 1)] + (W[st] if st < 4 else [])
            elif st >= 2: ex = [xr(st, 0)] + (W[st - 2] if st < 6 else [])
            for i in range(4):
                w, x = WF[kk] + 4 * i, XF + 4 * st
                a(mfma(acc(i, st), x, w) if dft else mfma(acc(i, st), w, x))
                if i == 3: a(ex[0]) if ex else None
                elif i < len(ex) - 1: a(ex[1 + i])
            if kk == 1 and st == 0:
                a(f"""    s_add_u32 s61, s61, 1
    s_cmp_eq_u32 s61, 3
    s_cselect_b32 s62, {-3*STG}, 0
    s_cselect_b32 s61, 0, s61
    s_add_u32 s62, s62, {STG}""")
            if kk == 1 and st == 1:
                for r in (8, 9, 12, 13): a(f"    v_add_u32 v{r}, s62, v{r}")
    a(f"""    s_sub_u32 s60, s60, 1
    s_cmp_lg_u32 s60, 0
    s_cbranch_scc1 L_{tag}_loop
    s_branch L_{tag}_epi
L_{tag}_rel:
    s_mov_b64 exec, 1
    ds_add_u32 v120, v121 offset:{O_REL}
    s_mov_b64 exec, -1
    s_mov_b32 s62, 0
L_{tag}_land:
    ds_read_b32 v122, v120 offset:{O_LAND}
    s_add_u32 s62, s62, 1
    s_waitcnt lgkmcnt(0)
    v_cmp_gt_u32 vcc, 3, v122
    s_cbranch_vccz L_{tag}_reld
    s_cmp_lt_u32 s62, 0x400000
    s_cbranch_scc1 L_{tag}_land
    s_branch L_{tag}_reld
L_{tag}_epi:""")
    stamp(1)
    a("    s_setprio 3\n    s_mov_b32 s60, 0")
    a.label(f"L_{tag}_rdy")
    a(f"    ds_read_b32 v122, v120 offset:{O_RDY}\n    ds_read_b32 v123, v120 offset:{O_TAG}")
def rdy_check(tag, n):
    a(f"""    s_waitcnt lgkmcnt({n})
    v_cmp_eq_u32 vcc, 0, v122
    s_add_u32 s60, s60, 1
    s_cbranch_vccz L_{tag}_go
    s_cmp_lt_u32 s60, 0x400000
    s_cbranch_scc1 L_{tag}_rdy
L_{tag}_go:""")

a(f"""    v_bfe_u32 v6, v0, 2, 2            ; rho
    v_lshl_add_u32 v7, v3, 3, v6
    v_lshlrev_b32 v12, 7, v7
    v_and_b32 v7, 3, v0
    v_lshl_add_u32 v12, v7, 3, v12
    v_lshrrev_b32 v6, 1, v6
    v_and_b32 v7, 1, v3
    v_lshl_add_u32 v6, v7, 1, v6
    s_lshl_b32 s50, s{sNH}, 1
    v_xor_b32 v6, s50, v6
    v_lshl_add_u32 v12, v6, 5, v12
    v_add_u32 v12, 32768, v12
    v_xor_b32 v13, 32, v12
    s_lshl_b32 s50, s{sNH}, 7
    s_add_u32 s50, s50, {L_CS}
    v_lshl_add_u32 v4, v3, 4, s50
    s_lshl_b32 s51, s{sSH}, 11
    s_add_u32 s51, s51, {L_STAT}
    v_lshl_add_u32 v5, v2, 4, s51
    v_lshlrev_b32 v6, 4, v0
    s_lshl_b32 s50, s{sNT}, 1
    s_add_u32 s50, s50, s{sNH}
    s_lshl_b32 s50, s50, 17
    s_lshl_b32 s51, s{sM}, 14
    s_add_u32 s50, s50, s51
    s_lshl_b32 s51, s{sSH}, 11
    s_add_u32 s50, s50, s51
    s_add_u32 s50, s50, {WS_H}""")
main_loop(False, "cf")
a(f"    ds_read_b128 {V(32)}, v5")
for i in range(4): a(f"    ds_read_b128 {V(16+4*i)}, v4 offset:{(i>>1)*256+(i&1)*64}")
for st in range(1, 8): a(f"    ds_read_b128 {V(32+4*st)}, v5 offset:{st*256}")
rdy_check("cf", 7)
for st in range(8):
    c0, c1 = P2(32 + 4 * st), P2(34 + 4 * st)
    if st == 1: a("    s_waitcnt lgkmcnt(0)")
    ob = 88 + 4 * (st & 1)
    TG = lambda i: 64 + 2 * i
    TU = lambda i: 72 + 2 * i
    Z = lambda i: 80 + 2 * i
    for i in range(4): a(f"    v_pk_fma_f32 {P2(TG(i))}, {P2(16+2*i)}, {c0}, {P2(acc(0,st)+2*i)} op_sel_hi:[1,0,1]")
    for i in range(4): a(f"    v_pk_mul_f32 {P2(Z(i))}, {P2(TG(i))}, {P2(TG(i))}")
    for i in range(4): a(f"    v_pk_fma_f32 {P2(Z(i))}, {P2(Z(i))}, {c1}, {c0} op_sel:[0,0,1] op_sel_hi:[1,0,1]")
    for i in range(4): a(f"    v_pk_mul_f32 {P2(Z(i))}, {P2(Z(i))}, {P2(TG(i))}")
    for i in range(4): a(f"    v_exp_f32 v{Z(i)}, v{Z(i)}\n    v_exp_f32 v{Z(i)+1}, v{Z(i)+1}")
    for i in range(4): a(f"    v_pk_fma_f32 {P2(TU(i))}, {P2(24+2*i)}, {c0}, {P2(acc(2,st)+2*i)} op_sel_hi:[1,0,1]")
    for i in range(4): a(f"    v_pk_fma_f32 {P2(Z(i))}, {P2(Z(i))}, {c1}, {c1} op_sel:[0,1,1] op_sel_hi:[1,1,1]")
    for i in range(4): a(f"    v_rcp_f32 v{Z(i)}, v{Z(i)}\n    v_rcp_f32 v{Z(i)+1}, v{Z(i)+1}")
    for i in range(4): a(f"    v_pk_mul_f32 {P2(TU(i))}, {P2(TU(i))}, {P2(TG(i))}")
    for i in range(4): a(f"    v_pk_mul_f32 {P2(TU(i))}, {P2(TU(i))}, {P2(Z(i))}")
    for i in range(4): a(f"    v_cvt_pk_bf16_f32 v{ob+i}, v{TU(i)}, v{TU(i)+1}")
    a(f"    buffer_store_dwordx4 {V(ob)}, v6, {S(SWS)}, s50 offen offset:{(st&1)*1024} sc1")
    if st & 1 and st < 7: a("    s_add_u32 s50, s50, 4096")
a("    s_branch L_cdone")

a.label("L_cdft")
a(f"""    s_lshl_b32 s50, s{sNH}, 12
    s_lshl_b32 s51, s{sSH}, 14
    s_sub_u32 s50, s50, s51
    s_add_u32 s50, s50, 32768
    v_add_u32 v12, s50, v8
    v_add_u32 v13, s50, v9
    s_lshl_b32 s51, s{sSH}, 9
    s_add_u32 s51, s51, {L_STAT}
    v_lshl_add_u32 v1, v3, 4, s51
    s_lshl_b32 s50, s{sNH}, 7
    s_add_u32 s50, s50, {L_CS}
    v_lshl_add_u32 v7, v2, 2, s50
    v_mul_u32_u24 v6, {4*81920}, v3
    v_lshl_add_u32 v6, v2, 4, v6
    s_lshl_b32 s50, s{sSH}, 3
    s_add_u32 s50, s50, s{sM}
    s_mul_i32 s50, s50, 5120
    s_sub_u32 s51, s{sNT}, 27
    s_lshl_b32 s51, s51, 1
    s_add_u32 s51, s51, s{sNH}
    s_lshl_b32 s51, s51, 9
    s_add_u32 s50, s50, s51
    s_add_u32 s50, s50, {WS_G}
    ; 32-point DFT fragments (row t1 = 16 th + (l & 15), s1 = 16 b + 4 (l >> 4) + 0..3): cos v80.., sin v88.., -cos v96..
    v_lshlrev_b32 v104, 2, v3""")
for th in range(2):
    a(f"    v_add_u32 v105, {16*th}, v2")
    for b in range(2):
        a(f"""    v_add_u32 v106, {16*b}, v104
    v_mul_u32_u24 v108, v106, v105
    v_add_u32 v109, v108, v105
    v_add_u32 v110, v109, v105
    v_add_u32 v111, v110, v105""")
        trig4(108, 80 + 4 * th + 2 * b, 88 + 4 * th + 2 * b, 31, 1 / 32, False)
for r in range(8): a(f"    v_xor_b32 v{96+r}, 0x80008000, v{80+r}")
main_loop(True, "cd")
for i in range(4): a(f"    ds_read_b32 v{8+i}, v7 offset:{(i>>1)*256+(i&1)*64}")
def rd_rows(st):
    a(f"    ds_read_b128 {V(16+4*st)}, v1 offset:{st*64}\n    ds_read_b128 {V(48+4*st)}, v1 offset:{1024+st*64}")
for st in range(4): rd_rows(st)
rdy_check("cd", 0)
for st in range(4, 8): rd_rows(st)
for et in range(2):
    for c in range(4):
        if et == 0 and c == 2: a("    s_waitcnt lgkmcnt(0)")
        for mat in range(2):
            i = 2 * mat + et
            cs = P2(8 + (i & ~1)); sel = "op_sel_hi:[1,0]" if (i & 1) == 0 else "op_sel:[0,1] op_sel_hi:[1,1]"
            q = [(st, p) for st in (2 * c, 2 * c + 1) for p in range(2)]
            for n, (st, p) in enumerate(q): a(f"    v_pk_mul_f32 {P2(104+2*n)}, {P2(48+4*st+2*p)}, {cs} {sel}")
            for n, (st, p) in enumerate(q): a(f"    v_pk_fma_f32 {P2(104+2*n)}, {P2(acc(i,st)+2*p)}, {P2(16+4*st+2*p)}, {P2(104+2*n)}")
            for n, (st, p) in enumerate(q): a(f"    v_cvt_pk_bf16_f32 v{acc(i,2*c)+n}, v{104+2*n}, v{105+2*n}")
def dreg(rnd, c, im): return acc(2 * im + (rnd & 1), 2 * c + 1)
def g_store(rnd, r):
    et, th = rnd >> 1, rnd & 1
    ob = 104 + 4 * (r & 1)
    return [f"    v_cvt_pk_bf16_f32 v{ob}, v{dreg(rnd,0,0)+r}, v{dreg(rnd,1,0)+r}",
            f"    v_cvt_pk_bf16_f32 v{ob+1}, v{dreg(rnd,2,0)+r}, v{dreg(rnd,3,0)+r}",
            f"    v_cvt_pk_bf16_f32 v{ob+2}, v{dreg(rnd,0,1)+r}, v{dreg(rnd,1,1)+r}",
            f"    v_cvt_pk_bf16_f32 v{ob+3}, v{dreg(rnd,2,1)+r}, v{dreg(rnd,3,1)+r}",
            f"    s_add_u32 s51, s50, {(16*th + r)*81920 + et*256}\n    buffer_store_dwordx4 {V(ob)}, v6, {S(SWS)}, s51 offen sc1"]
a("    s_nop 1")
for rnd in range(4):
    et, th = rnd >> 1, rnd & 1
    mf = []
    for c in range(4):
        mf.append(mfma(dreg(rnd, c, 0), 80 + 4 * th, acc(et, 2 * c), "0"))
        mf.append(mfma(dreg(rnd, c, 1), 88 + 4 * th, acc(et, 2 * c), "0"))
    for c in range(4):
        mf.append(mfma(dreg(rnd, c, 0), 88 + 4 * th, acc(2 + et, 2 * c)))
        mf.append(mfma(dreg(rnd, c, 1), 96 + 4 * th, acc(2 + et, 2 * c)))
    fill = sum((g_store(rnd - 1, r) for r in range(4)), []) if rnd else []
    for n, m_ in enumerate(mf):
        a(m_)
        if n >= 8 and fill:
            for o in fill[:3]: a(o)
            fill = fill[3:]
    for o in fill: a(o)
a("    s_nop 7")
for r in range(4):
    for o in g_store(3, r): a(o)

a.label("L_cdone")
stamp(2)
a(f"""    s_lshl_b32 s46, s{sM}, 5
    s_add_u32 s46, s46, s{sNT}
    s_lshl_b32 s46, s46, 7
    s_add_u32 s46, s46, {WS_FLAGS}
    v_mov_b32 v124, 0
    s_waitcnt vmcnt(0)
    s_mov_b64 exec, 1
    ds_add_rtn_u32 v122, v120, v121
    s_waitcnt lgkmcnt(0)
    v_cmp_eq_u32 vcc, 3, v122
    s_cbranch_vccz L_nofl
    buffer_store_dword v123, v124, {S(SWS)}, s46 offen sc1
L_nofl:
    s_mov_b64 exec, -1""")
stamp(3)
a(f"    s_setprio {opt['cp']}")
fin_addr(8)
for r in range(ACC2, 256): a(f"    v_mov_b32 v{r}, 0")
a(f"""    v_lshlrev_b32 v1, 4, v0
    s_lshl_b32 s50, s{sW}, 3
    s_cmp_eq_u32 s{sW}, 3
    s_cselect_b32 s50, 23, s50
    s_mul_i32 s55, s50, 5120
    v_add_u32 v3, s55, v1
    s_lshl_b32 s61, s50, 17
    s_lshl_b32 s62, s{sT1}, 12
    s_add_u32 s61, s61, s62
    s_add_u32 s61, s61, {WS_H}
    s_cmp_lt_u32 s{sW}, 2
    s_cselect_b32 s62, 8, 7
    s_cmp_ge_u32 s{sJ2}, s62
    s_cselect_b32 s63, 0, s{sJ2}""")
if not opt["rot2"]: a("    s_mov_b32 s63, 0")
lds_spin("cs1", O_S1, 1, 8, 9)
stamp(4); st3(0)
LA = opt['la']
def c_hload(st):
    h_load(48 + 16 * st, 63, "s62", oob=(f"    s_cmp_lt_u32 s{sW}, 2\n    s_cselect_b32 s52, s52, 0x40000000" if st == 7 else None))
a("    s_mov_b32 s58, s63")
for st in range(LA): c_hload(st)
lds_spin("cwl", O_WL, 3, 8, 9)
def w_reads(st):
    b = 8 + 20 * (st & 1)
    a("    s_mul_i32 s52, s58, 5120\n    v_add_u32 v2, s52, v3")
    rot_next(58, "s62")
    for nb in range(5): a(f"    ds_read_b128 {V(b+4*nb)}, v2 offset:{nb*1024}")
w_reads(0)
for st in range(6):
    w_reads(st + 1)
    a(f"    s_waitcnt vmcnt({4 * min(LA - 1, 7 - st)}) lgkmcnt(5)")
    if PROF == 3: a("    s_waitcnt lgkmcnt(0)"); st3(1 + st)
    k2_mfma(8 + 20 * (st & 1), 48 + 16 * st)
    if st + LA < 8: c_hload(st + LA)
w_reads(7)
part_addr(56)
a(f"""    s_lshl_b32 s50, s{sW}, 2
    s_add_u32 s50, s50, {L_CNT + O_PF}
    v_mov_b32 v57, s50
    v_mov_b32 v58, 1
    s_waitcnt vmcnt(0) lgkmcnt(0)
    ds_write_b32 v57, v58
    v_add_u32 v2, s55, v56""")
tail(((8, 144), (28, 160)), 60)
st3(8)

a(f"""    s_mov_b32 s50, 3277
    s_lshl_b32 s51, s{sW}, 6
    s_add_u32 s51, s51, 1024
    v_add_u32 v64, s51, v0""")
item(64, 8, 9, 65)
a.label("L_final")
a(f"""    v_add_u32 v16, 81920, v4
    v_add_u32 v17, 81920, v5
    v_add_u32 v18, 81920, v8
    s_waitcnt lgkmcnt(0)""")
bar("R2")
stamp(6)
OST = ["", " sc1", " nt"][opt["ost"]]
def rd_item(va, vb, dst):
    for w in range(8):
        b = PBASE[w & 3] + (w >> 2) * 64 * PSTR
        r, o = (va, b) if b < 65536 else (vb, b - 81920)
        a(f"    ds_read_b64 {P2(dst+2*w)}, v{r} offset:{o}")
def sum_item(dst, t, vg):
    for w in range(0, 8, 2):
        for k in range(2):
            u = t + 4 * k if w == 0 else 20 + 4 * k
            for i in range(2): a(f"    v_lshlrev_b32 v{u+2*i}, 16, v{dst+2*(w+k)+i}\n    v_and_b32 v{u+1+2*i}, 0xffff0000, v{dst+2*(w+k)+i}")
        for k in range(4 if w else 0): a(f"    v_pk_add_f32 {P2(t+2*k)}, {P2(t+2*k)}, {P2(20+2*k)}")
    a(f"    v_pk_add_f32 {P2(t)}, {P2(t)}, {P2(t+4)}\n    v_pk_add_f32 {P2(t+2)}, {P2(t+2)}, {P2(t+6)}")
    a(f"    v_cvt_pk_bf16_f32 v{t+8}, v{t}, v{t+1}\n    v_cvt_pk_bf16_f32 v{t+9}, v{t+2}, v{t+3}")
    a(f"    buffer_store_dwordx2 {P2(t+8)}, v{vg}, {S(SOUT)}, s59 offen{OST}")
rd_item(4, 16, 64)
rd_item(5, 17, 80)
a(f"""    s_cmp_ge_u32 s{sW}, 4
    s_cbranch_scc1 L_fin2
    s_waitcnt lgkmcnt(8)""")
rd_item(8, 18, 96)
sum_item(64, 32, 6)
a("    s_waitcnt lgkmcnt(8)")
sum_item(80, 44, 7)
a("    s_waitcnt lgkmcnt(0)")
sum_item(96, 32, 9)
a("    s_branch L_fin3\nL_fin2:\n    s_waitcnt lgkmcnt(8)")
sum_item(64, 32, 6)
a("    s_waitcnt lgkmcnt(0)")
sum_item(80, 44, 7)
a("L_fin3:")
stamp(7)
a(f"""    s_cmp_lg_u32 s2, 0
    s_cbranch_scc1 L_noep
    s_cmp_lg_u32 s{sW}, 7
    s_cbranch_scc1 L_noep
    s_mov_b64 exec, -1
    v_lshlrev_b32 v8, 4, v0
    s_mov_b32 s50, {WS_EF}
    s_mov_b32 s60, 0
L_ep:
    buffer_load_dwordx4 v[12:15], v8, {S(SWS)}, s50 offen sc1
    s_add_u32 s60, s60, 1
    s_waitcnt vmcnt(0)
    v_xor_b32 v12, s47, v12
    v_xor_b32 v13, s47, v13
    v_xor_b32 v14, s47, v14
    v_xor_b32 v15, s47, v15
    v_or3_b32 v12, v12, v13, v14
    v_or_b32 v12, v12, v15
    v_cmp_ne_u32 vcc, 0, v12
    s_cbranch_vccz L_epd
    s_sleep 4
    s_cmp_lt_u32 s60, 0x40000
    s_cbranch_scc1 L_ep
L_epd:
    v_mov_b32 v12, s47
    v_mov_b32 v13, 0
    s_mov_b32 s50, {WS_EPOCH}
    s_mov_b64 exec, 1
    buffer_store_dword v12, v13, {S(SWS)}, s50 offen sc1
L_noep:""")
if PROF:
    mk_ws()
    a(f"""    s_memrealtime s[88:89]
    s_waitcnt lgkmcnt(0)
    s_mov_b32 s99, s88
    s_lshl_b32 s50, s2, 3
    s_add_u32 s50, s50, s{sW}
    s_lshl_b32 s50, s50, 6
    s_add_u32 s50, s50, {WS_PROF}
    v_mov_b32 v7, 0
    s_mov_b64 exec, 1""")
    for k in range(10):
        a(f"    v_mov_b32 v6, s{90+k}\n    buffer_store_dword v6, v7, {S(SWS)}, s50 offen offset:{4*k}")
a.label("L_end")
a("    s_endpgm")
a('.section .rodata,"a"')
a(kd(NAME, 256, 102, 256))
open(sys.argv[1], "w").write(a.text())
```

```python
import sys, math, struct
from asmlib import *

NAME = "parallel_sum__spectral_fnet__geglu_ffn__prompt_kernel"
opt = dict(prof=0, xo=2, irot=1, rot2=1, la=3, nodma=0, wrot=1, thr=3, pslp=3, touch=0, pp=0, cp=0, slp=0, nt=0, ost=0, sch=7, ssch=1, pp2=0, h1st=0, ex=0, fin=1, map2=0, wdnt=1, wdt=0, tch=0, sst=0)
for a_ in sys.argv[2:]:
    k, v = a_.split("="); assert k in opt, k; opt[k] = int(v)
PROF = opt["prof"]

WS_STATS, WS_FLAGS, WS_WF, WS_CSP, WS_H, WS_G = 0, 0x8000, 0x10000, 0x300000, 0x400000, 0xC00000
WS_EF, WS_F2, WS_EPOCH = 0x4000, 0x4400, 0x4800
WS_SIZE = 0x1000000
WS_PROF = 0xF80000
WFT = 54 * 5120
STG = 49152
L_SCR, L_STAT, L_CS, L_CNT = 147456, 157696, 161792, 162304
O_CNT, O_REL, O_RDY, O_LAND, O_WOK, O_TAG, O_S1, O_WL, O_PF = 0, 4, 8, 12, 16, 20, 24, 28, 32
PSTR = 176
K1C = 2.0 * math.sqrt(2.0 / math.pi) * math.log2(math.e)
K2C = K1C * 0.044715
def f2u(x): return struct.unpack("<I", struct.pack("<f", x))[0]

a = Asm()
HDR = open("parallel_sum__spectral_fnet__geglu_ffn__prompt.s.ref").read().split("; Override launch")[0]
a(HDR.rstrip())
a("; @launch grid=(256,1,1) block=(512,1,1) lds=163840")
a('.amdgcn_target "amdgcn-amd-amdhsa--gfx950"\n.text')
kernel_head(a, NAME)

SX, SWA, SWB, SWS, SWD, SOUT, SDBG = 4, 8, 12, 16, 20, 32, 36
sM, sNT, sW, sDFT, sT1, sJ2, sMI = 40, 41, 42, 43, 44, 45, 48
P_X, P_HRE, P_HIM, P_WG, P_WU, P_WD, P_OUT, P_DBG, P_WS = 64, 70, 72, 76, 78, 80, 82, 84, 86
def S(b): return f"s[{b}:{b+3}]"
def V(b, n=4): return f"v[{b}:{b+n-1}]"
def P2(r): return f"v[{r}:{r+1}]"
def mk_x(): srd(a, SX, P_X, 2621440)
def mk_ws(): srd(a, SWS, P_WS, WS_SIZE)
def mk_wd(): srd(a, SWD, P_WD, 1728 * 1280)
def mk_out(): srd(a, SOUT, P_OUT, 2621440)
def mk_dbg(): srd(a, SDBG, P_DBG, 256)
def st_txt(k): return f"    s_memtime s[88:89]\n    s_waitcnt lgkmcnt(0)\n    s_sub_u32 s{90+k}, s88, s100"
def stamp(k):
    if PROF == 1: a(st_txt(k))
    if PROF == 4 or (PROF == 6 and k == 7): a(f"    s_memrealtime s[88:89]\n    s_waitcnt lgkmcnt(0)\n    s_sub_u32 s{90+k}, s88, s100")
def st3(k):
    if PROF == 3: a(st_txt(k))
def bar(name, k=None):
    a(f"    s_barrier            ; {name}")
    if PROF == 2 and k is not None: a(st_txt(k))
def mfma(d, x, y, c=None): return f"    v_mfma_f32_16x16x32_bf16 {V(d)}, {V(x)}, {V(y)}, {V(d) if c is None else c}"
ACC2 = 176
_u = [0]
def uniq():
    _u[0] += 1
    return _u[0]
PBASE = [0, 40960, 81920, 117760]
def lds_spin(tag, off, target, va, vd):
    if isinstance(off, int): a(f"    v_mov_b32 v{va}, {L_CNT + off}")
    else: a(f"    v_mov_b32 v{va}, {off}")
    a(f"""    s_mov_b32 s60, 0
L_{tag}:
    ds_read_b32 v{vd}, v{va}
    s_add_u32 s60, s60, 1
    s_waitcnt lgkmcnt(0)
    v_cmp_gt_u32 vcc, {target}, v{vd}
    s_cbranch_vccz L_{tag}d
    s_sleep 1
    s_cmp_lt_u32 s60, 0x400000
    s_cbranch_scc1 L_{tag}
L_{tag}d:""")
def lds_add(off, va, vd):
    a(f"""    v_mov_b32 v{va}, {L_CNT + off}
    v_mov_b32 v{vd}, 1
    s_mov_b64 exec, 1
    ds_add_u32 v{va}, v{vd}
    s_mov_b64 exec, -1""")
def poll(tag, vaddr, soff, vd, cmp, slp):
    a(f"""    s_mov_b32 s60, 0
L_{tag}:
    buffer_load_dword v{vd}, v{vaddr}, {S(SWS)}, {soff} offen sc1
    s_add_u32 s60, s60, 1
    s_waitcnt vmcnt(0)
    v_cmp_ne_u32 vcc, {cmp}, v{vd}
    s_cbranch_vccz L_{tag}d
    s_sleep {slp}
    s_cmp_lt_u32 s60, 0x40000
    s_cbranch_scc1 L_{tag}
L_{tag}d:""")
def rot_next(c, n):
    a(f"    s_add_u32 s{c}, s{c}, 1\n    s_cmp_eq_u32 s{c}, {n}\n    s_cselect_b32 s{c}, 0, s{c}")
def k2_setup():
    a(f"""    v_lshlrev_b32 v1, 4, v0
    s_mul_i32 s24, s{sJ2}, {WFT}
    s_add_u32 s24, s24, {WS_WF}
    s_mul_i32 s28, s39, {3 if opt['map2'] else 4}
    s_lshr_b32 s28, s28, 2
    s_add_u32 s28, s28, s29
    s_cmp_ge_u32 s28, 6
    s_cselect_b32 s30, 6, 0
    s_sub_u32 s28, s28, s30""")
    if not opt["rot2"]: a("    s_mov_b32 s28, 0")
    a(f"""    s_mul_i32 s26, s49, 6
    s_add_u32 s26, s26, 30
    s_mul_i32 s25, s26, 5120
    s_add_u32 s25, s25, s24
    s_lshl_b32 s26, s26, 17
    s_lshl_b32 s27, s{sT1}, 12
    s_add_u32 s26, s26, s27
    s_add_u32 s26, s26, {WS_H}
    s_mov_b32 s27, s28""")
def own_slot(sl):
    a("    s_mul_i32 s30, s27, 5120\n    s_add_u32 s30, s30, s25\n    s_add_u32 s31, s30, 4096")
    for nb in range(5):
        if nb < 4: a(f"    buffer_load_dwordx4 {V(8+20*sl+4*nb)}, v1, {S(SWS)}, s30 offen offset:{nb*1024} sc1")
        else: a(f"    buffer_load_dwordx4 {V(8+20*sl+4*nb)}, v1, {S(SWS)}, s31 offen sc1")
    rot_next(27, 6)
def own_w(s0, s1, thr=0):
    for sl in range(s0, s1):
        if thr: a(f"    s_waitcnt vmcnt({thr})")
        own_slot(sl)
def x_init_load():
    mk_x()
    a(f"""    v_and_b32 v2, 15, v0
    v_lshlrev_b32 v2, 6, v2
    v_add_u32 v2, s{sT1}, v2
    v_mul_u32_u24 v2, 1280, v2
    v_lshrrev_b32 v3, 4, v0
    v_lshl_add_u32 v2, v3, 3, v2
    s_and_b32 s30, s49, 1
    s_mul_i32 s30, s30, {1024*1280}
    s_lshr_b32 s31, s49, 1
    s_mul_i32 s31, s31, {32*1280}
    s_add_u32 s30, s30, s31
    s_mul_i32 s31, s{sJ2}, 160
    s_add_u32 s30, s30, s31""")
    for nb in range(5):
        a(f"    buffer_load_dwordx2 {P2(160+2*nb)}, v2, {S(SX)}, s30 offen offset:{32*nb}")
def trig4(t, d_cos, d_sin, mask, scale, neg):
    for i in range(4): a(f"    v_and_b32 v{t+i}, {mask}, v{t+i}")
    for i in range(4): a(f"    v_cvt_f32_u32 v{t+i}, v{t+i}")
    for i in range(4): a(f"    v_mul_f32 v{t+i}, {f2u(scale):#x}, v{t+i}")
    for i in range(4): a(f"    v_cos_f32 v{t+4+i}, v{t+i}")
    for i in range(4): a(f"    v_sin_f32 v{t+i}, {'-' if neg else ''}v{t+i}")
    a(f"""    v_cvt_pk_bf16_f32 v{d_cos}, v{t+4}, v{t+5}
    v_cvt_pk_bf16_f32 v{d_cos+1}, v{t+6}, v{t+7}
    v_cvt_pk_bf16_f32 v{d_sin}, v{t}, v{t+1}
    v_cvt_pk_bf16_f32 v{d_sin+1}, v{t+2}, v{t+3}""")

def trig_rows(young):
    a(f"""    s_cmp_ge_u32 s{sJ2}, 4
    s_cselect_b32 s58, -1, 0
    s_and_b32 s57, s58, 1
    v_and_b32 v2, 15, v0
    v_lshlrev_b32 v144, 6, v2
    v_add_u32 v144, s{sT1}, v144
    v_lshrrev_b32 v3, 4, v0
    s_lshl_b32 s52, s49, 4
    v_lshl_add_u32 v145, v3, 2, s52""")
    for ts in range(4):
        a(f"""    v_add_u32 v146, {1024*(ts&1) + 32*(ts>>1)}, v144
    v_xor_b32 v146, s58, v146
    v_add_u32 v146, s57, v146
    v_and_b32 v146, 2047, v146
    v_mul_u32_u24 v148, v146, v145
    v_add_u32 v149, v148, v146
    v_add_u32 v150, v149, v146
    v_add_u32 v151, v150, v146""")
        trig4(148, 128 + 4 * ts, 130 + 4 * ts, 2047, 1 / 2048, True)
    for r in range(ACC2, 256): a(f"    v_mov_b32 v{r}, 0")
    u = uniq()
    a(f"    s_waitcnt vmcnt({young})")
    for ts in range(4):
        a(f"    s_cmp_lg_u32 s49, {ts}\n    s_cbranch_scc1 L_xi{u}_{ts}")
        for nb in range(5):
            d = ACC2 + 4 * (nb * 4 + ts); x = 160 + 2 * nb
            a(f"""    v_lshlrev_b32 v{d}, 16, v{x}
    v_and_b32 v{d+1}, 0xffff0000, v{x}
    v_lshlrev_b32 v{d+2}, 16, v{x+1}
    v_and_b32 v{d+3}, 0xffff0000, v{x+1}""")
        a(f"L_xi{u}_{ts}:")

def w_touch(j, two, va, vd, sa):
    a(f"""    v_lshrrev_b32 v{va}, 5, v0
    v_mul_u32_u24 v{va}, {1728 - 32}, v{va}
    v_add_u32 v{va}, v{va}, v0
    s_lshr_b32 s{sa}, s2, 2
    s_mul_i32 s{sa}, s{sa}, 27
    s_bfe_u32 s{sa+1}, s2, 0x10001
    s_mul_i32 s{sa+1}, s{sa+1}, {5*1728}
    s_add_u32 s{sa}, s{sa}, s{sa+1}
    s_add_u32 s{sa}, s{sa}, {j*1728}
    v_add_u32 v{va}, s{sa}, v{va}
    v_lshlrev_b32 v{va}, 7, v{va}
    s_bitcmp1_b32 s2, 0
    s_cselect_b32 s{sa}, s{P_WU}, s{P_WG}
    s_cselect_b32 s{sa+1}, s{P_WU+1}, s{P_WG+1}
    s_mov_b32 exec_lo, 0x07ffffff
    s_mov_b32 exec_hi, {'0x07ffffff' if two else '0'}
    global_load_dword v{vd}, v{va}, s[{sa}:{sa+1}]
    s_mov_b64 exec, -1""")
MAP2 = f"""    s_mov_b32 s38, s{sJ2}
    s_lshl_b32 s{sT1}, s47, 3
    s_bfe_u32 s29, s2, 0x30003
    s_add_u32 s{sT1}, s{sT1}, s29
    s_lshr_b32 s39, s2, 6
    s_and_b32 s{sJ2}, s46, 1
    s_lshl_b32 s{sJ2}, s{sJ2}, 2
    s_add_u32 s{sJ2}, s{sJ2}, s39
    s_lshl_b32 s39, s39, 1""" if opt["map2"] else f"""    s_mov_b32 s38, s{sJ2}
    s_mov_b32 s39, s{sJ2}
    s_mov_b32 s29, s{sMI}
    s_lshl_b32 s{sT1}, s46, 2
    s_add_u32 s{sT1}, s{sT1}, s{sMI}"""
a(f"""    s_cmp_ge_u32 s2, 256
    s_cbranch_scc1 L_end
    s_load_dwordx16 s[64:79], s[0:1], 0
    s_load_dwordx8 s[80:87], s[0:1], 64""")
if PROF:
    a("    s_memtime s[100:101]" if PROF not in (4, 6) else "    s_memrealtime s[100:101]")
    for k in range(10): a(f"    s_mov_b32 s{90+k}, 0")
a(f"""    v_lshrrev_b32 v1, 6, v0
    v_and_b32 v0, 63, v0
    v_readfirstlane_b32 s{sW}, v1
    s_and_b32 s46, s2, 7
    s_lshr_b32 s47, s2, 3
    s_and_b32 s{sM}, s46, 1
    s_lshl_b32 s{sM}, s{sM}, 2
    s_and_b32 s{sMI}, s47, 3
    s_add_u32 s{sM}, s{sM}, s{sMI}
    s_lshr_b32 s{sJ2}, s47, 2
    s_lshl_b32 s{sNT}, s{sJ2}, 2
    s_lshr_b32 s47, s46, 1             ; n-group g
    s_add_u32 s{sNT}, s{sNT}, s47
{MAP2}
    s_cmp_ge_u32 s{sNT}, 27
    s_cselect_b32 s{sDFT}, 1, 0
    s_cmp_lt_u32 s{sW}, 4
    s_cbranch_scc1 L_cons
    s_setprio 3
    s_sub_u32 s49, s{sW}, 4
    s_cmp_eq_u32 s{sW}, 7
    s_cbranch_scc1 L_serv
    v_lshrrev_b32 v2, 3, v0
    v_and_b32 v3, 7, v0
    v_lshrrev_b32 v5, 1, v2
    s_lshl_b32 s63, s47, 2
    s_lshr_b32 s63, {[0, 0x3210, 0x8530][opt['xo']]:#x}, s63
    s_and_b32 s63, s63, 15
    s_and_b32 s62, s46, 1
    s_mul_i32 s62, s62, 5
    s_add_u32 s63, s63, s62
    s_cmp_ge_u32 s63, 10
    s_cselect_b32 s62, 10, 0
    s_sub_u32 s63, s63, s62
    s_cmp_eq_u32 s{sW}, 6
    s_cbranch_scc1 L_prodw
    v_mul_u32_u24 v4, 81920, v2
    v_xor_b32 v3, v3, v5
    v_lshl_add_u32 v8, v3, 4, v4
    v_xor_b32 v9, 64, v8
    s_lshl_b32 s50, s49, 5
    s_lshl_b32 s51, s{sM}, 2
    s_add_u32 s50, s50, s51
    s_mul_i32 s50, s50, 1280
    s_lshl_b32 s52, s63, 7
    s_add_u32 s50, s50, s52
    s_lshl_b32 s51, s49, 14
    s_lshl_b32 s57, s38, 1""")
if not opt["irot"]: a("    s_mov_b32 s57, 0")
a(f"""    s_lshl_b32 s53, s57, 10
    s_mov_b32 s54, 0x3fff
    s_mov_b32 s55, 0
    s_mov_b32 s56, 128
    s_mov_b32 s62, 1280
    s_waitcnt lgkmcnt(0)""")
srd(a, SWA, P_X, 2621440); srd(a, SWB, P_X, 2621440)
def dma(n, isw=0):
    a(f"""    s_add_u32 m0, s51, s53
    s_add_u32 s53, s53, 1024
    s_and_b32 s53, s53, s54""")
    if not opt["nodma"]: a(f"    buffer_load_dwordx4 v{128+n}, {S(SWA if n < 8 else SWB)}, s50 offen{' nt' if opt['nt'] >> isw & 1 else ''} lds")
for n in range(16):
    a(f"""    s_add_u32 s52, s57, {n}
    s_and_b32 s58, s52, 3
    s_mul_i32 s58, s58, {512*1280}
    s_bfe_u32 s52, s52, 0x20002
    s_mul_i32 s52, s52, 1280
    s_add_u32 s52, s52, s58
    v_add_u32 v{128+n}, s52, v{8 + (n & 1)}""")
    dma(n)
a(f"""    s_branch L_pfirst
L_prodw:
    s_mov_b32 s51, 32768
    s_lshl_b32 s57, s{sMI}, 1""")
if not opt["irot"]: a("    s_mov_b32 s57, 0")
a(f"""    s_lshl_b32 s53, s57, 10
    s_mov_b32 s54, 0x1fff
    s_mov_b32 s55, 8192
    s_cmp_eq_u32 s{sDFT}, 1
    s_cbranch_scc1 L_prodw_dft
    v_mul_u32_u24 v4, 3456, v2
    v_and_b32 v5, 1, v5
    v_lshlrev_b32 v5, 1, v5
    v_xor_b32 v3, v3, v5
    v_lshl_add_u32 v8, v3, 4, v4
    v_xor_b32 v9, 64, v8
    s_lshl_b32 s50, s{sNT}, 7
    s_mov_b32 s58, {8*3456}
    s_mov_b32 s56, {64*3456}
    s_waitcnt lgkmcnt(0)""")
srd(a, SWA, P_WG, 640 * 3456); srd(a, SWB, P_WU, 640 * 3456)
a(f"""    s_branch L_prodw_go
L_prodw_dft:
    v_mul_u32_u24 v4, 1280, v2
    v_xor_b32 v3, v3, v5
    v_lshl_add_u32 v8, v3, 4, v4
    v_xor_b32 v9, 64, v8
    s_sub_u32 s50, s{sNT}, 27
    s_lshl_b32 s50, s50, 6
    s_add_u32 s50, s50, 1
    s_mul_i32 s50, s50, 1280
    s_mov_b32 s58, {8*1280}
    s_mov_b32 s56, 128
    s_waitcnt lgkmcnt(0)""")
srd(a, SWA, P_HRE, 640 * 1280); srd(a, SWB, P_HIM, 640 * 1280)
a(f"""L_prodw_go:
    s_mul_i32 s52, s63, s56
    s_add_u32 s50, s50, s52
    s_mul_i32 s62, s56, 10""")
for n in range(8):
    a(f"""    s_add_u32 s52, s57, {n}
    s_and_b32 s52, s52, 7
    s_mul_i32 s52, s52, s58
    v_add_u32 v{128+n}, s52, v{8 + (n & 1)}
    v_add_u32 v{136+n}, s52, v{8 + (n & 1)}""")
    dma(n, 1)
a("    s_add_u32 s51, s51, s55")
for n in range(8, 16): dma(n, 1)
a.label("L_pfirst")
mk_ws()
k2_setup()
a(f"""    v_mov_b32 v144, {L_CNT}
    s_mov_b32 s60, 0
    s_branch L_pnext
L_ploop:""")
if opt["nt"] in (1, 2):
    a(f"    s_cmp_eq_u32 s{sW}, 6\n    s_cbranch_scc0 L_ploopx")
    for n in range(16):
        if n == 8: a("    s_add_u32 s51, s51, s55")
        dma(n, 1)
    a("    s_branch L_pnext\nL_ploopx:")
for n in range(16):
    if n == 8: a("    s_add_u32 s51, s51, s55")
    dma(n)
a(f"""L_pnext:
    s_sub_u32 s51, s51, s55
    s_add_u32 s50, s50, s56
    s_add_u32 s63, s63, 1
    s_cmp_eq_u32 s63, 10
    s_cselect_b32 s63, 0, s63
    s_cselect_b32 s52, s62, 0
    s_sub_u32 s50, s50, s52
    s_add_u32 s51, s51, {STG}
    s_cmp_ge_u32 s51, {3*STG}
    s_cselect_b32 s52, {3*STG}, 0
    s_sub_u32 s51, s51, s52
    s_add_u32 s60, s60, 1
    s_cmp_lt_u32 s60, 2
    s_cbranch_scc1 L_ploop
    s_waitcnt vmcnt(16)
    s_barrier
    s_cmp_lt_u32 s60, 10
    s_cbranch_scc1 L_ploop""")
stamp(0)
def wpart(start, cnt, thr=0):
    a(f"""    s_mul_i32 s50, s49, {cnt*1024}
    s_add_u32 s50, s50, {start*1024}
    s_and_b32 s51, s29, 3
    s_lshl_b32 s51, s51, 12""")
    if not opt["wrot"]: a("    s_mov_b32 s51, 0")
    for g in range(4):
        if thr: a(f"    s_waitcnt vmcnt({thr})")
        a(f"""    s_add_u32 m0, s50, s51
    s_add_u32 s52, m0, s24
    s_add_u32 s51, s51, 4096
    s_and_b32 s51, s51, 0x3fff""")
        for i in range(4):
            a(f"    buffer_load_dwordx4 v1, {S(SWS)}, s52 offen offset:{i*1024} sc1 lds")
    if cnt > 16:
        a(f"    s_add_u32 m0, s50, 16384\n    s_add_u32 s52, m0, s24")
        for i in range(cnt - 16):
            a(f"    buffer_load_dwordx4 v1, {S(SWS)}, s52 offen offset:{i*1024} sc1 lds")
T = opt["thr"]
a("    s_waitcnt vmcnt(0)")
lds_add(O_LAND, 144, 145)
lds_spin("wok", O_WOK, 1, 144, 145)
SCH = ["A o0 o1 r4 B X t o2 r8 o3 dr u C o4 o5 T",
       "A o0 o1 r4 B X o2 r8 t C o3 o4 o5 T",
       "A o0 o1 r4 B X r8 t C o2 dr u o3 o4 o5 T",
       "A o0 r4 B X o1 r8 t o2 C dr u o3 o4 o5 T",
       "A o0 o1 r4 B X r8 dr C o2 o3 o4 o5 T",
       "A o0 o1 r4 B X o2 r8 C o3 o4 o5 T",
       "A X o0 o1 r4 B r8 t C o2 o3 T dr u o4 o5",
       "A o0 o1 r4 B X t o2 r8 o3 pd u C o4 o5 T",
       "A o0 o1 r4 B X r8 pd C o2 o3 o4 o5 T",
       "A X o0 r8 pd B C o1 o2 o3 o4 o5 W25 T",
       "A X o0 o1 r8 pd B C o2 o3 o4 o5 W20 T",
       "A X r4 B r8 pd C o0 o1 o2 o3 o4 o5 W30 T",
       "A X o0 r8 T pd B C o1 o2 o3 o4 o5 W25",
       "A X r8 pd B C o0 o1 o2 o3 o4 o5 W30 T"][opt["sch"]]
def run_sched(sch, tag):
    thr = 0; young = None
    for tok in sch.split():
        n = 0
        if tok == "t": thr = T
        elif tok == "u": thr = 0
        elif tok == "A": wpart(48, 16, thr); n = 16
        elif tok == "B": a("    s_waitcnt vmcnt(40)"); wpart(96, 18, thr); n = 18
        elif tok == "C": a("    s_waitcnt vmcnt(40)"); wpart(0, 16, thr); n = 16
        elif tok == "X": x_init_load(); young = 0
        elif tok[0] == "o": own_w(int(tok[1]), int(tok[1]) + 1, thr); n = 5
        elif tok == "r4": lds_spin(tag + "r4", O_REL, 4, 144, 145)
        elif tok == "r8":
            lds_spin(tag + "r8", O_REL, 8, 144, 145); stamp(1); a("    s_setprio 0")
        elif tok == "dr": lds_spin(tag + "dr", O_CNT, 4, 144, 145)
        elif tok == "pd":
            a(f"    s_cmp_eq_u32 s{sDFT}, 1\n    s_cbranch_scc1 L_{tag}pdd")
            lds_spin(tag + "pd", O_CNT, 4, 144, 145)
        elif tok == "p0": a("    s_setprio 0")
        elif tok[0] == "W":
            a(f"    s_waitcnt vmcnt({tok[1:]})"); lds_add(O_WL, 144, 145)
        elif tok == "T": trig_rows(min(young, 63))
        if young is not None: young += n
run_sched(SCH, "p")
a("    s_branch L_pown")

a.label("L_serv")
a(f"""    s_lshr_b32 s53, s2, 2
    s_and_b32 s54, s2, 3
    s_mul_i32 s51, s53, {32*1280}
    s_mul_i32 s52, s54, 320
    s_add_u32 s51, s51, s52
    s_cmp_ge_u32 s2, 216
    s_cselect_b32 s51, 0x40000000, s51
    s_mov_b32 s56, 3277""")
for q in range(10):
    a(f"""    v_add_u32 v6, {64*q}, v0
    v_mul_u32_u24 v7, s56, v6
    v_lshrrev_b32 v7, 16, v7
    v_mul_u32_u24 v8, 20, v7
    v_sub_u32 v6, v6, v8
    v_mul_u32_u24 v7, 1280, v7
    v_lshl_add_u32 v{88+q}, v6, 4, v7""")
a(f"""    ; column sums: k32-step (m & 1) of matrix (m >> 1) & 1 in the first five stages, on the matrix core
    v_mov_b32 v60, 0x3f803f80
    v_mov_b32 v61, v60
    v_mov_b32 v62, v60
    v_mov_b32 v63, v60
    v_lshrrev_b32 v3, 4, v0
    v_bfe_u32 v6, v0, 2, 2                ; rho
    v_and_b32 v7, 3, v0                   ; gamma
    v_lshl_add_u32 v15, v3, 2, v6
    v_mul_u32_u24 v15, 320, v15
    v_lshl_add_u32 v15, v7, 3, v15
    v_add_u32 v15, {L_SCR}, v15
    s_and_b32 s57, s{sMI}, 1
    s_lshr_b32 s58, s{sMI}, 1
    s_lshl_b32 s52, s58, 13
    s_add_u32 s52, s52, 32768
    s_cmp_eq_u32 s{sDFT}, 1
    s_cbranch_scc1 L_sa_d
    v_lshl_add_u32 v5, v3, 3, v6
    v_lshlrev_b32 v5, 7, v5
    v_lshl_add_u32 v5, v7, 3, v5
    v_lshrrev_b32 v6, 1, v6
    v_and_b32 v7, 1, v3
    v_lshl_add_u32 v6, v7, 1, v6
    v_lshl_add_u32 v5, v6, 5, v5
    s_lshl_b32 s57, s57, 12
    s_add_u32 s52, s52, s57
    v_add_u32 v16, s52, v5
    v_xor_b32 v17, 32, v16
    v_xor_b32 v18, 64, v16
    v_xor_b32 v19, 96, v16
    s_branch L_sa_e
L_sa_d:
    s_lshl_b32 s57, s57, 2
    v_add_u32 v7, s57, v3
    v_bfe_u32 v6, v0, 1, 3
    v_xor_b32 v7, v7, v6
    v_and_b32 v6, 15, v0
    v_lshlrev_b32 v5, 7, v6
    v_lshl_add_u32 v5, v7, 4, v5
    v_add_u32 v16, s52, v5
    v_add_u32 v17, 2048, v16
    v_add_u32 v18, 4096, v16
    v_add_u32 v19, 6144, v16
L_sa_e:
    v_lshlrev_b32 v1, 4, v0
    v_lshlrev_b32 v9, 2, v0
    v_add_u32 v9, {L_CNT}, v9
    v_mov_b32 v7, 0
    s_mov_b64 exec, 0xffff
    ds_write_b32 v9, v7
    s_mov_b64 exec, -1
    v_mov_b32 v10, {L_CNT}
    v_mov_b32 v11, 1""")
for r in range(144, 160): a(f"    v_mov_b32 v{r}, 0")
a("    s_waitcnt lgkmcnt(0)")
mk_ws()
a(f"""    s_mov_b32 s47, {WS_EPOCH}
    buffer_load_dword v57, v7, {S(SWS)}, s47 offen sc1""")
mk_wd()
def cs_pass(j):
    if opt["ex"] == 11: return
    a(f"    s_cmp_eq_u32 s{sDFT}, 1\n    s_cbranch_scc1 L_cs{j}_d")
    for i in range(4):
        a(f"    ds_read_b64_tr_b16 {P2(64+4*i)}, v{16+i}")
        a(f"    ds_read_b64_tr_b16 {P2(66+4*i)}, v{16+i} offset:512")
    a(f"    s_branch L_cs{j}_e\nL_cs{j}_d:")
    for i in range(4): a(f"    ds_read_b128 {V(64+4*i)}, v{16+i}")
    d = STG if j % 3 != 2 else -2 * STG
    a(f"L_cs{j}_e:\n    s_mov_b32 s52, {d}")
    for i in range(4): a(f"    v_add_u32 v{16+i}, s52, v{16+i}")
    a("    s_waitcnt lgkmcnt(0)")
    for i in range(4 if opt["ex"] != 10 else 0): a(mfma(144 + 4 * i, 64 + 4 * i, 60))
k2_setup()
bar("B_-1", 0)
j0 = 3 if opt["tch"] & 2 else 2
if opt["tch"] & 4: w_touch(j0, 1, 2, 4, 60)
cs_pass(0)
def wd_dma():
    for q in range(10):
        a(f"    s_mov_b32 m0, {L_SCR + q*1024}\n    s_nop 0\n    buffer_load_dwordx4 v{88+q}, {S(SWD)}, s51 offen{' nt' if opt['wdnt'] else ''} lds")
if opt["wdt"] == 0 and opt["ex"] not in (12, 13): wd_dma()
bar("B_0", 1)
if opt["tch"] & 4 and j0 == 2: w_touch(4, 0, 2, 4, 60)
cs_pass(1)
if opt["wdt"] == 1: wd_dma()
bar("B_1", 2)
cs_pass(2)
def wf_read():
    a(f"""    s_waitcnt vmcnt(0)
    v_add_u32 v57, 1, v57
    ds_write_b32 v10, v57 offset:{O_TAG}
    v_readfirstlane_b32 s47, v57""")
    for jj in range(2):
        for nb in range(5):
            r = 88 + 4 * (5 * jj + nb); o = jj * 160 + nb * 32
            a(f"    ds_read_b64_tr_b16 v[{r}:{r+1}], v15 offset:{o}")
            a(f"    ds_read_b64_tr_b16 v[{r+2}:{r+3}], v15 offset:{o+5120}")
    a(f"""    s_mul_i32 s51, s54, {2*WFT}
    s_mul_i32 s52, s53, 5120
    s_add_u32 s51, s51, s52
    s_add_u32 s51, s51, {WS_WF}
    s_cmp_ge_u32 s2, 216
    s_cselect_b32 s51, 0x40000000, s51
    s_waitcnt lgkmcnt(0)""")
def wf_store(jj):
    if opt["ex"] in (12, 14): return
    for nb in range(5):
        r = 88 + 4 * (5 * jj + nb)
        if nb == 4:
            a(f"    s_add_u32 s52, s51, 4096\n    buffer_store_dwordx4 {V(r)}, v1, {S(SWS)}, s52 offen sc1")
        else:
            a(f"    buffer_store_dwordx4 {V(r)}, v1, {S(SWS)}, s51 offen offset:{nb*1024} sc1")
    if jj == 0: a(f"    s_add_u32 s51, s51, {WFT}")
if opt["wdt"] == 0: wf_read(); wf_store(0)
bar("B_2", 3)
cs_pass(3)
if opt["wdt"] == 1: wf_read(); wf_store(0)
wf_store(1)
a(f"""    s_lshl_b32 s61, s54, 6
    s_add_u32 s61, s61, s53
    s_lshl_b32 s61, s61, 2
    s_add_u32 s61, s61, {WS_EF}
    s_lshl_b32 s53, s{sNT}, 3
    s_add_u32 s53, s53, s{sM}
    s_lshl_b32 s53, s53, 9
    s_lshl_b32 s58, s58, 8
    s_add_u32 s53, s53, s58
    s_add_u32 s53, s53, {WS_CSP}
    v_and_b32 v173, 48, v0
    ; F2 flags to wait for: lanes 0..31 (m, lane), lanes 32.. (lane & 7, nt)
    s_lshl_b32 s50, s{sM}, 5
    v_add_u32 v171, s50, v0
    v_and_b32 v170, 7, v0
    v_lshlrev_b32 v170, 5, v170
    v_add_u32 v170, s{sNT}, v170
    v_cmp_gt_u32 vcc, 32, v0
    s_add_u32 s50, s50, s{sNT}
    s_lshl_b32 s50, s50, 2
    v_cndmask_b32 v171, v170, v171, vcc
    v_lshlrev_b32 v171, 2, v171
    v_min_u32 v170, 53, v0
    v_lshlrev_b32 v170, 2, v170
    s_add_u32 s50, s50, {WS_F2}
    s_lshr_b32 s51, s{sJ2}, 1
    s_lshl_b32 s51, s51, 8
    s_add_u32 s51, s51, {WS_EF}
    v_mov_b32 v172, s47
    v_mov_b32 v174, {L_CNT}
    v_mov_b32 v175, 1
    s_mov_b32 s59, 0""")
bar("B_3", 4)
cs_pass(4)
a(f"""    s_waitcnt vmcnt(0)
    s_mov_b64 exec, 1
    buffer_store_dword v172, v7, {S(SWS)}, s61 offen sc1
    s_mov_b32 exec_lo, 0x00010001
    s_mov_b32 exec_hi, 0x00010001
    s_nop 3""")
for i in range(4): a(f"    buffer_store_dwordx4 {V(144+4*i)}, v173, {S(SWS)}, s53 offen offset:{i*64} sc1")
a("    s_mov_b64 exec, -1")
bar("B_4", 5)
a(f"""    s_waitcnt vmcnt(0)
    s_mov_b64 exec, 1
    buffer_store_dword v172, v7, {S(SWS)}, s50 offen sc1     ; row statistics were drained before B_0
    s_mov_b64 exec, -1""")
bar("B_5", 6)
bar("B_6", 7)
a(f"""    s_mov_b32 s50, {WS_F2}
    buffer_load_dword v5, v170, {S(SWS)}, s51 offen sc1
    buffer_load_dword v6, v171, {S(SWS)}, s50 offen sc1""")
bar("B_7", 8)
stamp(0)
a(f"""    s_waitcnt vmcnt(0)
    v_cmp_ne_u32 s[58:59], s47, v5
    v_cmp_ne_u32 vcc, s47, v6
    s_cbranch_vccz L_p3d
    s_cmp_lg_u64 s[58:59], 0
    s_cbranch_scc1 L_p3w
    ds_write_b32 v174, v175 offset:{O_WOK}
L_p3w:""")
poll("p3", 171, "s50", 6, "s47", 3)
a(f"""    v_lshlrev_b32 v6, 3, v0
    v_lshrrev_b32 v5, 5, v0
    v_lshl_add_u32 v5, v5, 10, v6
    s_lshl_b32 s50, s{sM}, 11
    s_lshl_b32 s52, s{sNT}, 12
    s_add_u32 s52, s52, {WS_CSP}""")
for n in range(4):
    a(f"    buffer_load_dwordx2 v[{128+4*n}:{129+4*n}], v6, {S(SWS)}, s50 offen offset:{n*512} sc1")
for n in range(4):
    a(f"    buffer_load_dwordx2 {P2(144+2*n)}, v5, {S(SWS)}, s52 offen offset:{(n>>1)*2048+(n&1)*512} sc1")
a(f"""    s_cmp_eq_u64 s[58:59], 0
    s_cbranch_scc1 L_p1d""")
poll("p1", 170, "s51", 5, "s47", 3)
a(f"    ds_write_b32 v174, v175 offset:{O_WOK}")
a(f"    s_waitcnt vmcnt(0)")
for n in range(4): a(f"    v_rsq_f32 v{152+n}, v{129+4*n}")
for n in range(1, 4): a(f"    v_add_f32 v144, v144, v{144+2*n}\n    v_add_f32 v145, v145, v{145+2*n}")
a(f"""    v_add_u32 v6, {L_CS}, v6
    ds_write_b64 v6, v[144:145]
    s_cmp_eq_u32 s{sDFT}, 1
    s_cbranch_scc1 L_serv_cdft
    v_add_u32 v6, {L_STAT}, v1""")
for n in range(4):
    b = 128 + 4 * n
    a(f"""    v_mov_b32 v{b+3}, v{b+1}
    v_mul_f32 v156, v{152+n}, v{152+n}
    v_xor_b32 v{b}, 0x80000000, v{b}
    v_mul_f32 v{b+1}, {f2u(-K1C):#x}, v{152+n}
    v_mul_f32 v156, v156, v{152+n}
    v_mul_f32 v{b+2}, {f2u(-K2C):#x}, v156
    ds_write_b128 v6, {V(b)} offset:{n*1024}""")
a(f"""    s_branch L_serv_cd
L_serv_cdft:
    v_lshlrev_b32 v6, 2, v0
    v_add_u32 v6, {L_STAT}, v6""")
for n in range(4):
    b = 128 + 4 * n
    a(f"""    v_mul_f32 v{b}, v{b}, v{152+n}
    v_xor_b32 v{b}, 0x80000000, v{b}
    ds_write_b32 v6, v{152+n} offset:{n*256}
    ds_write_b32 v6, v{b} offset:{1024+n*256}""")
a(f"""L_serv_cd:
    ds_write_b32 v174, v175 offset:{O_RDY}""")
stamp(1)
a("    s_waitcnt lgkmcnt(0)")
SSCH = ["X o0 o1 o2 o3 p0 t o4 o5 pd T", "X o0 o1 o2 o3 p0 T t o4 o5 pd", "X o0 o1 o2 o3 o4 o5 T p0 pd", "X o0 o1 T p0 t o2 o3 o4 o5 pd", "X o0 p0 T pd", "X o0 o1 p0 T pd", "X p0 T pd"][opt["ssch"]]
SREST = [sl for sl in range(6) if f"o{sl}" not in SSCH]
run_sched(SSCH, "s")

def item(vit, va, vg, t0):
    t1, t2 = t0 + 1, t0 + 2
    a(f"""    v_mul_u32_u24 v{t0}, s50, v{vit}
    v_lshrrev_b32 v{t0}, 16, v{t0}
    v_mul_u32_u24 v{t1}, 20, v{t0}
    v_sub_u32 v{t1}, v{vit}, v{t1}
    v_and_b32 v{vg}, 31, v{t0}
    v_lshlrev_b32 v{vg}, 6, v{vg}
    v_and_b32 v{t2}, 32, v{t0}
    v_add3_u32 v{vg}, v{vg}, v{t2}, s{sT1}
    v_mul_u32_u24 v{vg}, 1280, v{vg}
    v_lshl_add_u32 v{vg}, v{t1}, 3, v{vg}
    v_mul_u32_u24 v{va}, {PSTR}, v{t0}
    v_lshl_add_u32 v{va}, v{t1}, 3, v{va}""")
def fin_addr(tb):
    a(f"""    s_mov_b32 s50, 3277
    s_lshl_b32 s51, s{sW}, 7
    v_add_u32 v{tb}, s51, v0""")
    item(tb, 4, 6, tb + 1)
    a(f"    v_add_u32 v{tb}, 64, v{tb}")
    item(tb, 5, 7, tb + 1)
    a(f"    s_mul_i32 s59, s{sJ2}, 160")
    mk_out()
def x_loads(r):
    a(f"""    buffer_load_dwordx4 {V(r)}, v6, {S(SX)}, s59 offen
    s_mov_b64 exec, 0xffff
    buffer_load_dwordx4 {V(r+4)}, v7, {S(SX)}, s59 offen
    s_mov_b64 exec, -1""")
def part_addr(t0):
    a(f"""    v_and_b32 v{t0}, 15, v0
    v_lshrrev_b32 v{t0+1}, 4, v0
    v_mul_u32_u24 v{t0}, {PSTR}, v{t0}
    v_lshl_add_u32 v{t0}, v{t0+1}, 3, v{t0}""")
def k2_mfma(wbase, hbase):
    for nb in range(5):
        for ts in range(4): a(mfma(ACC2 + 4 * (nb * 4 + ts), wbase + 4 * nb, hbase + 4 * ts))
def h_load(hbase, cnt, n, oob=None, base=61):
    a(f"    s_lshl_b32 s52, s{cnt}, 17\n    s_add_u32 s52, s52, s{base}")
    if oob: a(oob)
    for ts in range(4):
        a(f"    buffer_load_dwordx4 {V(hbase+4*ts)}, v1, {S(SWS)}, s52 offen offset:{ts*1024} sc1")
    rot_next(cnt, n)
def put(nb, ts, t, pr=None):
    d = ACC2 + 4 * (nb * 4 + ts)
    if pr is not None:
        a(f"""    v_lshlrev_b32 v{t}, 16, v{pr}
    v_and_b32 v{t+1}, 0xffff0000, v{pr}
    v_lshlrev_b32 v{t+2}, 16, v{pr+1}
    v_and_b32 v{t+3}, 0xffff0000, v{pr+1}""")
        for i in range(4): a(f"    v_add_f32 v{d+i}, v{d+i}, v{t+i}")
    a(f"""    v_cvt_pk_bf16_f32 v{d}, v{d}, v{d+1}
    v_cvt_pk_bf16_f32 v{d+1}, v{d+2}, v{d+3}
    ds_write_b64 v2, {P2(d)} offset:{ts*16*PSTR+nb*32}""")
def tail(steps, t, PR=None):
    for nb in range(5):
        i = 0
        if nb == 1 and PR: a("    s_waitcnt lgkmcnt(0)")
        for wb, hb in steps:
            for ts in range(4):
                a(mfma(ACC2 + 4 * (nb * 4 + ts), wb + 4 * nb, hb + 4 * ts))
                i += 1
                if nb and i >= 5: put(nb - 1, i - 5, t, PR(nb - 1, i - 5) if PR else None)
    stamp(5); st3(7)
    a("    s_nop 7")
    for ts in range(4): put(4, ts, t, PR(4, ts) if PR else None)

a.label("L_pown")
a(f"    v_mov_b32 v160, {L_CNT}\n    ds_read_b32 v161, v160 offset:{O_TAG}")
fin_addr(144)
a(f"""    s_mul_i32 s52, s{sJ2}, 80
    v_add_u32 v2, s52, v2             ; e (nb = 0)
    v_mul_u32_u24 v3, 5120, v3
    s_xor_b32 s56, s{sT1}, s58
    s_add_u32 s56, s56, s57
    s_and_b32 s56, s56, 31
    s_mul_i32 s56, s56, 81920
    s_mul_i32 s52, s49, {4*5120}
    s_add_u32 s56, s56, s52
    s_add_u32 s56, s56, {WS_G}
    s_cmp_ge_u32 s{sJ2}, 4
    s_cselect_b32 s57, 640, -1
    s_waitcnt lgkmcnt(0)
    v_readfirstlane_b32 s47, v161
    s_cmp_eq_u32 s{sW}, 7
    s_cbranch_scc1 L_sv2""")
if "W" not in SCH:
    a("    s_waitcnt vmcnt(0)")
    lds_add(O_WL, 144, 145)
stamp(4)
lds_spin("s1", O_S1, 1, 144, 145)
a(f"""    s_branch L_k2p
L_sv2:
"""[:-1])
a(f"""    s_lshr_b32 s50, s{sT1}, 2
    s_lshl_b32 s50, s50, 5
    v_min_u32 v144, 26, v0
    v_add_u32 v144, s50, v144
    v_lshlrev_b32 v144, 7, v144
    s_mov_b32 s50, {WS_FLAGS}""")
stamp(2)
if opt["slp"]: a(f"    s_sleep {opt['slp']}")
poll("p2", 144, "s50", 145, "s47", opt["pslp"])
stamp(4)
a(f"""    v_mov_b32 v145, 1
    ds_write_b32 v160, v145 offset:{O_S1}""")
for sl in SREST: own_slot(sl)
a("L_k2p:")
stamp(3); st3(0)
hl = [144, 160, 144, 8, 160, 28]
a(f"    s_setprio {opt['pp']}")
def ph(i): h_load(hl[i], 28, 6, base=26)
ph(0); ph(1)
a("    s_waitcnt vmcnt(4)")
st3(1)
k2_mfma(8, hl[0])
ph(2); ph(3)
a(f"""    s_sub_u32 s50, 7, s{sJ2}
    s_min_u32 s50, s50, s{sJ2}
    s_add_u32 s50, s50, 27
    v_and_b32 v24, 7, v0
    v_lshlrev_b32 v24, 5, v24
    v_bfe_u32 v25, v0, 3, 1
    v_add3_u32 v24, v24, v25, s50
    v_lshlrev_b32 v24, 7, v24
    s_mov_b32 s50, {WS_FLAGS}
    s_waitcnt vmcnt(8)""")
st3(2)
k2_mfma(28, hl[1])
a(f"    buffer_load_dword v25, v24, {S(SWS)}, s50 offen sc1")
ph(4); ph(5)
a(f"    s_setprio {opt['pp2']}\n    s_waitcnt vmcnt(13)")
st3(3)
k2_mfma(48, hl[2])
a(f"""    s_waitcnt vmcnt(8)
    v_cmp_ne_u32 vcc, s47, v25
    s_cbranch_vccz L_pgd""")
poll("pg", 24, "s50", 25, "s47", 2)
for nb in range(5):
    a(f"""    v_add_u32 v144, {16*nb}, v2
    v_xor_b32 v145, s58, v144
    v_add_u32 v145, s57, v145
    v_lshl_add_u32 v145, v145, 4, v3""")
    if nb == 0:
        a("""    v_cmp_eq_u32 vcc, 0, v144
    v_mov_b32 v146, 0x40000000
    s_nop 0
    v_cndmask_b32 v145, v145, v146, vcc""")
    a(f"    buffer_load_dwordx4 {V(48+4*nb)}, v145, {S(SWS)}, s56 offen sc1")
st3(4)
k2_mfma(68, hl[3])
a("    s_waitcnt vmcnt(9)")
st3(5)
k2_mfma(88, hl[4])
part_addr(16)
a(f"""    s_mul_i32 s50, s49, 40960
    s_cmp_eq_u32 s49, 3
    s_cselect_b32 s50, {PBASE[3]}, s50
    s_add_u32 s50, s50, {64*PSTR}
    v_add_u32 v2, s50, v16
    s_lshl_b32 s50, s49, 2
    s_add_u32 s50, s50, {L_CNT + O_PF}""")
lds_spin("pf", "s50", 1, 16, 17)
a("    s_waitcnt vmcnt(0)")
st3(6)
tail(((108, hl[5]), (48, 128)), 16)
a("    s_branch L_final")

a.label("L_cons")
sNH, sSH = 47, 49
a(f"""    s_and_b32 s{sNH}, s{sW}, 1
    s_lshr_b32 s{sSH}, s{sW}, 1
    v_and_b32 v2, 15, v0
    v_lshrrev_b32 v3, 4, v0
    v_bfe_u32 v6, v0, 1, 3
    s_lshl_b32 s50, s{sSH}, 14
    v_lshlrev_b32 v1, 7, v2
    v_add_u32 v1, s50, v1
    v_xor_b32 v7, v3, v6
    v_lshl_add_u32 v8, v7, 4, v1
    v_xor_b32 v9, 64, v8
    s_add_u32 s52, s{sW}, 1
    s_and_b32 s52, s52, 2
    s_cmp_eq_u32 s52, 0
    s_cbranch_scc1 L_ch3
    v_mul_u32_u24 v6, 1280, v3
    v_lshl_add_u32 v6, v2, 4, v6
    s_sub_u32 s52, s{sW}, 1
    s_lshl_b32 s50, s{sNT}, 6
    s_lshl_b32 s51, s52, 5
    s_add_u32 s50, s50, s51
    s_lshl_b32 s51, s{sM}, 2
    s_add_u32 s50, s50, s51
    s_mul_i32 s50, s50, 1280
    s_waitcnt lgkmcnt(0)""")
mk_x()
for j in range(5): a(f"    buffer_load_dwordx4 {V(16+4*j)}, v6, {S(SX)}, s50 offen offset:{j*256}")
mk_ws()
for r in range(128, 256): a(f"    v_mov_b32 v{r}, 0")
for r in range(40, 48): a(f"    v_mov_b32 v{r}, 0")
a(f"""    s_lshl_b32 s50, s{sM}, 11
    s_lshl_b32 s51, s52, 10
    s_add_u32 s50, s50, s51
    s_lshl_b32 s51, s{sNT}, 3
    s_add_u32 s50, s50, s51
    v_lshlrev_b32 v4, 8, v3
    s_waitcnt vmcnt(0)
    v_lshlrev_b32 v36, 16, v16
    s_nop 1
    v_mov_b32_dpp v36, v36 row_newbcast:0 row_mask:0xf bank_mask:0xf""")
for g in range(0, 20, 4):
    for i in range(g, g + 4): a(f"    v_lshlrev_b32 v{48+2*(i&3)}, 16, v{16+i}\n    v_and_b32 v{49+2*(i&3)}, 0xffff0000, v{16+i}")
    for i in range(g, g + 4): a(f"    v_pk_add_f32 {P2(48+2*(i&3))}, {P2(48+2*(i&3))}, v[36:37] op_sel_hi:[1,0] neg_lo:[0,1] neg_hi:[0,1]")
    for i in range(g, g + 4): a(f"    v_pk_add_f32 {P2(40+2*(i&1))}, {P2(40+2*(i&1))}, {P2(48+2*(i&3))}")
    for i in range(g, g + 4): a(f"    v_pk_fma_f32 {P2(44+2*(i&1))}, {P2(48+2*(i&3))}, {P2(48+2*(i&3))}, {P2(44+2*(i&1))}")
a("""    v_pk_add_f32 v[40:41], v[40:41], v[42:43]
    v_pk_add_f32 v[44:45], v[44:45], v[46:47]
    v_add_f32 v40, v40, v41
    v_add_f32 v44, v44, v45""")
for mode in ("quad_perm:[1,0,3,2]", "quad_perm:[2,3,0,1]", "row_half_mirror", "row_mirror"):
    a("    s_nop 1")
    for r in (40, 44): a(f"    v_add_f32_dpp v{r}, v{r}, v{r} {mode} row_mask:0xf bank_mask:0xf")
a(f"""    v_mul_f32 v40, {f2u(1/640):#x}, v40
    v_mov_b32 v39, {f2u(1e-5):#x}
    v_fmac_f32 v39, {f2u(1/640):#x}, v44
    v_add_f32 v38, v40, v36
    v_fma_f32 v39, -v40, v40, v39
    v_max_f32 v39, {f2u(1e-5):#x}, v39
    s_mov_b32 exec_lo, 0x00010001
    s_mov_b32 exec_hi, 0x00010001
    buffer_store_dwordx2 v[38:39], v4, {S(SWS)}, s50 offen sc1
    s_mov_b64 exec, -1
    s_branch L_chd
L_ch3:
    s_waitcnt lgkmcnt(0)""")
if opt["tch"] & 1:
    a(f"    s_cmp_lg_u32 s{sW}, 0\n    s_cbranch_scc1 L_nt")
    w_touch(1, opt["tch"] & 2, 6, 127, 50)
    a("L_nt:")
mk_ws()
for r in range(128, 256): a(f"    v_mov_b32 v{r}, 0")
a(f"""L_chd:
    s_mov_b32 s60, 10
    s_mov_b32 s61, 0
    v_mov_b32 v120, {L_CNT}
    v_mov_b32 v121, 1
    s_cmp_eq_u32 s{sDFT}, 1
    s_cbranch_scc1 L_cdft""")

XF = 16
WF = [48, 64]
def acc(i, st): return 128 + 16 * st + 4 * i
def xr(st, kk): return f"    ds_read_b128 {V(XF+4*st)}, v{8+kk} offset:{st*2048}"
def wr(dft, kk):
    b = WF[kk]
    if dft: return [[f"    ds_read_b128 {V(b+4*i)}, v{12+kk} offset:{(i>>1)*8192+(i&1)*2048}"] for i in range(4)]
    return [[f"    ds_read_b64_tr_b16 {P2(b+4*i)}, v{12+(i&1)} offset:{kk*4096+(i>>1)*8192}",
             f"    ds_read_b64_tr_b16 {P2(b+4*i+2)}, v{12+(i&1)} offset:{kk*4096+(i>>1)*8192+512}"] for i in range(4)]
def main_loop(dft, tag):
    nw = 1 if dft else 2
    stamp(8)
    bar("B_-1")
    stamp(0)
    W = wr(dft, 0)
    a(xr(0, 0)); a(xr(1, 0))
    for st in range(2, 8):
        a(xr(st, 0))
        if st < 6:
            for r in W[st - 2]: a(r)
    a(".p2align 3")
    a.label(f"L_{tag}_loop")
    for kk in range(2):
        W = wr(dft, 1 - kk)
        for st in range(8):
            if st == 0: a(f"    s_waitcnt lgkmcnt({2 if kk == 0 else 5})")
            if st == 4 and kk == 0: a(f"    s_waitcnt lgkmcnt({4 + 4*nw})")
            if kk == 1 and st == 2:
                a(f"""    s_cmp_le_u32 s60, 2
    s_cbranch_scc1 L_{tag}_rel
    s_waitcnt vmcnt(0) lgkmcnt(0)
    s_barrier
L_{tag}_reld:""")
                a(xr(0, 0)); a(xr(1, 0))
            ex = []
            if kk == 0: ex = [xr(st, 1)] + (W[st] if st < 4 else [])
            elif st >= 2: ex = [xr(st, 0)] + (W[st - 2] if st < 6 else [])
            for i in range(4):
                w, x = WF[kk] + 4 * i, XF + 4 * st
                i2, st2 = i, st
                if opt["ex"] == 6: i2, st2 = st & 3, (st & 4) + i
                if opt["ex"] == 7: i2, st2 = (i if st % 2 == 0 else 3 - i), st
                if opt["ex"] == 8: i2, st2 = (st >> 1), 4 * (st & 1) + i
                w, x = WF[kk] + 4 * i2, XF + 4 * st2
                if opt["ex"] == 9: a(mfma(acc(i2, st2), x, w))
                else: a(mfma(acc(i2, st2), x, w) if dft else mfma(acc(i2, st2), w, x))
                if i == 3: a(ex[0]) if ex else None
                elif i < len(ex) - 1: a(ex[1 + i])
            if kk == 0 and st == 7: a(f"    ds_read_b32 v122, v120 offset:{O_LAND}")
            if kk == 1 and st == 0:
                a(f"""    s_add_u32 s61, s61, 1
    s_cmp_eq_u32 s61, 3
    s_cselect_b32 s62, {-3*STG}, 0
    s_cselect_b32 s61, 0, s61
    s_add_u32 s62, s62, {STG}""")
            if kk == 1 and st == 1:
                for r in (8, 9, 12, 13): a(f"    v_add_u32 v{r}, s62, v{r}")
    a(f"""    s_sub_u32 s60, s60, 1
    s_cmp_lg_u32 s60, {1 if opt['fin'] and not dft else 0}
    s_cbranch_scc1 L_{tag}_loop
    s_branch L_{tag}_epi
L_{tag}_rel:
    s_mov_b32 s62, 0
    s_waitcnt lgkmcnt(0)
    s_mov_b64 exec, 1
    ds_add_u32 v120, v121 offset:{O_REL}
    s_mov_b64 exec, -1
L_{tag}_land:
    v_cmp_gt_u32 vcc, 3, v122
    s_cbranch_vccz L_{tag}_reld
    ds_read_b32 v122, v120 offset:{O_LAND}
    s_add_u32 s62, s62, 1
    s_waitcnt lgkmcnt(0)
    s_cmp_lt_u32 s62, 0x400000
    s_cbranch_scc1 L_{tag}_land
    s_branch L_{tag}_reld
L_{tag}_epi:""")
    stamp(1)
    if opt["fin"] and not dft:
        for r in wr(False, 1):
            for q in r: a(q)
        a(f"    ds_read_b128 {V(80)}, v9 offset:0")
        a("    s_waitcnt lgkmcnt(11)")
        for i in range(4): a(mfma(acc(i, 0), WF[0] + 4 * i, XF))
    a("    s_setprio 3\n    s_mov_b32 s60, 0")
    a.label(f"L_{tag}_rdy")
    a(f"    ds_read_b32 v122, v120 offset:{O_RDY}\n    ds_read_b32 v123, v120 offset:{O_TAG}")
def rdy_check(tag, n):
    a(f"""    s_waitcnt lgkmcnt({n})
    v_cmp_eq_u32 vcc, 0, v122
    s_add_u32 s60, s60, 1
    s_cbranch_vccz L_{tag}_go
    s_cmp_lt_u32 s60, 0x400000
    s_cbranch_scc1 L_{tag}_rdy
L_{tag}_go:""")

a(f"""    v_bfe_u32 v6, v0, 2, 2            ; rho
    v_lshl_add_u32 v7, v3, 3, v6
    v_lshlrev_b32 v12, 7, v7
    v_and_b32 v7, 3, v0
    v_lshl_add_u32 v12, v7, 3, v12
    v_lshrrev_b32 v6, 1, v6
    v_and_b32 v7, 1, v3
    v_lshl_add_u32 v6, v7, 1, v6
    s_lshl_b32 s50, s{sNH}, 1
    v_xor_b32 v6, s50, v6
    v_lshl_add_u32 v12, v6, 5, v12
    v_add_u32 v12, 32768, v12
    v_xor_b32 v13, 32, v12
    s_lshl_b32 s50, s{sNH}, 7
    s_add_u32 s50, s50, {L_CS}
    v_lshl_add_u32 v4, v3, 4, s50
    s_lshl_b32 s51, s{sSH}, 11
    s_add_u32 s51, s51, {L_STAT}
    v_lshl_add_u32 v5, v2, 4, s51
    v_lshlrev_b32 v6, 4, v0
    s_lshl_b32 s50, s{sNT}, 1
    s_add_u32 s50, s50, s{sNH}
    s_lshl_b32 s50, s50, 17
    s_lshl_b32 s51, s{sM}, 14
    s_add_u32 s50, s50, s51
    s_lshl_b32 s51, s{sSH}, 11
    s_add_u32 s50, s50, s51
    s_add_u32 s50, s50, {WS_H}""")
main_loop(False, "cf")
if opt["fin"]:
    CG, RC, Z = 96, 112, 88
    for i in range(4): a(f"    ds_read_b128 {V(CG+4*i)}, v4 offset:{(i>>1)*256+(i&1)*64}")
    a(f"    ds_read_b128 {V(RC)}, v5")
    rdy_check("cf", 0)
    def mf(st, kk): return [mfma(acc(i, st), WF[kk] + 4 * i, (XF + 4 * st) if kk == 0 else 80 + 4 * (st & 1)) for i in range(4)]
    a(f"    ds_read_b128 {V(84)}, v9 offset:2048")
    for m_ in mf(0, 1): a(m_)
    for st in range(8):
        c0, c1 = P2(RC + 4 * (st & 1)), P2(RC + 2 + 4 * (st & 1))
        A = lambda i: P2(acc(0, st) + 2 * i)
        U = lambda i: P2(acc(2, st) + 2 * i)
        ZZ = lambda i: P2(Z + 2 * i)
        nx = st + 1
        a("    s_waitcnt lgkmcnt(0)")
        if nx < 8: a(f"    ds_read_b128 {V(RC+4*(nx&1))}, v5 offset:{nx*256}")
        if nx < 7: a(f"    ds_read_b128 {V(80+4*(st&1))}, v9 offset:{(nx+1)*2048}")
        if nx == 7:
            a(f"    s_mov_b64 exec, 1\n    ds_add_u32 v120, v121 offset:{O_REL}\n    s_mov_b64 exec, -1")
        if st == 0: a("    s_nop 4")
        for i in range(4): a(f"    v_pk_fma_f32 {A(i)}, {P2(CG+2*i)}, {c0}, {A(i)} op_sel_hi:[1,0,1]")
        for i in range(4): a(f"    v_pk_mul_f32 {ZZ(i)}, {A(i)}, {A(i)}")
        for i in range(4): a(f"    v_pk_fma_f32 {ZZ(i)}, {ZZ(i)}, {c1}, {c0} op_sel:[0,0,1] op_sel_hi:[1,0,1]")
        for i in range(4): a(f"    v_pk_mul_f32 {ZZ(i)}, {ZZ(i)}, {A(i)}")
        for i in range(4): a(f"    v_pk_fma_f32 {U(i)}, {P2(CG+8+2*i)}, {c0}, {U(i)} op_sel_hi:[1,0,1]")
        for i in range(4): a(f"    v_pk_mul_f32 {U(i)}, {U(i)}, {A(i)}")
        m0_ = mf(nx, 0) if nx < 8 else [None] * 4
        m1_ = mf(nx, 1) if nx < 8 else [None] * 4
        for i in range(4):
            if m0_[i]: a(m0_[i])
            a(f"    v_exp_f32 v{Z+2*i}, v{Z+2*i}\n    v_exp_f32 v{Z+2*i+1}, v{Z+2*i+1}")
        for i in range(8): a(f"    v_fma_f32 v{Z+i}, v{Z+i}, v{RC+3+4*(st&1)}, v{RC+3+4*(st&1)}")
        for i in range(4):
            if m1_[i]: a(m1_[i])
            a(f"    v_rcp_f32 v{Z+2*i}, v{Z+2*i}\n    v_rcp_f32 v{Z+2*i+1}, v{Z+2*i+1}")
        for i in range(4): a(f"    v_pk_mul_f32 {U(i)}, {U(i)}, {ZZ(i)}")
        for i in range(4): a(f"    v_cvt_pk_bf16_f32 v{acc(0,st)+i}, v{acc(2,st)+2*i}, v{acc(2,st)+2*i+1}")
        a(f"    buffer_store_dwordx4 {V(acc(0,st))}, v6, {S(SWS)}, s50 offen offset:{(st&1)*1024} sc1")
        if st & 1 and st < 7: a("    s_add_u32 s50, s50, 4096")
else:
    a(f"    ds_read_b128 {V(32)}, v5")
    for i in range(4): a(f"    ds_read_b128 {V(16+4*i)}, v4 offset:{(i>>1)*256+(i&1)*64}")
    for st in range(1, 8): a(f"    ds_read_b128 {V(32+4*st)}, v5 offset:{st*256}")
    rdy_check("cf", 7)
    for st in range(8):
        c0, c1 = P2(32 + 4 * st), P2(34 + 4 * st)
        if st == 1: a("    s_waitcnt lgkmcnt(0)")
        ob = 88 + 4 * (st & 1)
        TG = lambda i: 64 + 2 * i
        TU = lambda i: 72 + 2 * i
        Z = lambda i: 80 + 2 * i
        for i in range(4): a(f"    v_pk_fma_f32 {P2(TG(i))}, {P2(16+2*i)}, {c0}, {P2(acc(0,st)+2*i)} op_sel_hi:[1,0,1]")
        for i in range(4): a(f"    v_pk_mul_f32 {P2(Z(i))}, {P2(TG(i))}, {P2(TG(i))}")
        for i in range(4): a(f"    v_pk_fma_f32 {P2(Z(i))}, {P2(Z(i))}, {c1}, {c0} op_sel:[0,0,1] op_sel_hi:[1,0,1]")
        for i in range(4): a(f"    v_pk_mul_f32 {P2(Z(i))}, {P2(Z(i))}, {P2(TG(i))}")
        for i in range(4): a(f"    v_exp_f32 v{Z(i)}, v{Z(i)}\n    v_exp_f32 v{Z(i)+1}, v{Z(i)+1}")
        for i in range(4): a(f"    v_pk_fma_f32 {P2(TU(i))}, {P2(24+2*i)}, {c0}, {P2(acc(2,st)+2*i)} op_sel_hi:[1,0,1]")
        for i in range(4): a(f"    v_pk_fma_f32 {P2(Z(i))}, {P2(Z(i))}, {c1}, {c1} op_sel:[0,1,1] op_sel_hi:[1,1,1]")
        for i in range(4): a(f"    v_rcp_f32 v{Z(i)}, v{Z(i)}\n    v_rcp_f32 v{Z(i)+1}, v{Z(i)+1}")
        for i in range(4): a(f"    v_pk_mul_f32 {P2(TU(i))}, {P2(TU(i))}, {P2(TG(i))}")
        for i in range(4): a(f"    v_pk_mul_f32 {P2(TU(i))}, {P2(TU(i))}, {P2(Z(i))}")
        for i in range(4): a(f"    v_cvt_pk_bf16_f32 v{ob+i}, v{TU(i)}, v{TU(i)+1}")
        a(f"    buffer_store_dwordx4 {V(ob)}, v6, {S(SWS)}, s50 offen offset:{(st&1)*1024} sc1")
        if st & 1 and st < 7: a("    s_add_u32 s50, s50, 4096")
a("    s_branch L_cdone")

a.label("L_cdft")
a(f"""    s_lshl_b32 s50, s{sNH}, 12
    s_lshl_b32 s51, s{sSH}, 14
    s_sub_u32 s50, s50, s51
    s_add_u32 s50, s50, 32768
    v_add_u32 v12, s50, v8
    v_add_u32 v13, s50, v9
    s_lshl_b32 s51, s{sSH}, 9
    s_add_u32 s51, s51, {L_STAT}
    v_lshl_add_u32 v1, v3, 4, s51
    s_lshl_b32 s50, s{sNH}, 7
    s_add_u32 s50, s50, {L_CS}
    v_lshl_add_u32 v7, v2, 2, s50
    v_mul_u32_u24 v6, {4*81920}, v3
    v_lshl_add_u32 v6, v2, 4, v6
    s_lshl_b32 s50, s{sSH}, 3
    s_add_u32 s50, s50, s{sM}
    s_mul_i32 s50, s50, 5120
    s_sub_u32 s51, s{sNT}, 27
    s_lshl_b32 s51, s51, 1
    s_add_u32 s51, s51, s{sNH}
    s_lshl_b32 s51, s51, 9
    s_add_u32 s50, s50, s51
    s_add_u32 s50, s50, {WS_G}
    ; 32-point DFT fragments (row t1 = 16 th + (l & 15), s1 = 16 b + 4 (l >> 4) + 0..3): cos v80.., sin v88.., -cos v96..
    v_lshlrev_b32 v104, 2, v3""")
for th in range(2):
    a(f"    v_add_u32 v105, {16*th}, v2")
    for b in range(2):
        a(f"""    v_add_u32 v106, {16*b}, v104
    v_mul_u32_u24 v108, v106, v105
    v_add_u32 v109, v108, v105
    v_add_u32 v110, v109, v105
    v_add_u32 v111, v110, v105""")
        trig4(108, 80 + 4 * th + 2 * b, 88 + 4 * th + 2 * b, 31, 1 / 32, False)
for r in range(8): a(f"    v_xor_b32 v{96+r}, 0x80008000, v{80+r}")
main_loop(True, "cd")
for i in range(4): a(f"    ds_read_b32 v{8+i}, v7 offset:{(i>>1)*256+(i&1)*64}")
def rd_rows(st):
    a(f"    ds_read_b128 {V(16+4*st)}, v1 offset:{st*64}\n    ds_read_b128 {V(48+4*st)}, v1 offset:{1024+st*64}")
for st in range(4): rd_rows(st)
rdy_check("cd", 0)
for st in range(4, 8): rd_rows(st)
for et in range(2):
    for c in range(4):
        if et == 0 and c == 2: a("    s_waitcnt lgkmcnt(0)")
        for mat in range(2):
            i = 2 * mat + et
            cs = P2(8 + (i & ~1)); sel = "op_sel_hi:[1,0]" if (i & 1) == 0 else "op_sel:[0,1] op_sel_hi:[1,1]"
            q = [(st, p) for st in (2 * c, 2 * c + 1) for p in range(2)]
            for n, (st, p) in enumerate(q): a(f"    v_pk_mul_f32 {P2(104+2*n)}, {P2(48+4*st+2*p)}, {cs} {sel}")
            for n, (st, p) in enumerate(q): a(f"    v_pk_fma_f32 {P2(104+2*n)}, {P2(acc(i,st)+2*p)}, {P2(16+4*st+2*p)}, {P2(104+2*n)}")
            for n, (st, p) in enumerate(q): a(f"    v_cvt_pk_bf16_f32 v{acc(i,2*c)+n}, v{104+2*n}, v{105+2*n}")
def dreg(rnd, c, im): return acc(2 * im + (rnd & 1), 2 * c + 1)
def g_store(rnd, r):
    et, th = rnd >> 1, rnd & 1
    ob = 104 + 4 * (r & 1)
    return [f"    v_cvt_pk_bf16_f32 v{ob}, v{dreg(rnd,0,0)+r}, v{dreg(rnd,1,0)+r}",
            f"    v_cvt_pk_bf16_f32 v{ob+1}, v{dreg(rnd,2,0)+r}, v{dreg(rnd,3,0)+r}",
            f"    v_cvt_pk_bf16_f32 v{ob+2}, v{dreg(rnd,0,1)+r}, v{dreg(rnd,1,1)+r}",
            f"    v_cvt_pk_bf16_f32 v{ob+3}, v{dreg(rnd,2,1)+r}, v{dreg(rnd,3,1)+r}",
            f"    s_add_u32 s51, s50, {(16*th + r)*81920 + et*256}\n    buffer_store_dwordx4 {V(ob)}, v6, {S(SWS)}, s51 offen sc1"]
a("    s_nop 1")
for rnd in range(4):
    et, th = rnd >> 1, rnd & 1
    mf = []
    for c in range(4):
        mf.append(mfma(dreg(rnd, c, 0), 80 + 4 * th, acc(et, 2 * c), "0"))
        mf.append(mfma(dreg(rnd, c, 1), 88 + 4 * th, acc(et, 2 * c), "0"))
    for c in range(4):
        mf.append(mfma(dreg(rnd, c, 0), 88 + 4 * th, acc(2 + et, 2 * c)))
        mf.append(mfma(dreg(rnd, c, 1), 96 + 4 * th, acc(2 + et, 2 * c)))
    fill = sum((g_store(rnd - 1, r) for r in range(4)), []) if rnd else []
    for n, m_ in enumerate(mf):
        a(m_)
        if n >= 8 and fill:
            for o in fill[:3]: a(o)
            fill = fill[3:]
    for o in fill: a(o)
a("    s_nop 7")
for r in range(4):
    for o in g_store(3, r): a(o)

a.label("L_cdone")
stamp(2)
a(f"""    s_lshl_b32 s46, s{sM}, 5
    s_add_u32 s46, s46, s{sNT}
    s_lshl_b32 s46, s46, 7
    s_add_u32 s46, s46, {WS_FLAGS}
    v_mov_b32 v124, 0
    s_waitcnt vmcnt(0)
    s_mov_b64 exec, 1
    ds_add_rtn_u32 v122, v120, v121
    s_waitcnt lgkmcnt(0)
    v_cmp_eq_u32 vcc, 3, v122
    s_cbranch_vccz L_nofl
    buffer_store_dword v123, v124, {S(SWS)}, s46 offen sc1
L_nofl:
    s_mov_b64 exec, -1""")
stamp(3)
a(f"    s_setprio {opt['cp']}")
fin_addr(8)
for r in range(ACC2, 256): a(f"    v_mov_b32 v{r}, 0")
a(f"""    v_lshlrev_b32 v1, 4, v0
    s_lshl_b32 s50, s{sW}, 3
    s_cmp_eq_u32 s{sW}, 3
    s_cselect_b32 s50, 23, s50
    s_mul_i32 s55, s50, 5120
    v_add_u32 v3, s55, v1
    s_lshl_b32 s61, s50, 17
    s_lshl_b32 s62, s{sT1}, 12
    s_add_u32 s61, s61, s62
    s_add_u32 s61, s61, {WS_H}
    s_cmp_lt_u32 s{sW}, 2
    s_cselect_b32 s62, 8, 7
    s_cmp_ge_u32 s39, s62
    s_cselect_b32 s63, 0, s39""")
if not opt["rot2"]: a("    s_mov_b32 s63, 0")
lds_spin("cs1", O_S1, 1, 8, 9)
stamp(4); st3(0)
LA = opt['la']
def c_hload(st):
    h_load(48 + 16 * st, 63, "s62", oob=(f"    s_cmp_lt_u32 s{sW}, 2\n    s_cselect_b32 s52, s52, 0x40000000" if st == 7 else None))
a("    s_mov_b32 s58, s63")
for st in range(opt["h1st"] or LA): c_hload(st)
lds_spin("cwl", O_WL, 3, 8, 9)
def w_reads(st):
    b = 8 + 20 * (st & 1)
    a("    s_mul_i32 s52, s58, 5120\n    v_add_u32 v2, s52, v3")
    rot_next(58, "s62")
    for nb in range(5): a(f"    ds_read_b128 {V(b+4*nb)}, v2 offset:{nb*1024}")
w_reads(0)
for st in range(opt["h1st"] or LA, LA): c_hload(st)
for st in range(6):
    w_reads(st + 1)
    a(f"    s_waitcnt vmcnt({4 * min(LA - 1, 7 - st)}) lgkmcnt(5)")
    if PROF == 3: a("    s_waitcnt lgkmcnt(0)"); st3(1 + st)
    k2_mfma(8 + 20 * (st & 1), 48 + 16 * st)
    if st + LA < 8: c_hload(st + LA)
w_reads(7)
part_addr(56)
a(f"""    s_lshl_b32 s50, s{sW}, 2
    s_add_u32 s50, s50, {L_CNT + O_PF}
    v_mov_b32 v57, s50
    v_mov_b32 v58, 1
    s_waitcnt vmcnt(0) lgkmcnt(0)
    ds_write_b32 v57, v58
    v_add_u32 v2, s55, v56""")
tail(((8, 144), (28, 160)), 60)
st3(8)

a(f"""    s_mov_b32 s50, 3277
    s_lshl_b32 s51, s{sW}, 6
    s_add_u32 s51, s51, 1024
    v_add_u32 v64, s51, v0""")
item(64, 8, 9, 65)
a.label("L_final")
a(f"""    v_add_u32 v16, 81920, v4
    v_add_u32 v17, 81920, v5
    v_add_u32 v18, 81920, v8
    s_waitcnt lgkmcnt(0)""")
bar("R2")
stamp(6)
OST = ["", " sc1", " nt"][opt["ost"]]
def rd_item(va, vb, dst):
    for w in range(8):
        b = PBASE[w & 3] + (w >> 2) * 64 * PSTR
        r, o = (va, b) if b < 65536 else (vb, b - 81920)
        a(f"    ds_read_b64 {P2(dst+2*w)}, v{r} offset:{o}")
def sum_item(dst, t, vg):
    for w in range(0, 8, 2):
        for k in range(2):
            u = t + 4 * k if w == 0 else 20 + 4 * k
            for i in range(2): a(f"    v_lshlrev_b32 v{u+2*i}, 16, v{dst+2*(w+k)+i}\n    v_and_b32 v{u+1+2*i}, 0xffff0000, v{dst+2*(w+k)+i}")
        for k in range(4 if w else 0): a(f"    v_pk_add_f32 {P2(t+2*k)}, {P2(t+2*k)}, {P2(20+2*k)}")
    a(f"    v_pk_add_f32 {P2(t)}, {P2(t)}, {P2(t+4)}\n    v_pk_add_f32 {P2(t+2)}, {P2(t+2)}, {P2(t+6)}")
    a(f"    v_cvt_pk_bf16_f32 v{t+8}, v{t}, v{t+1}\n    v_cvt_pk_bf16_f32 v{t+9}, v{t+2}, v{t+3}")
    a(f"    buffer_store_dwordx2 {P2(t+8)}, v{vg}, {S(SOUT)}, s59 offen{OST}")
rd_item(4, 16, 64)
rd_item(5, 17, 80)
a(f"""    s_cmp_ge_u32 s{sW}, 4
    s_cbranch_scc1 L_fin2
    s_waitcnt lgkmcnt(8)""")
rd_item(8, 18, 96)
sum_item(64, 32, 6)
a("    s_waitcnt lgkmcnt(8)")
sum_item(80, 44, 7)
a("    s_waitcnt lgkmcnt(0)")
sum_item(96, 32, 9)
a("    s_branch L_fin3\nL_fin2:\n    s_waitcnt lgkmcnt(8)")
sum_item(64, 32, 6)
a("    s_waitcnt lgkmcnt(0)")
sum_item(80, 44, 7)
a("L_fin3:")
stamp(7)
a(f"""    s_cmp_lg_u32 s2, 0
    s_cbranch_scc1 L_noep
    s_cmp_lg_u32 s{sW}, 7
    s_cbranch_scc1 L_noep
    s_mov_b64 exec, -1
    v_lshlrev_b32 v8, 4, v0
    s_mov_b32 s50, {WS_EF}
    s_mov_b32 s60, 0
L_ep:
    buffer_load_dwordx4 v[12:15], v8, {S(SWS)}, s50 offen sc1
    s_add_u32 s60, s60, 1
    s_waitcnt vmcnt(0)
    v_xor_b32 v12, s47, v12
    v_xor_b32 v13, s47, v13
    v_xor_b32 v14, s47, v14
    v_xor_b32 v15, s47, v15
    v_or3_b32 v12, v12, v13, v14
    v_or_b32 v12, v12, v15
    v_cmp_ne_u32 vcc, 0, v12
    s_cbranch_vccz L_epd
    s_sleep 4
    s_cmp_lt_u32 s60, 0x40000
    s_cbranch_scc1 L_ep
L_epd:
    v_mov_b32 v12, s47
    v_mov_b32 v13, 0
    s_mov_b32 s50, {WS_EPOCH}
    s_mov_b64 exec, 1
    buffer_store_dword v12, v13, {S(SWS)}, s50 offen sc1
L_noep:""")
if PROF:
    mk_ws()
    a(f"""    s_memrealtime s[88:89]
    s_waitcnt lgkmcnt(0)
    s_mov_b32 s99, s88
    s_lshl_b32 s50, s2, 3
    s_add_u32 s50, s50, s{sW}
    s_lshl_b32 s50, s50, 6
    s_add_u32 s50, s50, {WS_PROF}
    v_mov_b32 v7, 0
    s_mov_b64 exec, 1""")
    for k in range(10):
        a(f"    v_mov_b32 v6, s{90+k}\n    buffer_store_dword v6, v7, {S(SWS)}, s50 offen offset:{4*k}")
a.label("L_end")
a("    s_endpgm")
a('.section .rodata,"a"')
a(kd(NAME, 256, 102, 256))
open(sys.argv[1], "w").write(a.text())
```

```python
import sys, math, struct
from asmlib import *

NAME = "parallel_sum__spectral_fnet__geglu_ffn__prompt_kernel"
opt = dict(prof=0, xo=2, irot=1, rot2=1, la=3, nodma=0, wrot=1, thr=3, pslp=3, touch=0, pp=0, cp=0, slp=0, nt=0, ost=0, sch=8, ssch=1, pp2=0, h1st=0, ex=0, fin=1, map2=0, cpf=1, lnd=3, el=0, il=1, il2=1, rmap=0, es=0, wdnt=1, wdt=0, tch=0, sst=0)
for a_ in sys.argv[2:]:
    k, v = a_.split("="); assert k in opt, k; opt[k] = int(v)
PROF = opt["prof"]

WS_STATS, WS_FLAGS, WS_WF, WS_CSP, WS_H, WS_G = 0, 0x8000, 0x10000, 0x300000, 0x400000, 0xC00000
WS_EF, WS_F2, WS_EPOCH = 0x340000, 0x348000, 0x4800
WS_SIZE = 0x1000000
WS_PROF = 0xF80000
WFT = 54 * 5120
STG = 49152
L_SCR, L_STAT, L_CS, L_CNT = 147456, 157696, 161792, 162304
O_CNT, O_REL, O_RDY, O_LAND, O_WOK, O_TAG, O_S1, O_WL, O_PF = 0, 4, 8, 12, 16, 20, 24, 28, 32
PSTR = 176
K1C = 2.0 * math.sqrt(2.0 / math.pi) * math.log2(math.e)
K2C = K1C * 0.044715
def f2u(x): return struct.unpack("<I", struct.pack("<f", x))[0]

a = Asm()
HDR = open("parallel_sum__spectral_fnet__geglu_ffn__prompt.s.ref").read().split("; Override launch")[0]
a(HDR.rstrip())
a("; @launch grid=(256,1,1) block=(512,1,1) lds=163840")
a('.amdgcn_target "amdgcn-amd-amdhsa--gfx950"\n.text')
kernel_head(a, NAME)

SX, SWA, SWB, SWS, SWD, SOUT, SDBG = 4, 8, 12, 16, 20, 32, 36
sM, sNT, sW, sDFT, sT1, sJ2, sMI = 40, 41, 42, 43, 44, 45, 48
P_X, P_HRE, P_HIM, P_WG, P_WU, P_WD, P_OUT, P_DBG, P_WS = 64, 70, 72, 76, 78, 80, 82, 84, 86
def S(b): return f"s[{b}:{b+3}]"
def V(b, n=4): return f"v[{b}:{b+n-1}]"
def P2(r): return f"v[{r}:{r+1}]"
def mk_x(): srd(a, SX, P_X, 2621440)
def mk_ws(): srd(a, SWS, P_WS, WS_SIZE)
def mk_wd(): srd(a, SWD, P_WD, 1728 * 1280)
def mk_out(): srd(a, SOUT, P_OUT, 2621440)
def mk_dbg(): srd(a, SDBG, P_DBG, 256)
def st_txt(k): return f"    s_memtime s[88:89]\n    s_waitcnt lgkmcnt(0)\n    s_sub_u32 s{90+k}, s88, s100"
def stamp(k):
    if PROF == 1: a(st_txt(k))
    if PROF == 4 or (PROF == 6 and k == 7): a(f"    s_memrealtime s[88:89]\n    s_waitcnt lgkmcnt(0)\n    s_sub_u32 s{90+k}, s88, s100")
def st3(k):
    if PROF == 3: a(st_txt(k))
def bar(name, k=None):
    a(f"    s_barrier            ; {name}")
    if PROF == 2 and k is not None: a(st_txt(k))
def mfma(d, x, y, c=None):
    if opt["ex"] == 21 and d >= 176 and K2ON[0]: return "    s_nop 0"
    return f"    v_mfma_f32_16x16x32_bf16 {V(d)}, {V(x)}, {V(y)}, {V(d) if c is None else c}"
ACC2 = 176
K2ON = [False]
_u = [0]
def uniq():
    _u[0] += 1
    return _u[0]
PBASE = [0, 40960, 81920, 117760]
def lds_spin(tag, off, target, va, vd):
    if isinstance(off, int): a(f"    v_mov_b32 v{va}, {L_CNT + off}")
    else: a(f"    v_mov_b32 v{va}, {off}")
    a(f"""    s_mov_b32 s60, 0
L_{tag}:
    ds_read_b32 v{vd}, v{va}
    s_add_u32 s60, s60, 1
    s_waitcnt lgkmcnt(0)
    v_cmp_gt_u32 vcc, {target}, v{vd}
    s_cbranch_vccz L_{tag}d
    s_sleep 1
    s_cmp_lt_u32 s60, 0x400000
    s_cbranch_scc1 L_{tag}
L_{tag}d:""")
def lds_add(off, va, vd):
    a(f"""    v_mov_b32 v{va}, {L_CNT + off}
    v_mov_b32 v{vd}, 1
    s_mov_b64 exec, 1
    ds_add_u32 v{va}, v{vd}
    s_mov_b64 exec, -1""")
def poll(tag, vaddr, soff, vd, cmp, slp):
    a(f"""    s_mov_b32 s60, 0
L_{tag}:
    buffer_load_dword v{vd}, v{vaddr}, {S(SWS)}, {soff} offen sc1
    s_add_u32 s60, s60, 1
    s_waitcnt vmcnt(0)
    v_cmp_ne_u32 vcc, {cmp}, v{vd}
    s_cbranch_vccz L_{tag}d
    s_sleep {slp}
    s_cmp_lt_u32 s60, 0x40000
    s_cbranch_scc1 L_{tag}
L_{tag}d:""")
def rot_next(c, n):
    a(f"    s_add_u32 s{c}, s{c}, 1\n    s_cmp_eq_u32 s{c}, {n}\n    s_cselect_b32 s{c}, 0, s{c}")
def k2_setup():
    a(f"""    v_lshlrev_b32 v1, 4, v0
    s_mul_i32 s24, s{sJ2}, {WFT}
    s_add_u32 s24, s24, {WS_WF}
    s_mul_i32 s28, s39, {3 if opt['map2'] else 4}
    s_lshr_b32 s28, s28, 2
    s_add_u32 s28, s28, s29
    s_cmp_ge_u32 s28, 6
    s_cselect_b32 s30, 6, 0
    s_sub_u32 s28, s28, s30""")
    if not opt["rot2"]: a("    s_mov_b32 s28, 0")
    a(f"""    s_mul_i32 s26, s49, 6
    s_add_u32 s26, s26, 30
    s_mul_i32 s25, s26, 5120
    s_add_u32 s25, s25, s24
    s_lshl_b32 s26, s26, 17
    s_lshl_b32 s27, s{sT1}, 12
    s_add_u32 s26, s26, s27
    s_add_u32 s26, s26, {WS_H}
    s_mov_b32 s27, s28""")
def own_slot(sl):
    a("    s_mul_i32 s30, s27, 5120\n    s_add_u32 s30, s30, s25\n    s_add_u32 s31, s30, 4096")
    for nb in range(5):
        if nb < 4: a(f"    buffer_load_dwordx4 {V(8+20*sl+4*nb)}, v1, {S(SWS)}, s30 offen offset:{nb*1024} sc1")
        else: a(f"    buffer_load_dwordx4 {V(8+20*sl+4*nb)}, v1, {S(SWS)}, s31 offen sc1")
    rot_next(27, 6)
def own_w(s0, s1, thr=0):
    for sl in range(s0, s1):
        if thr: a(f"    s_waitcnt vmcnt({thr})")
        own_slot(sl)
def x_init_load():
    mk_x()
    a(f"""    v_and_b32 v2, 15, v0
    v_lshlrev_b32 v2, 6, v2
    v_add_u32 v2, s{sT1}, v2
    v_mul_u32_u24 v2, 1280, v2
    v_lshrrev_b32 v3, 4, v0
    v_lshl_add_u32 v2, v3, 3, v2
    s_and_b32 s30, s49, 1
    s_mul_i32 s30, s30, {1024*1280}
    s_lshr_b32 s31, s49, 1
    s_mul_i32 s31, s31, {32*1280}
    s_add_u32 s30, s30, s31
    s_mul_i32 s31, s{sJ2}, 160
    s_add_u32 s30, s30, s31""")
    for nb in range(5):
        a(f"    buffer_load_dwordx2 {P2(160+2*nb)}, v2, {S(SX)}, s30 offen offset:{32*nb}")
def trig4(t, d_cos, d_sin, mask, scale, neg):
    for i in range(4): a(f"    v_and_b32 v{t+i}, {mask}, v{t+i}")
    for i in range(4): a(f"    v_cvt_f32_u32 v{t+i}, v{t+i}")
    for i in range(4): a(f"    v_mul_f32 v{t+i}, {f2u(scale):#x}, v{t+i}")
    for i in range(4): a(f"    v_cos_f32 v{t+4+i}, v{t+i}")
    for i in range(4): a(f"    v_sin_f32 v{t+i}, {'-' if neg else ''}v{t+i}")
    a(f"""    v_cvt_pk_bf16_f32 v{d_cos}, v{t+4}, v{t+5}
    v_cvt_pk_bf16_f32 v{d_cos+1}, v{t+6}, v{t+7}
    v_cvt_pk_bf16_f32 v{d_sin}, v{t}, v{t+1}
    v_cvt_pk_bf16_f32 v{d_sin+1}, v{t+2}, v{t+3}""")

def trig_rows(young):
    a(f"""    s_cmp_ge_u32 s{sJ2}, 4
    s_cselect_b32 s58, -1, 0
    s_and_b32 s57, s58, 1
    v_and_b32 v2, 15, v0
    v_lshlrev_b32 v144, 6, v2
    v_add_u32 v144, s{sT1}, v144
    v_lshrrev_b32 v3, 4, v0
    s_lshl_b32 s52, s49, 4
    v_lshl_add_u32 v145, v3, 2, s52""")
    for ts in range(4):
        a(f"""    v_add_u32 v146, {1024*(ts&1) + 32*(ts>>1)}, v144
    v_xor_b32 v146, s58, v146
    v_add_u32 v146, s57, v146
    v_and_b32 v146, 2047, v146
    v_mul_u32_u24 v148, v146, v145
    v_add_u32 v149, v148, v146
    v_add_u32 v150, v149, v146
    v_add_u32 v151, v150, v146""")
        trig4(148, 128 + 4 * ts, 130 + 4 * ts, 2047, 1 / 2048, True)
    for r in range(ACC2, 256): a(f"    v_mov_b32 v{r}, 0")
    u = uniq()
    a(f"    s_waitcnt vmcnt({young})")
    for ts in range(4):
        a(f"    s_cmp_lg_u32 s49, {ts}\n    s_cbranch_scc1 L_xi{u}_{ts}")
        for nb in range(5):
            d = ACC2 + 4 * (nb * 4 + ts); x = 160 + 2 * nb
            a(f"""    v_lshlrev_b32 v{d}, 16, v{x}
    v_and_b32 v{d+1}, 0xffff0000, v{x}
    v_lshlrev_b32 v{d+2}, 16, v{x+1}
    v_and_b32 v{d+3}, 0xffff0000, v{x+1}""")
        a(f"L_xi{u}_{ts}:")

def w_touch(j, two, va, vd, sa):
    a(f"""    v_lshrrev_b32 v{va}, 5, v0
    v_mul_u32_u24 v{va}, {1728 - 32}, v{va}
    v_add_u32 v{va}, v{va}, v0
    s_lshr_b32 s{sa}, s2, 2
    s_mul_i32 s{sa}, s{sa}, 27
    s_bfe_u32 s{sa+1}, s2, 0x10001
    s_mul_i32 s{sa+1}, s{sa+1}, {5*1728}
    s_add_u32 s{sa}, s{sa}, s{sa+1}
    s_add_u32 s{sa}, s{sa}, {j*1728}
    v_add_u32 v{va}, s{sa}, v{va}
    v_lshlrev_b32 v{va}, 7, v{va}
    s_bitcmp1_b32 s2, 0
    s_cselect_b32 s{sa}, s{P_WU}, s{P_WG}
    s_cselect_b32 s{sa+1}, s{P_WU+1}, s{P_WG+1}
    s_mov_b32 exec_lo, 0x07ffffff
    s_mov_b32 exec_hi, {'0x07ffffff' if two else '0'}
    global_load_dword v{vd}, v{va}, s[{sa}:{sa+1}]
    s_mov_b64 exec, -1""")
RMAP = f"""    s_sub_u32 s50, s36, 24
    s_lshl_b32 s50, s50, 2
    s_lshr_b32 s50, 0x72651043, s50
    s_and_b32 s50, s50, 15
    s_add_u32 s50, s50, 24
    s_cmp_ge_u32 s36, 24
    s_cselect_b32 s{sNT}, s50, s{sNT}
""" if opt["rmap"] else ""
MAP2 = f"""    s_mov_b32 s38, s{sJ2}
    s_lshl_b32 s{sT1}, s47, 3
    s_bfe_u32 s29, s2, 0x30003
    s_add_u32 s{sT1}, s{sT1}, s29
    s_lshr_b32 s39, s2, 6
    s_and_b32 s{sJ2}, s46, 1
    s_lshl_b32 s{sJ2}, s{sJ2}, 2
    s_add_u32 s{sJ2}, s{sJ2}, s39
    s_lshl_b32 s39, s39, 1""" if opt["map2"] else f"""    s_mov_b32 s38, s{sJ2}
    s_mov_b32 s39, s{sJ2}
    s_mov_b32 s29, s{sMI}
    s_lshl_b32 s{sT1}, s46, 2
    s_add_u32 s{sT1}, s{sT1}, s{sMI}"""
a(f"""    s_cmp_ge_u32 s2, 256
    s_cbranch_scc1 L_end
    s_load_dwordx16 s[64:79], s[0:1], 0
    s_load_dwordx8 s[80:87], s[0:1], 64""")
if PROF:
    a("    s_memtime s[100:101]" if PROF not in (4, 6) else "    s_memrealtime s[100:101]")
    for k in range(10): a(f"    s_mov_b32 s{90+k}, 0")
a(f"""    v_lshrrev_b32 v1, 6, v0
    v_and_b32 v0, 63, v0
    v_readfirstlane_b32 s{sW}, v1
    s_and_b32 s46, s2, 7
    s_lshr_b32 s47, s2, 3
    s_and_b32 s{sM}, s46, 1
    s_lshl_b32 s{sM}, s{sM}, 2
    s_and_b32 s{sMI}, s47, 3
    s_add_u32 s{sM}, s{sM}, s{sMI}
    s_lshr_b32 s{sJ2}, s47, 2
    s_lshl_b32 s{sNT}, s{sJ2}, 2
    s_lshr_b32 s47, s46, 1             ; n-group g
    s_add_u32 s{sNT}, s{sNT}, s47
    s_mov_b32 s36, s{sNT}              ; slot 4 j + g
{RMAP}{MAP2}
    s_cmp_ge_u32 s{sNT}, 27
    s_cselect_b32 s{sDFT}, 1, 0
    s_cmp_lt_u32 s{sW}, 4
    s_cbranch_scc1 L_cons
    s_setprio 3
    s_sub_u32 s49, s{sW}, 4
    s_cmp_eq_u32 s{sW}, 7
    s_cbranch_scc1 L_serv
    v_lshrrev_b32 v2, 3, v0
    v_and_b32 v3, 7, v0
    v_lshrrev_b32 v5, 1, v2
    s_lshl_b32 s63, s47, 2
    s_lshr_b32 s63, {[0, 0x3210, 0x8530][opt['xo']]:#x}, s63
    s_and_b32 s63, s63, 15
    s_and_b32 s62, s46, 1
    s_mul_i32 s62, s62, 5
    s_add_u32 s63, s63, s62
    s_cmp_ge_u32 s63, 10
    s_cselect_b32 s62, 10, 0
    s_sub_u32 s63, s63, s62
    s_cmp_eq_u32 s{sW}, 6
    s_cbranch_scc1 L_prodw
    v_mul_u32_u24 v4, 81920, v2
    v_xor_b32 v3, v3, v5
    v_lshl_add_u32 v8, v3, 4, v4
    v_xor_b32 v9, 64, v8
    s_lshl_b32 s50, s49, 5
    s_lshl_b32 s51, s{sM}, 2
    s_add_u32 s50, s50, s51
    s_mul_i32 s50, s50, 1280
    s_lshl_b32 s52, s63, 7
    s_add_u32 s50, s50, s52
    s_lshl_b32 s51, s49, 14
    s_lshl_b32 s57, s38, 1""")
if not opt["irot"]: a("    s_mov_b32 s57, 0")
a(f"""    s_lshl_b32 s53, s57, 10
    s_mov_b32 s54, 0x3fff
    s_mov_b32 s55, 0
    s_mov_b32 s56, 128
    s_mov_b32 s62, 1280
    s_waitcnt lgkmcnt(0)""")
srd(a, SWA, P_X, 2621440); srd(a, SWB, P_X, 2621440)
def dma(n, isw=0):
    a(f"""    s_add_u32 m0, s51, s53
    s_add_u32 s53, s53, 1024
    s_and_b32 s53, s53, s54""")
    if not opt["nodma"]: a(f"    buffer_load_dwordx4 v{128+n}, {S(SWA if n < 8 else SWB)}, s50 offen{' nt' if opt['nt'] >> isw & 1 else ''} lds")
for n in range(16):
    a(f"""    s_add_u32 s52, s57, {n}
    s_and_b32 s58, s52, 3
    s_mul_i32 s58, s58, {512*1280}
    s_bfe_u32 s52, s52, 0x20002
    s_mul_i32 s52, s52, 1280
    s_add_u32 s52, s52, s58
    v_add_u32 v{128+n}, s52, v{8 + (n & 1)}""")
    dma(n)
a(f"""    s_branch L_pfirst
L_prodw:
    s_mov_b32 s51, 32768
    s_lshl_b32 s57, s{sMI}, 1""")
if not opt["irot"]: a("    s_mov_b32 s57, 0")
a(f"""    s_lshl_b32 s53, s57, 10
    s_mov_b32 s54, 0x1fff
    s_mov_b32 s55, 8192
    s_cmp_eq_u32 s{sDFT}, 1
    s_cbranch_scc1 L_prodw_dft
    v_mul_u32_u24 v4, 3456, v2
    v_and_b32 v5, 1, v5
    v_lshlrev_b32 v5, 1, v5
    v_xor_b32 v3, v3, v5
    v_lshl_add_u32 v8, v3, 4, v4
    v_xor_b32 v9, 64, v8
    s_lshl_b32 s50, s{sNT}, 7
    s_mov_b32 s58, {8*3456}
    s_mov_b32 s56, {64*3456}
    s_waitcnt lgkmcnt(0)""")
srd(a, SWA, P_WG, 640 * 3456); srd(a, SWB, P_WU, 640 * 3456)
a(f"""    s_branch L_prodw_go
L_prodw_dft:
    v_mul_u32_u24 v4, 1280, v2
    v_xor_b32 v3, v3, v5
    v_lshl_add_u32 v8, v3, 4, v4
    v_xor_b32 v9, 64, v8
    s_sub_u32 s50, s{sNT}, 27
    s_lshl_b32 s50, s50, 6
    s_add_u32 s50, s50, 1
    s_mul_i32 s50, s50, 1280
    s_mov_b32 s58, {8*1280}
    s_mov_b32 s56, 128
    s_waitcnt lgkmcnt(0)""")
srd(a, SWA, P_HRE, 640 * 1280); srd(a, SWB, P_HIM, 640 * 1280)
a(f"""L_prodw_go:
    s_mul_i32 s52, s63, s56
    s_add_u32 s50, s50, s52
    s_mul_i32 s62, s56, 10""")
for n in range(8):
    a(f"""    s_add_u32 s52, s57, {n}
    s_and_b32 s52, s52, 7
    s_mul_i32 s52, s52, s58
    v_add_u32 v{128+n}, s52, v{8 + (n & 1)}
    v_add_u32 v{136+n}, s52, v{8 + (n & 1)}""")
    dma(n, 1)
a("    s_add_u32 s51, s51, s55")
for n in range(8, 16): dma(n, 1)
a.label("L_pfirst")
mk_ws()
k2_setup()
a(f"""    v_mov_b32 v144, {L_CNT}
    s_mov_b32 s60, 0
    s_branch L_pnext
L_ploop:""")
if opt["nt"] in (1, 2):
    a(f"    s_cmp_eq_u32 s{sW}, 6\n    s_cbranch_scc0 L_ploopx")
    for n in range(16):
        if n == 8: a("    s_add_u32 s51, s51, s55")
        dma(n, 1)
    a("    s_branch L_pnext\nL_ploopx:")
for n in range(16):
    if n == 8: a("    s_add_u32 s51, s51, s55")
    dma(n)
a(f"""L_pnext:
    s_sub_u32 s51, s51, s55
    s_add_u32 s50, s50, s56
    s_add_u32 s63, s63, 1
    s_cmp_eq_u32 s63, 10
    s_cselect_b32 s63, 0, s63
    s_cselect_b32 s52, s62, 0
    s_sub_u32 s50, s50, s52
    s_add_u32 s51, s51, {STG}
    s_cmp_ge_u32 s51, {3*STG}
    s_cselect_b32 s52, {3*STG}, 0
    s_sub_u32 s51, s51, s52
    s_add_u32 s60, s60, 1
    s_cmp_lt_u32 s60, 2
    s_cbranch_scc1 L_ploop
    s_waitcnt vmcnt(16)
    s_barrier
    s_cmp_lt_u32 s60, 10
    s_cbranch_scc1 L_ploop""")
stamp(0)
def wpart(start, cnt, thr=0):
    a(f"""    s_mul_i32 s50, s49, {cnt*1024}
    s_add_u32 s50, s50, {start*1024}
    s_and_b32 s51, s29, 3
    s_lshl_b32 s51, s51, 12""")
    if not opt["wrot"]: a("    s_mov_b32 s51, 0")
    for g in range(4):
        if thr: a(f"    s_waitcnt vmcnt({thr})")
        a(f"""    s_add_u32 m0, s50, s51
    s_add_u32 s52, m0, s24
    s_add_u32 s51, s51, 4096
    s_and_b32 s51, s51, 0x3fff""")
        for i in range(4):
            a(f"    buffer_load_dwordx4 v1, {S(SWS)}, s52 offen offset:{i*1024} sc1 lds")
    if cnt > 16:
        a(f"    s_add_u32 m0, s50, 16384\n    s_add_u32 s52, m0, s24")
        for i in range(cnt - 16):
            a(f"    buffer_load_dwordx4 v1, {S(SWS)}, s52 offen offset:{i*1024} sc1 lds")
T = opt["thr"]
if opt["lnd"]:
    a(f"""    v_mov_b32 v144, {L_CNT}
{'' if opt['el'] else '    s_sleep %d' % opt['lnd']}
    ds_read_b32 v145, v144 offset:{O_WOK}
    s_waitcnt lgkmcnt(0)
    v_cmp_eq_u32 vcc, 0, v145
    s_cbranch_vccnz L_lnd0""")
    own_slot(0); own_slot(1)
    a("    s_waitcnt vmcnt(10)")
    lds_add(O_LAND, 144, 145)
    a("    s_branch L_lnd1\nL_lnd0:")
a("    s_waitcnt vmcnt(0)")
lds_add(O_LAND, 144, 145)
lds_spin("wok", O_WOK, 1, 144, 145)
if opt["lnd"]:
    own_slot(0); own_slot(1)
    a("L_lnd1:")
SCH = ["A o0 o1 r4 B X t o2 r8 o3 dr u C o4 o5 T",
       "A o0 o1 r4 B X o2 r8 t C o3 o4 o5 T",
       "A o0 o1 r4 B X r8 t C o2 dr u o3 o4 o5 T",
       "A o0 r4 B X o1 r8 t o2 C dr u o3 o4 o5 T",
       "A o0 o1 r4 B X r8 dr C o2 o3 o4 o5 T",
       "A o0 o1 r4 B X o2 r8 C o3 o4 o5 T",
       "A X o0 o1 r4 B r8 t C o2 o3 T dr u o4 o5",
       "A o0 o1 r4 B X t o2 r8 o3 pd u C o4 o5 T",
       "A o0 o1 r4 B X r8 pd C o2 o3 o4 o5 T",
       "A X o0 r8 pd B C o1 o2 o3 o4 o5 W25 T",
       "A X o0 o1 r8 pd B C o2 o3 o4 o5 W20 T",
       "A X r4 B r8 pd C o0 o1 o2 o3 o4 o5 W30 T",
       "A X o0 r8 T pd B C o1 o2 o3 o4 o5 W25",
       "A X r8 pd B C o0 o1 o2 o3 o4 o5 W30 T"][opt["sch"]]
def run_sched(sch, tag):
    thr = 0; young = None
    for tok in sch.split():
        n = 0
        if tok == "t": thr = T
        elif tok == "u": thr = 0
        elif tok == "A": wpart(48, 16, thr); n = 16
        elif tok == "B": a("    s_waitcnt vmcnt(40)"); wpart(96, 18, thr); n = 18
        elif tok == "C": a("    s_waitcnt vmcnt(40)"); wpart(0, 16, thr); n = 16
        elif tok == "X": x_init_load(); young = 0
        elif tok[0] == "o": own_w(int(tok[1]), int(tok[1]) + 1, thr); n = 5
        elif tok == "r4": lds_spin(tag + "r4", O_REL, 4, 144, 145)
        elif tok == "r8":
            lds_spin(tag + "r8", O_REL, 8, 144, 145); stamp(1); a("    s_setprio 0")
        elif tok == "dr": lds_spin(tag + "dr", O_CNT, 4, 144, 145)
        elif tok == "pd":
            a(f"    s_cmp_eq_u32 s{sDFT}, 1\n    s_cbranch_scc1 L_{tag}pdd")
            lds_spin(tag + "pd", O_CNT, 4, 144, 145)
        elif tok == "p0": a("    s_setprio 0")
        elif tok[0] == "W":
            a(f"    s_waitcnt vmcnt({tok[1:]})"); lds_add(O_WL, 144, 145)
        elif tok == "T": trig_rows(min(young, 63))
        if young is not None: young += n
if opt["lnd"]: SCH = SCH.replace("o0 ", "").replace("o1 ", "")
run_sched(SCH, "p")
a("    s_branch L_pown")

a.label("L_serv")
a(f"""    s_lshr_b32 s53, s2, 2
    s_and_b32 s54, s2, 3
    s_mul_i32 s51, s53, {32*1280}
    s_mul_i32 s52, s54, 320
    s_add_u32 s51, s51, s52
    s_cmp_ge_u32 s2, 216
    s_cselect_b32 s51, 0x40000000, s51
    s_mov_b32 s56, 3277""")
for q in range(10):
    a(f"""    v_add_u32 v6, {64*q}, v0
    v_mul_u32_u24 v7, s56, v6
    v_lshrrev_b32 v7, 16, v7
    v_mul_u32_u24 v8, 20, v7
    v_sub_u32 v6, v6, v8
    v_mul_u32_u24 v7, 1280, v7
    v_lshl_add_u32 v{88+q}, v6, 4, v7""")
a(f"""    ; column sums: k32-step (m & 1) of matrix (m >> 1) & 1 in the first five stages, on the matrix core
    v_mov_b32 v60, 0x3f803f80
    v_mov_b32 v61, v60
    v_mov_b32 v62, v60
    v_mov_b32 v63, v60
    v_lshrrev_b32 v3, 4, v0
    v_bfe_u32 v6, v0, 2, 2                ; rho
    v_and_b32 v7, 3, v0                   ; gamma
    v_lshl_add_u32 v15, v3, 2, v6
    v_mul_u32_u24 v15, 320, v15
    v_lshl_add_u32 v15, v7, 3, v15
    v_add_u32 v15, {L_SCR}, v15
    s_and_b32 s57, s{sMI}, 1
    s_lshr_b32 s58, s{sMI}, 1
    s_lshl_b32 s52, s58, 13
    s_add_u32 s52, s52, 32768
    s_cmp_eq_u32 s{sDFT}, 1
    s_cbranch_scc1 L_sa_d
    v_lshl_add_u32 v5, v3, 3, v6
    v_lshlrev_b32 v5, 7, v5
    v_lshl_add_u32 v5, v7, 3, v5
    v_lshrrev_b32 v6, 1, v6
    v_and_b32 v7, 1, v3
    v_lshl_add_u32 v6, v7, 1, v6
    v_lshl_add_u32 v5, v6, 5, v5
    s_lshl_b32 s57, s57, 12
    s_add_u32 s52, s52, s57
    v_add_u32 v16, s52, v5
    v_xor_b32 v17, 32, v16
    v_xor_b32 v18, 64, v16
    v_xor_b32 v19, 96, v16
    s_branch L_sa_e
L_sa_d:
    s_lshl_b32 s57, s57, 2
    v_add_u32 v7, s57, v3
    v_bfe_u32 v6, v0, 1, 3
    v_xor_b32 v7, v7, v6
    v_and_b32 v6, 15, v0
    v_lshlrev_b32 v5, 7, v6
    v_lshl_add_u32 v5, v7, 4, v5
    v_add_u32 v16, s52, v5
    v_add_u32 v17, 2048, v16
    v_add_u32 v18, 4096, v16
    v_add_u32 v19, 6144, v16
L_sa_e:
    v_lshlrev_b32 v1, 4, v0
    v_lshlrev_b32 v9, 2, v0
    v_add_u32 v9, {L_CNT}, v9
    v_mov_b32 v7, 0
    s_mov_b64 exec, 0xffff
    ds_write_b32 v9, v7
    s_mov_b64 exec, -1
    v_mov_b32 v10, {L_CNT}
    v_mov_b32 v11, 1""")
for r in range(144, 160): a(f"    v_mov_b32 v{r}, 0")
a("    s_waitcnt lgkmcnt(0)")
mk_ws()
a(f"""    s_mov_b32 s47, {WS_EPOCH}
    buffer_load_dword v137, v7, {S(SWS)}, s47 offen sc1""")
if opt["cpf"]:
    a(f"""    s_getpc_b64 s[60:61]
L_pc:
    s_sub_u32 s60, s60, L_pc - {NAME}
    s_subb_u32 s61, s61, 0
    s_lshr_b32 s52, s2, 3
    s_lshl_b32 s52, s52, 10
    v_lshlrev_b32 v6, 7, v0
    v_add_u32 v6, s52, v6
    v_min_u32 v6, L_end - {NAME}, v6
    s_mov_b64 exec, 0xff
    global_load_dword v138, v6, s[60:61]
    s_mov_b64 exec, -1""")
mk_wd()
def cs_pass(j):
    if opt["ex"] == 11: return
    a(f"    s_cmp_eq_u32 s{sDFT}, 1\n    s_cbranch_scc1 L_cs{j}_d")
    for i in range(4):
        a(f"    ds_read_b64_tr_b16 {P2(64+4*i)}, v{16+i}")
        a(f"    ds_read_b64_tr_b16 {P2(66+4*i)}, v{16+i} offset:512")
    a(f"    s_branch L_cs{j}_e\nL_cs{j}_d:")
    for i in range(4): a(f"    ds_read_b128 {V(64+4*i)}, v{16+i}")
    d = STG if j % 3 != 2 else -2 * STG
    a(f"L_cs{j}_e:\n    s_mov_b32 s52, {d}")
    for i in range(4): a(f"    v_add_u32 v{16+i}, s52, v{16+i}")
    a("    s_waitcnt lgkmcnt(0)")
    for i in range(4 if opt["ex"] != 10 else 0): a(mfma(144 + 4 * i, 64 + 4 * i, 60))
SST = opt["sst"]
def s_rows():
    a(f"""    v_lshrrev_b32 v2, 3, v0
    v_lshrrev_b32 v4, 2, v2
    v_lshlrev_b32 v4, 5, v4
    v_and_b32 v5, 3, v2
    v_add_u32 v4, v4, v5
    v_mul_u32_u24 v4, 1280, v4
    v_and_b32 v5, 7, v0
    v_lshl_add_u32 v4, v5, 4, v4
    s_lshl_b32 s60, s{sNT}, 6
    s_lshl_b32 s52, s{sM}, 2
    s_add_u32 s60, s60, s52
    s_mul_i32 s60, s60, 1280""")
    mk_x()
def s_load():
    for j in range(10): a(f"    buffer_load_dwordx4 {V(20+4*j)}, v4, {S(SX)}, s60 offen offset:{j*128}")
def s_init():
    a("""    v_lshlrev_b32 v136, 16, v20
    s_nop 1
    v_mov_b32_dpp v136, v136 quad_perm:[0,0,0,0] row_mask:0xf bank_mask:0xf
    s_nop 1
    v_mov_b32_dpp v136, v136 row_half_mirror row_mask:0xf bank_mask:0xa""")
    for r in range(80, 88): a(f"    v_mov_b32 v{r}, 0")
def s_chunk(i0, i1):
    for g in range(i0, i1, 2):
        for i in (g, g + 1): a(f"    v_lshlrev_b32 v{128+2*(i&1)}, 16, v{20+i}\n    v_and_b32 v{129+2*(i&1)}, 0xffff0000, v{20+i}")
        for t in range(4): a(f"    v_sub_f32 v{128+t}, v{128+t}, v136")
        for t in range(4): a(f"    v_add_f32 v{80+t}, v{80+t}, v{128+t}")
        for t in range(4): a(f"    v_fmac_f32 v{84+t}, v{128+t}, v{128+t}")
def s_fin():
    a("""    v_add_f32 v80, v80, v81
    v_add_f32 v84, v84, v85
    v_add_f32 v82, v82, v83
    v_add_f32 v86, v86, v87
    v_add_f32 v80, v80, v82
    v_add_f32 v84, v84, v86""")
    for mode in ("quad_perm:[1,0,3,2]", "quad_perm:[2,3,0,1]", "row_half_mirror"):
        a("    s_nop 1")
        for r in (80, 84): a(f"    v_add_f32_dpp v{r}, v{r}, v{r} {mode} row_mask:0xf bank_mask:0xf")
    a(f"""    v_mul_f32 v80, {f2u(1/640):#x}, v80
    v_mov_b32 v83, {f2u(1e-5):#x}
    v_fmac_f32 v83, {f2u(1/640):#x}, v84
    v_add_f32 v82, v80, v136
    v_fma_f32 v83, -v80, v80, v83
    v_max_f32 v83, {f2u(1e-5):#x}, v83
    s_lshl_b32 s60, s{sM}, 8
    s_add_u32 s60, s60, s{sNT}
    s_lshl_b32 s60, s60, 3
    v_lshlrev_b32 v2, 8, v2
    s_mov_b32 exec_lo, 0x01010101
    s_mov_b32 exec_hi, 0x01010101
    buffer_store_dwordx2 v[82:83], v2, {S(SWS)}, s60 offen sc1
    s_mov_b64 exec, -1""")
k2_setup()
if SST: s_rows()
if SST == 2: s_load()
bar("B_-1", 0)
j0 = 3 if opt["tch"] & 2 else 2
if opt["tch"] & 4: w_touch(j0, 1, 2, 4, 60)
cs_pass(0)
if SST == 1: s_load()
def wd_dma():
    for q in range(10):
        a(f"    s_mov_b32 m0, {L_SCR + q*1024}\n    s_nop 0\n    buffer_load_dwordx4 v{88+q}, {S(SWD)}, s51 offen{' nt' if opt['wdnt'] else ''} lds")
if opt["wdt"] == 0 and opt["ex"] not in (12, 13): wd_dma()
bar("B_0", 1)
if opt["tch"] & 4 and j0 == 2: w_touch(4, 0, 2, 4, 60)
cs_pass(1)
if opt["wdt"] == 1: wd_dma()
if SST:
    a(f"    s_waitcnt vmcnt({10 if opt['wdt'] == 1 else 0})")
    s_init(); s_chunk(0, 10)
bar("B_1", 2)
cs_pass(2)
if SST: s_chunk(10, 22)
def wf_read():
    a(f"""    s_waitcnt vmcnt(0)
    v_add_u32 v137, 1, v137
    ds_write_b32 v10, v137 offset:{O_TAG}
    v_readfirstlane_b32 s47, v137""")
    for jj in range(2):
        for nb in range(5):
            r = 88 + 4 * (5 * jj + nb); o = jj * 160 + nb * 32
            a(f"    ds_read_b64_tr_b16 v[{r}:{r+1}], v15 offset:{o}")
            a(f"    ds_read_b64_tr_b16 v[{r+2}:{r+3}], v15 offset:{o+5120}")
    a(f"""    s_mul_i32 s51, s54, {2*WFT}
    s_mul_i32 s52, s53, 5120
    s_add_u32 s51, s51, s52
    s_add_u32 s51, s51, {WS_WF}
    s_cmp_ge_u32 s2, 216
    s_cselect_b32 s51, 0x40000000, s51
    s_waitcnt lgkmcnt(0)""")
def wf_store(jj):
    if opt["ex"] in (12, 14): return
    for nb in range(5):
        r = 88 + 4 * (5 * jj + nb)
        if nb == 4:
            a(f"    s_add_u32 s52, s51, 4096\n    buffer_store_dwordx4 {V(r)}, v1, {S(SWS)}, s52 offen sc1")
        else:
            a(f"    buffer_store_dwordx4 {V(r)}, v1, {S(SWS)}, s51 offen offset:{nb*1024} sc1")
    if jj == 0: a(f"    s_add_u32 s51, s51, {WFT}")
if opt["wdt"] == 0: wf_read(); wf_store(0)
bar("B_2", 3)
cs_pass(3)
if opt["wdt"] == 1: wf_read(); wf_store(0)
wf_store(1)
if SST: s_chunk(22, 30)
F2L = """    v_bfe_u32 v171, v0, 1, 3
    v_and_b32 v170, 1, v0
    v_lshl_add_u32 v171, v171, 2, v170
    v_add_u32 v171, s50, v171""" if opt["es"] else "    v_add_u32 v171, s50, v0"
a(f"""    s_lshl_b32 s61, s54, 6
    s_add_u32 s61, s61, s53
    s_lshl_b32 s61, s61, 7
    s_add_u32 s61, s61, {WS_EF}
    s_lshl_b32 s53, s{sNT}, 3
    s_add_u32 s53, s53, s{sM}
    s_lshl_b32 s53, s53, 9
    s_lshl_b32 s58, s58, 8
    s_add_u32 s53, s53, s58
    s_add_u32 s53, s53, {WS_CSP}
    v_and_b32 v173, 48, v0
    ; F2 flags to wait for: lanes 0..31 (m, lane), lanes 32.. (lane & 7, nt)
    s_lshl_b32 s50, s{sM}, 5
{F2L}
    v_and_b32 v170, 7, v0
    v_lshlrev_b32 v170, 5, v170
    v_add_u32 v170, s36, v170
    v_cmp_gt_u32 vcc, 32, v0
    s_add_u32 s50, s50, s36
    s_lshl_b32 s50, s50, 7
    v_cndmask_b32 v171, v170, v171, vcc
    v_lshlrev_b32 v171, 7, v171
    v_min_u32 v170, 53, v0
    v_lshlrev_b32 v170, 7, v170
    s_add_u32 s50, s50, {WS_F2}
    s_lshr_b32 s51, s{sJ2}, 1
    s_lshl_b32 s51, s51, 13
    s_add_u32 s51, s51, {WS_EF}
    v_mov_b32 v172, s47
    v_mov_b32 v174, {L_CNT}
    v_mov_b32 v175, 1
    s_mov_b32 s59, 0""")
bar("B_3", 4)
cs_pass(4)
if SST: s_chunk(30, 40)
a(f"""    s_waitcnt vmcnt(0)
    s_mov_b64 exec, 1
    buffer_store_dword v172, v7, {S(SWS)}, s61 offen sc1
    s_mov_b32 exec_lo, 0x00010001
    s_mov_b32 exec_hi, 0x00010001
    s_nop 3""")
for i in range(4): a(f"    buffer_store_dwordx4 {V(144+4*i)}, v173, {S(SWS)}, s53 offen offset:{i*64} sc1")
a("    s_mov_b64 exec, -1")
if SST: s_fin()
bar("B_4", 5)
a(f"""    s_waitcnt vmcnt(0)
    s_mov_b64 exec, 1
    buffer_store_dword v172, v7, {S(SWS)}, s50 offen sc1     ; row statistics were drained before B_0
    s_mov_b64 exec, -1""")
if opt["el"]:
    def c_loads():
        a(f"""    v_lshlrev_b32 v6, 3, v0
    v_lshrrev_b32 v5, 5, v0
    v_lshl_add_u32 v5, v5, 10, v6
    s_lshl_b32 s53, s{sM}, 11
    s_lshl_b32 s52, s{sNT}, 12
    s_add_u32 s52, s52, {WS_CSP}""")
        for n in range(4):
            a(f"    buffer_load_dwordx2 v[{128+4*n}:{129+4*n}], v6, {S(SWS)}, s53 offen offset:{n*512} sc1")
        for n in range(4):
            a(f"    buffer_load_dwordx2 {P2(144+2*n)}, v5, {S(SWS)}, s52 offen offset:{(n>>1)*2048+(n&1)*512} sc1")
    bar("B_5", 6)
    a(f"""    s_mov_b32 s50, {WS_F2}
    buffer_load_dword v2, v170, {S(SWS)}, s51 offen sc1
    buffer_load_dword v3, v171, {S(SWS)}, s50 offen sc1""")
    bar("B_6", 7)
    a(f"""    s_waitcnt vmcnt(0)
    v_cmp_ne_u32 s[58:59], s47, v2
    v_cmp_ne_u32 s[60:61], s47, v3
    s_cmp_lg_u64 s[58:59], 0
    s_cbranch_scc1 L_l1
    ds_write_b32 v174, v175 offset:{O_WOK}
L_l1:
    s_cmp_lg_u64 s[60:61], 0
    s_cbranch_scc1 L_l2""")
    c_loads()
    a(f"""    s_branch L_l3
L_l2:
    buffer_load_dword v3, v171, {S(SWS)}, s50 offen sc1
L_l3:""")
    bar("B_7", 8)
    stamp(0)
    a(f"""    s_cmp_eq_u64 s[60:61], 0
    s_cbranch_scc1 L_l4
    s_waitcnt vmcnt(0)
    v_cmp_ne_u32 vcc, s47, v3
    s_cbranch_vccz L_p3d""")
    poll("p3", 171, "s50", 3, "s47", 3)
    c_loads()
    a(f"""L_l4:
    s_cmp_eq_u64 s[58:59], 0
    s_cbranch_scc1 L_l5""")
    poll("p1", 170, "s51", 2, "s47", 3)
    a(f"    ds_write_b32 v174, v175 offset:{O_WOK}\nL_l5:")
else:
    bar("B_5", 6)
    bar("B_6", 7)
    a(f"""    s_mov_b32 s50, {WS_F2}
    buffer_load_dword v5, v170, {S(SWS)}, s51 offen sc1
    buffer_load_dword v6, v171, {S(SWS)}, s50 offen sc1""")
    bar("B_7", 8)
    stamp(0)
    a(f"""    s_waitcnt vmcnt(0)
    v_cmp_ne_u32 s[58:59], s47, v5
    v_cmp_ne_u32 vcc, s47, v6
    s_cbranch_vccz L_p3d
    s_cmp_lg_u64 s[58:59], 0
    s_cbranch_scc1 L_p3w
    ds_write_b32 v174, v175 offset:{O_WOK}
L_p3w:""")
    poll("p3", 171, "s50", 6, "s47", 3)
    a(f"""    v_lshlrev_b32 v6, 3, v0
    v_lshrrev_b32 v5, 5, v0
    v_lshl_add_u32 v5, v5, 10, v6
    s_lshl_b32 s50, s{sM}, 11
    s_lshl_b32 s52, s{sNT}, 12
    s_add_u32 s52, s52, {WS_CSP}""")
    for n in range(4):
        a(f"    buffer_load_dwordx2 v[{128+4*n}:{129+4*n}], v6, {S(SWS)}, s50 offen offset:{n*512} sc1")
    for n in range(4):
        a(f"    buffer_load_dwordx2 {P2(144+2*n)}, v5, {S(SWS)}, s52 offen offset:{(n>>1)*2048+(n&1)*512} sc1")
    a(f"""    s_cmp_eq_u64 s[58:59], 0
    s_cbranch_scc1 L_p1d""")
    poll("p1", 170, "s51", 5, "s47", 3)
    a(f"    ds_write_b32 v174, v175 offset:{O_WOK}")
a(f"    s_waitcnt vmcnt(0)")
for n in range(4): a(f"    v_rsq_f32 v{152+n}, v{129+4*n}")
for n in range(1, 4): a(f"    v_add_f32 v144, v144, v{144+2*n}\n    v_add_f32 v145, v145, v{145+2*n}")
a(f"""    v_add_u32 v6, {L_CS}, v6
    ds_write_b64 v6, v[144:145]
    s_cmp_eq_u32 s{sDFT}, 1
    s_cbranch_scc1 L_serv_cdft
    v_add_u32 v6, {L_STAT}, v1""")
for n in range(4):
    b = 128 + 4 * n
    a(f"""    v_mov_b32 v{b+3}, v{b+1}
    v_mul_f32 v156, v{152+n}, v{152+n}
    v_xor_b32 v{b}, 0x80000000, v{b}
    v_mul_f32 v{b+1}, {f2u(-K1C):#x}, v{152+n}
    v_mul_f32 v156, v156, v{152+n}
    v_mul_f32 v{b+2}, {f2u(-K2C):#x}, v156
    ds_write_b128 v6, {V(b)} offset:{n*1024}""")
a(f"""    s_branch L_serv_cd
L_serv_cdft:
    v_lshlrev_b32 v6, 2, v0
    v_add_u32 v6, {L_STAT}, v6""")
for n in range(4):
    b = 128 + 4 * n
    a(f"""    v_mul_f32 v{b}, v{b}, v{152+n}
    v_xor_b32 v{b}, 0x80000000, v{b}
    ds_write_b32 v6, v{152+n} offset:{n*256}
    ds_write_b32 v6, v{b} offset:{1024+n*256}""")
a(f"""L_serv_cd:
    ds_write_b32 v174, v175 offset:{O_RDY}""")
stamp(1)
a("    s_waitcnt lgkmcnt(0)")
SSCH = ["X o0 o1 o2 o3 p0 t o4 o5 pd T", "X o0 o1 o2 o3 p0 T t o4 o5 pd", "X o0 o1 o2 o3 o4 o5 T p0 pd", "X o0 o1 T p0 t o2 o3 o4 o5 pd", "X o0 p0 T pd", "X o0 o1 p0 T pd", "X p0 T pd"][opt["ssch"]]
SREST = [sl for sl in range(6) if f"o{sl}" not in SSCH]
run_sched(SSCH, "s")

def item(vit, va, vg, t0):
    t1, t2 = t0 + 1, t0 + 2
    a(f"""    v_mul_u32_u24 v{t0}, s50, v{vit}
    v_lshrrev_b32 v{t0}, 16, v{t0}
    v_mul_u32_u24 v{t1}, 20, v{t0}
    v_sub_u32 v{t1}, v{vit}, v{t1}
    v_and_b32 v{vg}, 31, v{t0}
    v_lshlrev_b32 v{vg}, 6, v{vg}
    v_and_b32 v{t2}, 32, v{t0}
    v_add3_u32 v{vg}, v{vg}, v{t2}, s{sT1}
    v_mul_u32_u24 v{vg}, 1280, v{vg}
    v_lshl_add_u32 v{vg}, v{t1}, 3, v{vg}
    v_mul_u32_u24 v{va}, {PSTR}, v{t0}
    v_lshl_add_u32 v{va}, v{t1}, 3, v{va}""")
def fin_addr(tb):
    a(f"""    s_mov_b32 s50, 3277
    s_lshl_b32 s51, s{sW}, 7
    v_add_u32 v{tb}, s51, v0""")
    item(tb, 4, 6, tb + 1)
    a(f"    v_add_u32 v{tb}, 64, v{tb}")
    item(tb, 5, 7, tb + 1)
    a(f"    s_mul_i32 s59, s{sJ2}, 160")
    mk_out()
def x_loads(r):
    a(f"""    buffer_load_dwordx4 {V(r)}, v6, {S(SX)}, s59 offen
    s_mov_b64 exec, 0xffff
    buffer_load_dwordx4 {V(r+4)}, v7, {S(SX)}, s59 offen
    s_mov_b64 exec, -1""")
def part_addr(t0):
    a(f"""    v_and_b32 v{t0}, 15, v0
    v_lshrrev_b32 v{t0+1}, 4, v0
    v_mul_u32_u24 v{t0}, {PSTR}, v{t0}
    v_lshl_add_u32 v{t0}, v{t0+1}, 3, v{t0}""")
def capture(fn):
    n0 = len(a.lines); fn(); out = a.lines[n0:]; del a.lines[n0:]; return out
def k2_mfma(wbase, hbase, fill=(), start=0):
    fill = list(fill); k = 0
    for nb in range(5):
        for ts in range(4):
            a(mfma(ACC2 + 4 * (nb * 4 + ts), wbase + 4 * nb, hbase + 4 * ts))
            if k >= start and fill: a(fill.pop(0))
            k += 1
    for l in fill: a(l)
def h_load(hbase, cnt, n, oob=None, base=61):
    a(f"    s_lshl_b32 s52, s{cnt}, 17\n    s_add_u32 s52, s52, s{base}")
    if oob: a(oob)
    if opt["ex"] == 20: a("    s_mov_b32 s52, 0x40000000")
    for ts in range(4):
        a(f"    buffer_load_dwordx4 {V(hbase+4*ts)}, v1, {S(SWS)}, s52 offen offset:{ts*1024} sc1")
    rot_next(cnt, n)
def put(nb, ts, t, pr=None):
    d = ACC2 + 4 * (nb * 4 + ts)
    if pr is not None:
        a(f"""    v_lshlrev_b32 v{t}, 16, v{pr}
    v_and_b32 v{t+1}, 0xffff0000, v{pr}
    v_lshlrev_b32 v{t+2}, 16, v{pr+1}
    v_and_b32 v{t+3}, 0xffff0000, v{pr+1}""")
        for i in range(4): a(f"    v_add_f32 v{d+i}, v{d+i}, v{t+i}")
    a(f"""    v_cvt_pk_bf16_f32 v{d}, v{d}, v{d+1}
    v_cvt_pk_bf16_f32 v{d+1}, v{d+2}, v{d+3}
    ds_write_b64 v2, {P2(d)} offset:{ts*16*PSTR+nb*32}""")
def tail(steps, t, PR=None):
    for nb in range(5):
        i = 0
        if nb == 1 and PR: a("    s_waitcnt lgkmcnt(0)")
        for wb, hb in steps:
            for ts in range(4):
                a(mfma(ACC2 + 4 * (nb * 4 + ts), wb + 4 * nb, hb + 4 * ts))
                i += 1
                if nb and i >= 5: put(nb - 1, i - 5, t, PR(nb - 1, i - 5) if PR else None)
    stamp(5); st3(7)
    a("    s_nop 7")
    for ts in range(4): put(4, ts, t, PR(4, ts) if PR else None)

K2ON[0] = True
a.label("L_pown")
a(f"    v_mov_b32 v160, {L_CNT}\n    ds_read_b32 v161, v160 offset:{O_TAG}")
fin_addr(144)
a(f"""    s_mul_i32 s52, s{sJ2}, 80
    v_add_u32 v2, s52, v2             ; e (nb = 0)
    v_mul_u32_u24 v3, 5120, v3
    s_xor_b32 s56, s{sT1}, s58
    s_add_u32 s56, s56, s57
    s_and_b32 s56, s56, 31
    s_mul_i32 s56, s56, 81920
    s_mul_i32 s52, s49, {4*5120}
    s_add_u32 s56, s56, s52
    s_add_u32 s56, s56, {WS_G}
    s_cmp_ge_u32 s{sJ2}, 4
    s_cselect_b32 s57, 640, -1
    s_waitcnt lgkmcnt(0)
    v_readfirstlane_b32 s47, v161
    s_cmp_eq_u32 s{sW}, 7
    s_cbranch_scc1 L_sv2""")
if "W" not in SCH:
    a("    s_waitcnt vmcnt(0)")
    lds_add(O_WL, 144, 145)
stamp(4)
lds_spin("s1", O_S1, 1, 144, 145)
a(f"""    s_branch L_k2p
L_sv2:
"""[:-1])
a(f"""    s_lshr_b32 s50, s{sT1}, 2
    s_lshl_b32 s50, s50, 5
    v_min_u32 v144, 26, v0
    v_add_u32 v144, s50, v144
    v_lshlrev_b32 v144, 7, v144
    s_mov_b32 s50, {WS_FLAGS}""")
stamp(2)
if opt["slp"]: a(f"    s_sleep {opt['slp']}")
poll("p2", 144, "s50", 145, "s47", opt["pslp"])
stamp(4)
a(f"""    v_mov_b32 v145, 1
    ds_write_b32 v160, v145 offset:{O_S1}""")
for sl in SREST: own_slot(sl)
a("L_k2p:")
stamp(3); st3(0)
hl = [144, 160, 8, 144, 28, 160] if opt["il2"] else [144, 160, 144, 8, 160, 28]
a(f"    s_setprio {opt['pp']}")
def ph(i): h_load(hl[i], 28, 6, base=26)
def block_with_loads(wb, hb, i0, pre=()):
    if not opt["il2"]:
        k2_mfma(wb, hb)
        for l in pre: a(l)
        ph(i0); ph(i0 + 1)
        return
    A, B = capture(lambda: ph(i0)), capture(lambda: ph(i0 + 1))
    B = [l.replace("s52", "s53") for l in B]
    if opt["ex"] == 20: A = [A[0], A[2]] + A[3:]; B = [B[0], B[2]] + B[3:]
    slots = {0: A[0:1], 1: A[1:2], 2: list(pre), 4: A[2:3], 5: A[6:7], 6: A[7:8], 7: A[8:9], 8: A[3:4], 9: B[0:1], 10: B[1:2], 12: A[4:5],
             13: B[6:7], 14: B[7:8], 15: B[8:9], 16: A[5:6] + B[2:3], 17: B[3:4], 18: B[4:5], 19: B[5:6]}
    k = 0
    for nb in range(5):
        for ts in range(4):
            a(mfma(ACC2 + 4 * (nb * 4 + ts), wb + 4 * nb, hb + 4 * ts))
            for l in slots.get(k, []): a(l)
            k += 1
ph(0); ph(1)
a(f"""    s_sub_u32 s50, 7, s{sJ2}
    s_min_u32 s50, s50, s{sJ2}
    s_add_u32 s51, s50, 27
    s_mov_b32 s50, {WS_FLAGS}
    s_waitcnt vmcnt(4)""")
st3(1)
block_with_loads(8, hl[0], 2)
a(f"""    v_and_b32 v24, 7, v0
    v_lshlrev_b32 v24, 5, v24
    v_bfe_u32 v25, v0, 3, 1
    v_add3_u32 v24, v24, v25, s51
    v_lshlrev_b32 v24, 7, v24
    s_waitcnt vmcnt(8)""")
st3(2)
block_with_loads(28, hl[1], 4, [f"    buffer_load_dword v25, v24, {S(SWS)}, s50 offen sc1"])
a(f"    s_setprio {opt['pp2']}\n    s_waitcnt vmcnt(13)")
st3(3)
k2_mfma(48, hl[2])
a(f"""    s_waitcnt vmcnt(8)
    v_cmp_ne_u32 vcc, s47, v25
    s_cbranch_vccz L_pgd""")
GT = hl[2]
poll("pg", 24, "s50", 25, "s47", 2)
for nb in range(5):
    a(f"""    v_add_u32 v{GT}, {16*nb}, v2
    v_xor_b32 v{GT+1}, s58, v{GT}
    v_add_u32 v{GT+1}, s57, v{GT+1}
    v_lshl_add_u32 v{GT+1}, v{GT+1}, 4, v3""")
    if nb == 0:
        a(f"""    v_cmp_eq_u32 vcc, 0, v{GT}
    v_mov_b32 v{GT+2}, 0x40000000
    s_nop 0
    v_cndmask_b32 v{GT+1}, v{GT+1}, v{GT+2}, vcc""")
    a(f"    buffer_load_dwordx4 {V(48+4*nb)}, v{GT+1}, {S(SWS)}, s56 offen sc1")
st3(4)
k2_mfma(68, hl[3])
a("    s_waitcnt vmcnt(9)")
st3(5)
k2_mfma(88, hl[4])
part_addr(16)
a(f"""    s_mul_i32 s50, s49, 40960
    s_cmp_eq_u32 s49, 3
    s_cselect_b32 s50, {PBASE[3]}, s50
    s_add_u32 s50, s50, {64*PSTR}
    v_add_u32 v2, s50, v16
    s_lshl_b32 s50, s49, 2
    s_add_u32 s50, s50, {L_CNT + O_PF}""")
lds_spin("pf", "s50", 1, 16, 17)
a("    s_waitcnt vmcnt(0)")
st3(6)
tail(((108, hl[5]), (48, 128)), 16)
a("    s_branch L_final")

K2ON[0] = False
a.label("L_cons")
sNH, sSH = 47, 49
ESEL = f"""    s_bitcmp1_b32 s36, 1
    s_cbranch_scc1 L_ch3
    s_and_b32 s52, s36, 1
    s_add_u32 s53, s36, s52
    s_add_u32 s53, s53, s{sSH}           ; s1 = 4 j + 2 g + (w >> 1)
    s_mov_b32 s52, s{sNH}""" if opt["es"] else f"""    s_add_u32 s52, s{sW}, 1
    s_and_b32 s52, s52, 2
    s_cmp_eq_u32 s52, 0
    s_cbranch_scc1 L_ch3
    s_sub_u32 s52, s{sW}, 1
    s_mov_b32 s53, s36"""
a(f"""    s_and_b32 s{sNH}, s{sW}, 1
    s_lshr_b32 s{sSH}, s{sW}, 1
    v_and_b32 v2, 15, v0
    v_lshrrev_b32 v3, 4, v0
    v_bfe_u32 v6, v0, 1, 3
    s_lshl_b32 s50, s{sSH}, 14
    v_lshlrev_b32 v1, 7, v2
    v_add_u32 v1, s50, v1
    v_xor_b32 v7, v3, v6
    v_lshl_add_u32 v8, v7, 4, v1
    v_xor_b32 v9, 64, v8
{ESEL}
    v_mul_u32_u24 v6, 1280, v3
    v_lshl_add_u32 v6, v2, 4, v6
    s_lshl_b32 s50, s53, 6
    s_lshl_b32 s51, s52, 5
    s_add_u32 s50, s50, s51
    s_lshl_b32 s51, s{sM}, 2
    s_add_u32 s50, s50, s51
    s_mul_i32 s50, s50, 1280
    s_waitcnt lgkmcnt(0)""")
mk_x()
for j in range(5): a(f"    buffer_load_dwordx4 {V(16+4*j)}, v6, {S(SX)}, s50 offen offset:{j*256}")
mk_ws()
for r in range(128, 256): a(f"    v_mov_b32 v{r}, 0")
for r in range(40, 48): a(f"    v_mov_b32 v{r}, 0")
a(f"""    s_lshl_b32 s50, s{sM}, 11
    s_lshl_b32 s51, s52, 10
    s_add_u32 s50, s50, s51
    s_lshl_b32 s51, s53, 3
    s_add_u32 s50, s50, s51
    v_lshlrev_b32 v4, 8, v3
    s_waitcnt vmcnt(0)
    v_lshlrev_b32 v36, 16, v16
    s_nop 1
    v_mov_b32_dpp v36, v36 row_newbcast:0 row_mask:0xf bank_mask:0xf""")
for g in range(0, 20, 4):
    for i in range(g, g + 4): a(f"    v_lshlrev_b32 v{48+2*(i&3)}, 16, v{16+i}\n    v_and_b32 v{49+2*(i&3)}, 0xffff0000, v{16+i}")
    for i in range(g, g + 4): a(f"    v_pk_add_f32 {P2(48+2*(i&3))}, {P2(48+2*(i&3))}, v[36:37] op_sel_hi:[1,0] neg_lo:[0,1] neg_hi:[0,1]")
    for i in range(g, g + 4): a(f"    v_pk_add_f32 {P2(40+2*(i&1))}, {P2(40+2*(i&1))}, {P2(48+2*(i&3))}")
    for i in range(g, g + 4): a(f"    v_pk_fma_f32 {P2(44+2*(i&1))}, {P2(48+2*(i&3))}, {P2(48+2*(i&3))}, {P2(44+2*(i&1))}")
a("""    v_pk_add_f32 v[40:41], v[40:41], v[42:43]
    v_pk_add_f32 v[44:45], v[44:45], v[46:47]
    v_add_f32 v40, v40, v41
    v_add_f32 v44, v44, v45""")
for mode in ("quad_perm:[1,0,3,2]", "quad_perm:[2,3,0,1]", "row_half_mirror", "row_mirror"):
    a("    s_nop 1")
    for r in (40, 44): a(f"    v_add_f32_dpp v{r}, v{r}, v{r} {mode} row_mask:0xf bank_mask:0xf")
a(f"""    v_mul_f32 v40, {f2u(1/640):#x}, v40
    v_mov_b32 v39, {f2u(1e-5):#x}
    v_fmac_f32 v39, {f2u(1/640):#x}, v44
    v_add_f32 v38, v40, v36
    v_fma_f32 v39, -v40, v40, v39
    v_max_f32 v39, {f2u(1e-5):#x}, v39
    s_mov_b32 exec_lo, 0x00010001
    s_mov_b32 exec_hi, 0x00010001
    buffer_store_dwordx2 v[38:39], v4, {S(SWS)}, s50 offen sc1
    s_mov_b64 exec, -1
    s_branch L_chd
L_ch3:
    s_waitcnt lgkmcnt(0)""")
if opt["tch"] & 1:
    a(f"    s_cmp_lg_u32 s{sW}, 0\n    s_cbranch_scc1 L_nt")
    w_touch(1, opt["tch"] & 2, 6, 127, 50)
    a("L_nt:")
mk_ws()
for r in range(128, 256): a(f"    v_mov_b32 v{r}, 0")
a(f"""L_chd:
    s_mov_b32 s60, 10
    s_mov_b32 s61, 0
    v_mov_b32 v120, {L_CNT}
    v_mov_b32 v121, 1
    s_cmp_eq_u32 s{sDFT}, 1
    s_cbranch_scc1 L_cdft""")

XF = 16
WF = [48, 64]
def acc(i, st): return 128 + 16 * st + 4 * i
def xr(st, kk): return f"    ds_read_b128 {V(XF+4*st)}, v{8+kk} offset:{st*2048}"
def wr(dft, kk):
    b = WF[kk]
    if dft: return [[f"    ds_read_b128 {V(b+4*i)}, v{12+kk} offset:{(i>>1)*8192+(i&1)*2048}"] for i in range(4)]
    return [[f"    ds_read_b64_tr_b16 {P2(b+4*i)}, v{12+(i&1)} offset:{kk*4096+(i>>1)*8192}",
             f"    ds_read_b64_tr_b16 {P2(b+4*i+2)}, v{12+(i&1)} offset:{kk*4096+(i>>1)*8192+512}"] for i in range(4)]
def main_loop(dft, tag):
    nw = 1 if dft else 2
    stamp(8)
    bar("B_-1")
    stamp(0)
    W = wr(dft, 0)
    a(xr(0, 0)); a(xr(1, 0))
    for st in range(2, 8):
        a(xr(st, 0))
        if st < 6:
            for r in W[st - 2]: a(r)
    a(".p2align 3")
    a.label(f"L_{tag}_loop")
    for kk in range(2):
        W = wr(dft, 1 - kk)
        for st in range(8):
            if st == 0: a(f"    s_waitcnt lgkmcnt({2 if kk == 0 else 5})")
            if st == 4 and kk == 0: a(f"    s_waitcnt lgkmcnt({4 + 4*nw})")
            if kk == 1 and st == 2:
                a(f"""    s_cmp_le_u32 s60, 2
    s_cbranch_scc1 L_{tag}_rel
    s_waitcnt vmcnt(0) lgkmcnt(0)
    s_barrier
L_{tag}_reld:""")
                a(xr(0, 0)); a(xr(1, 0))
            ex = []
            if kk == 0: ex = [xr(st, 1)] + (W[st] if st < 4 else [])
            elif st >= 2: ex = [xr(st, 0)] + (W[st - 2] if st < 6 else [])
            for i in range(4):
                w, x = WF[kk] + 4 * i, XF + 4 * st
                i2, st2 = i, st
                if opt["ex"] == 6: i2, st2 = st & 3, (st & 4) + i
                if opt["ex"] == 7: i2, st2 = (i if st % 2 == 0 else 3 - i), st
                if opt["ex"] == 8: i2, st2 = (st >> 1), 4 * (st & 1) + i
                w, x = WF[kk] + 4 * i2, XF + 4 * st2
                if opt["ex"] == 9: a(mfma(acc(i2, st2), x, w))
                else: a(mfma(acc(i2, st2), x, w) if dft else mfma(acc(i2, st2), w, x))
                if i == 3: a(ex[0]) if ex else None
                elif i < len(ex) - 1: a(ex[1 + i])
            if kk == 0 and st == 7: a(f"    ds_read_b32 v122, v120 offset:{O_LAND}")
            if kk == 1 and st == 0:
                a(f"""    s_add_u32 s61, s61, 1
    s_cmp_eq_u32 s61, 3
    s_cselect_b32 s62, {-3*STG}, 0
    s_cselect_b32 s61, 0, s61
    s_add_u32 s62, s62, {STG}""")
            if kk == 1 and st == 1:
                for r in (8, 9, 12, 13): a(f"    v_add_u32 v{r}, s62, v{r}")
    a(f"""    s_sub_u32 s60, s60, 1
    s_cmp_lg_u32 s60, {1 if opt['fin'] and not dft else 0}
    s_cbranch_scc1 L_{tag}_loop
    s_branch L_{tag}_epi
L_{tag}_rel:
    s_mov_b32 s62, 0
    s_waitcnt lgkmcnt(0)
    s_mov_b64 exec, 1
    ds_add_u32 v120, v121 offset:{O_REL}
    s_mov_b64 exec, -1
L_{tag}_land:
    v_cmp_gt_u32 vcc, 3, v122
    s_cbranch_vccz L_{tag}_reld
    ds_read_b32 v122, v120 offset:{O_LAND}
    s_add_u32 s62, s62, 1
    s_waitcnt lgkmcnt(0)
    s_cmp_lt_u32 s62, 0x400000
    s_cbranch_scc1 L_{tag}_land
    s_branch L_{tag}_reld
L_{tag}_epi:""")
    stamp(1)
    if opt["fin"] and not dft:
        for r in wr(False, 1):
            for q in r: a(q)
        a(f"    ds_read_b128 {V(80)}, v9 offset:0")
        a("    s_waitcnt lgkmcnt(11)")
        for i in range(4): a(mfma(acc(i, 0), WF[0] + 4 * i, XF))
    a("    s_setprio 3\n    s_mov_b32 s60, 0")
    a.label(f"L_{tag}_rdy")
    a(f"    ds_read_b32 v122, v120 offset:{O_RDY}\n    ds_read_b32 v123, v120 offset:{O_TAG}")
def rdy_check(tag, n):
    a(f"""    s_waitcnt lgkmcnt({n})
    v_cmp_eq_u32 vcc, 0, v122
    s_add_u32 s60, s60, 1
    s_cbranch_vccz L_{tag}_go
    s_cmp_lt_u32 s60, 0x400000
    s_cbranch_scc1 L_{tag}_rdy
L_{tag}_go:""")

a(f"""    v_bfe_u32 v6, v0, 2, 2            ; rho
    v_lshl_add_u32 v7, v3, 3, v6
    v_lshlrev_b32 v12, 7, v7
    v_and_b32 v7, 3, v0
    v_lshl_add_u32 v12, v7, 3, v12
    v_lshrrev_b32 v6, 1, v6
    v_and_b32 v7, 1, v3
    v_lshl_add_u32 v6, v7, 1, v6
    s_lshl_b32 s50, s{sNH}, 1
    v_xor_b32 v6, s50, v6
    v_lshl_add_u32 v12, v6, 5, v12
    v_add_u32 v12, 32768, v12
    v_xor_b32 v13, 32, v12
    s_lshl_b32 s50, s{sNH}, 7
    s_add_u32 s50, s50, {L_CS}
    v_lshl_add_u32 v4, v3, 4, s50
    s_lshl_b32 s51, s{sSH}, 11
    s_add_u32 s51, s51, {L_STAT}
    v_lshl_add_u32 v5, v2, 4, s51
    v_lshlrev_b32 v6, 4, v0
    s_lshl_b32 s50, s{sNT}, 1
    s_add_u32 s50, s50, s{sNH}
    s_lshl_b32 s50, s50, 17
    s_lshl_b32 s51, s{sM}, 14
    s_add_u32 s50, s50, s51
    s_lshl_b32 s51, s{sSH}, 11
    s_add_u32 s50, s50, s51
    s_add_u32 s50, s50, {WS_H}""")
main_loop(False, "cf")
if opt["fin"]:
    CG, RC, Z = 96, 112, 88
    for i in range(4): a(f"    ds_read_b128 {V(CG+4*i)}, v4 offset:{(i>>1)*256+(i&1)*64}")
    a(f"    ds_read_b128 {V(RC)}, v5")
    rdy_check("cf", 0)
    def mf(st, kk): return [mfma(acc(i, st), WF[kk] + 4 * i, (XF + 4 * st) if kk == 0 else 80 + 4 * (st & 1)) for i in range(4)]
    a(f"    ds_read_b128 {V(84)}, v9 offset:2048")
    for m_ in mf(0, 1): a(m_)
    for st in range(8):
        c0, c1 = P2(RC + 4 * (st & 1)), P2(RC + 2 + 4 * (st & 1))
        A = lambda i: P2(acc(0, st) + 2 * i)
        U = lambda i: P2(acc(2, st) + 2 * i)
        ZZ = lambda i: P2(Z + 2 * i)
        nx = st + 1
        a("    s_waitcnt lgkmcnt(0)")
        if nx < 8: a(f"    ds_read_b128 {V(RC+4*(nx&1))}, v5 offset:{nx*256}")
        if nx < 7: a(f"    ds_read_b128 {V(80+4*(st&1))}, v9 offset:{(nx+1)*2048}")
        if nx == 7:
            a(f"    s_mov_b64 exec, 1\n    ds_add_u32 v120, v121 offset:{O_REL}\n    s_mov_b64 exec, -1")
        if st == 0: a("    s_nop 4")
        for i in range(4): a(f"    v_pk_fma_f32 {A(i)}, {P2(CG+2*i)}, {c0}, {A(i)} op_sel_hi:[1,0,1]")
        for i in range(4): a(f"    v_pk_mul_f32 {ZZ(i)}, {A(i)}, {A(i)}")
        for i in range(4): a(f"    v_pk_fma_f32 {ZZ(i)}, {ZZ(i)}, {c1}, {c0} op_sel:[0,0,1] op_sel_hi:[1,0,1]")
        for i in range(4): a(f"    v_pk_mul_f32 {ZZ(i)}, {ZZ(i)}, {A(i)}")
        for i in range(4): a(f"    v_pk_fma_f32 {U(i)}, {P2(CG+8+2*i)}, {c0}, {U(i)} op_sel_hi:[1,0,1]")
        for i in range(4): a(f"    v_pk_mul_f32 {U(i)}, {U(i)}, {A(i)}")
        m0_ = mf(nx, 0) if nx < 8 else [None] * 4
        m1_ = mf(nx, 1) if nx < 8 else [None] * 4
        for i in range(4):
            if m0_[i]: a(m0_[i])
            a(f"    v_exp_f32 v{Z+2*i}, v{Z+2*i}\n    v_exp_f32 v{Z+2*i+1}, v{Z+2*i+1}")
        for i in range(8): a(f"    v_fma_f32 v{Z+i}, v{Z+i}, v{RC+3+4*(st&1)}, v{RC+3+4*(st&1)}")
        for i in range(4):
            if m1_[i]: a(m1_[i])
            a(f"    v_rcp_f32 v{Z+2*i}, v{Z+2*i}\n    v_rcp_f32 v{Z+2*i+1}, v{Z+2*i+1}")
        for i in range(4): a(f"    v_pk_mul_f32 {U(i)}, {U(i)}, {ZZ(i)}")
        for i in range(4): a(f"    v_cvt_pk_bf16_f32 v{acc(0,st)+i}, v{acc(2,st)+2*i}, v{acc(2,st)+2*i+1}")
        a(f"    buffer_store_dwordx4 {V(acc(0,st))}, v6, {S(SWS)}, s50 offen offset:{(st&1)*1024} sc1")
        if st & 1 and st < 7: a("    s_add_u32 s50, s50, 4096")
else:
    a(f"    ds_read_b128 {V(32)}, v5")
    for i in range(4): a(f"    ds_read_b128 {V(16+4*i)}, v4 offset:{(i>>1)*256+(i&1)*64}")
    for st in range(1, 8): a(f"    ds_read_b128 {V(32+4*st)}, v5 offset:{st*256}")
    rdy_check("cf", 7)
    for st in range(8):
        c0, c1 = P2(32 + 4 * st), P2(34 + 4 * st)
        if st == 1: a("    s_waitcnt lgkmcnt(0)")
        ob = 88 + 4 * (st & 1)
        TG = lambda i: 64 + 2 * i
        TU = lambda i: 72 + 2 * i
        Z = lambda i: 80 + 2 * i
        for i in range(4): a(f"    v_pk_fma_f32 {P2(TG(i))}, {P2(16+2*i)}, {c0}, {P2(acc(0,st)+2*i)} op_sel_hi:[1,0,1]")
        for i in range(4): a(f"    v_pk_mul_f32 {P2(Z(i))}, {P2(TG(i))}, {P2(TG(i))}")
        for i in range(4): a(f"    v_pk_fma_f32 {P2(Z(i))}, {P2(Z(i))}, {c1}, {c0} op_sel:[0,0,1] op_sel_hi:[1,0,1]")
        for i in range(4): a(f"    v_pk_mul_f32 {P2(Z(i))}, {P2(Z(i))}, {P2(TG(i))}")
        for i in range(4): a(f"    v_exp_f32 v{Z(i)}, v{Z(i)}\n    v_exp_f32 v{Z(i)+1}, v{Z(i)+1}")
        for i in range(4): a(f"    v_pk_fma_f32 {P2(TU(i))}, {P2(24+2*i)}, {c0}, {P2(acc(2,st)+2*i)} op_sel_hi:[1,0,1]")
        for i in range(4): a(f"    v_pk_fma_f32 {P2(Z(i))}, {P2(Z(i))}, {c1}, {c1} op_sel:[0,1,1] op_sel_hi:[1,1,1]")
        for i in range(4): a(f"    v_rcp_f32 v{Z(i)}, v{Z(i)}\n    v_rcp_f32 v{Z(i)+1}, v{Z(i)+1}")
        for i in range(4): a(f"    v_pk_mul_f32 {P2(TU(i))}, {P2(TU(i))}, {P2(TG(i))}")
        for i in range(4): a(f"    v_pk_mul_f32 {P2(TU(i))}, {P2(TU(i))}, {P2(Z(i))}")
        for i in range(4): a(f"    v_cvt_pk_bf16_f32 v{ob+i}, v{TU(i)}, v{TU(i)+1}")
        a(f"    buffer_store_dwordx4 {V(ob)}, v6, {S(SWS)}, s50 offen offset:{(st&1)*1024} sc1")
        if st & 1 and st < 7: a("    s_add_u32 s50, s50, 4096")
a("    s_branch L_cdone")

a.label("L_cdft")
a(f"""    s_lshl_b32 s50, s{sNH}, 12
    s_lshl_b32 s51, s{sSH}, 14
    s_sub_u32 s50, s50, s51
    s_add_u32 s50, s50, 32768
    v_add_u32 v12, s50, v8
    v_add_u32 v13, s50, v9
    s_lshl_b32 s51, s{sSH}, 9
    s_add_u32 s51, s51, {L_STAT}
    v_lshl_add_u32 v1, v3, 4, s51
    s_lshl_b32 s50, s{sNH}, 7
    s_add_u32 s50, s50, {L_CS}
    v_lshl_add_u32 v7, v2, 2, s50
    v_mul_u32_u24 v6, {4*81920}, v3
    v_lshl_add_u32 v6, v2, 4, v6
    s_lshl_b32 s50, s{sSH}, 3
    s_add_u32 s50, s50, s{sM}
    s_mul_i32 s50, s50, 5120
    s_sub_u32 s51, s{sNT}, 27
    s_lshl_b32 s51, s51, 1
    s_add_u32 s51, s51, s{sNH}
    s_lshl_b32 s51, s51, 9
    s_add_u32 s50, s50, s51
    s_add_u32 s50, s50, {WS_G}
    ; 32-point DFT fragments (row t1 = 16 th + (l & 15), s1 = 16 b + 4 (l >> 4) + 0..3): cos v80.., sin v88.., -cos v96..
    v_lshlrev_b32 v104, 2, v3""")
for th in range(2):
    a(f"    v_add_u32 v105, {16*th}, v2")
    for b in range(2):
        a(f"""    v_add_u32 v106, {16*b}, v104
    v_mul_u32_u24 v108, v106, v105
    v_add_u32 v109, v108, v105
    v_add_u32 v110, v109, v105
    v_add_u32 v111, v110, v105""")
        trig4(108, 80 + 4 * th + 2 * b, 88 + 4 * th + 2 * b, 31, 1 / 32, False)
for r in range(8): a(f"    v_xor_b32 v{96+r}, 0x80008000, v{80+r}")
main_loop(True, "cd")
for i in range(4): a(f"    ds_read_b32 v{8+i}, v7 offset:{(i>>1)*256+(i&1)*64}")
def rd_rows(st):
    a(f"    ds_read_b128 {V(16+4*st)}, v1 offset:{st*64}\n    ds_read_b128 {V(48+4*st)}, v1 offset:{1024+st*64}")
for st in range(4): rd_rows(st)
rdy_check("cd", 0)
for st in range(4, 8): rd_rows(st)
for et in range(2):
    for c in range(4):
        if et == 0 and c == 2: a("    s_waitcnt lgkmcnt(0)")
        for mat in range(2):
            i = 2 * mat + et
            cs = P2(8 + (i & ~1)); sel = "op_sel_hi:[1,0]" if (i & 1) == 0 else "op_sel:[0,1] op_sel_hi:[1,1]"
            q = [(st, p) for st in (2 * c, 2 * c + 1) for p in range(2)]
            for n, (st, p) in enumerate(q): a(f"    v_pk_mul_f32 {P2(104+2*n)}, {P2(48+4*st+2*p)}, {cs} {sel}")
            for n, (st, p) in enumerate(q): a(f"    v_pk_fma_f32 {P2(104+2*n)}, {P2(acc(i,st)+2*p)}, {P2(16+4*st+2*p)}, {P2(104+2*n)}")
            for n, (st, p) in enumerate(q): a(f"    v_cvt_pk_bf16_f32 v{acc(i,2*c)+n}, v{104+2*n}, v{105+2*n}")
def dreg(rnd, c, im): return acc(2 * im + (rnd & 1), 2 * c + 1)
def g_store(rnd, r):
    et, th = rnd >> 1, rnd & 1
    ob = 104 + 4 * (r & 1)
    return [f"    v_cvt_pk_bf16_f32 v{ob}, v{dreg(rnd,0,0)+r}, v{dreg(rnd,1,0)+r}",
            f"    v_cvt_pk_bf16_f32 v{ob+1}, v{dreg(rnd,2,0)+r}, v{dreg(rnd,3,0)+r}",
            f"    v_cvt_pk_bf16_f32 v{ob+2}, v{dreg(rnd,0,1)+r}, v{dreg(rnd,1,1)+r}",
            f"    v_cvt_pk_bf16_f32 v{ob+3}, v{dreg(rnd,2,1)+r}, v{dreg(rnd,3,1)+r}",
            f"    s_add_u32 s51, s50, {(16*th + r)*81920 + et*256}\n    buffer_store_dwordx4 {V(ob)}, v6, {S(SWS)}, s51 offen sc1"]
a("    s_nop 1")
for rnd in range(4):
    et, th = rnd >> 1, rnd & 1
    mf = []
    for c in range(4):
        mf.append(mfma(dreg(rnd, c, 0), 80 + 4 * th, acc(et, 2 * c), "0"))
        mf.append(mfma(dreg(rnd, c, 1), 88 + 4 * th, acc(et, 2 * c), "0"))
    for c in range(4):
        mf.append(mfma(dreg(rnd, c, 0), 88 + 4 * th, acc(2 + et, 2 * c)))
        mf.append(mfma(dreg(rnd, c, 1), 96 + 4 * th, acc(2 + et, 2 * c)))
    fill = sum((g_store(rnd - 1, r) for r in range(4)), []) if rnd else []
    for n, m_ in enumerate(mf):
        a(m_)
        if n >= 8 and fill:
            for o in fill[:3]: a(o)
            fill = fill[3:]
    for o in fill: a(o)
a("    s_nop 7")
for r in range(4):
    for o in g_store(3, r): a(o)

K2ON[0] = True
a.label("L_cdone")
stamp(2)
a(f"""    s_lshl_b32 s46, s{sM}, 5
    s_add_u32 s46, s46, s{sNT}
    s_lshl_b32 s46, s46, 7
    s_add_u32 s46, s46, {WS_FLAGS}
    v_mov_b32 v124, 0
    s_waitcnt vmcnt(0)
    s_mov_b64 exec, 1
    ds_add_rtn_u32 v122, v120, v121
    s_waitcnt lgkmcnt(0)
    v_cmp_eq_u32 vcc, 3, v122
    s_cbranch_vccz L_nofl
    buffer_store_dword v123, v124, {S(SWS)}, s46 offen sc1
L_nofl:
    s_mov_b64 exec, -1""")
stamp(3)
a(f"    s_setprio {opt['cp']}")
fin_addr(8)
for r in range(ACC2, 256): a(f"    v_mov_b32 v{r}, 0")
a(f"""    v_lshlrev_b32 v1, 4, v0
    s_lshl_b32 s50, s{sW}, 3
    s_cmp_eq_u32 s{sW}, 3
    s_cselect_b32 s50, 23, s50
    s_mul_i32 s55, s50, 5120
    v_add_u32 v3, s55, v1
    s_lshl_b32 s61, s50, 17
    s_lshl_b32 s62, s{sT1}, 12
    s_add_u32 s61, s61, s62
    s_add_u32 s61, s61, {WS_H}
    s_cmp_lt_u32 s{sW}, 2
    s_cselect_b32 s62, 8, 7
    s_cmp_ge_u32 s39, s62
    s_cselect_b32 s63, 0, s39""")
if not opt["rot2"]: a("    s_mov_b32 s63, 0")
lds_spin("cs1", O_S1, 1, 8, 9)
stamp(4); st3(0)
LA = opt['la']
def c_hload(st):
    h_load(48 + 16 * st, 63, "s62", oob=(f"    s_cmp_lt_u32 s{sW}, 2\n    s_cselect_b32 s52, s52, 0x40000000" if st == 7 else None))
a("    s_mov_b32 s58, s63")
for st in range(opt["h1st"] or LA): c_hload(st)
lds_spin("cwl", O_WL, 3, 8, 9)
def w_reads(st):
    b = 8 + 20 * (st & 1)
    a("    s_mul_i32 s52, s58, 5120\n    v_add_u32 v2, s52, v3")
    rot_next(58, "s62")
    for nb in range(5): a(f"    ds_read_b128 {V(b+4*nb)}, v2 offset:{nb*1024}")
w_reads(0)
for st in range(opt["h1st"] or LA, LA): c_hload(st)
if opt["il"]:
    for st in range(6):
        a(f"    s_waitcnt vmcnt({4 * min(LA - 1, 7 - st)}) lgkmcnt(0)")
        st3(1 + st)
        fill = capture(lambda: w_reads(st + 1))
        if st + LA < 8: fill += capture(lambda: c_hload(st + LA))
        k2_mfma(8 + 20 * (st & 1), 48 + 16 * st, fill)
else:
    for st in range(6):
        w_reads(st + 1)
        a(f"    s_waitcnt vmcnt({4 * min(LA - 1, 7 - st)}) lgkmcnt(5)")
        if PROF == 3: a("    s_waitcnt lgkmcnt(0)"); st3(1 + st)
        k2_mfma(8 + 20 * (st & 1), 48 + 16 * st)
        if st + LA < 8: c_hload(st + LA)
w_reads(7)
part_addr(56)
a(f"""    s_lshl_b32 s50, s{sW}, 2
    s_add_u32 s50, s50, {L_CNT + O_PF}
    v_mov_b32 v57, s50
    v_mov_b32 v58, 1
    s_waitcnt vmcnt(0) lgkmcnt(0)
    ds_write_b32 v57, v58
    v_add_u32 v2, s55, v56""")
tail(((8, 144), (28, 160)), 60)
st3(8)

a(f"""    s_mov_b32 s50, 3277
    s_lshl_b32 s51, s{sW}, 6
    s_add_u32 s51, s51, 1024
    v_add_u32 v64, s51, v0""")
item(64, 8, 9, 65)
a.label("L_final")
a(f"""    v_add_u32 v16, 81920, v4
    v_add_u32 v17, 81920, v5
    v_add_u32 v18, 81920, v8
    s_waitcnt lgkmcnt(0)""")
bar("R2")
stamp(6)
OST = ["", " sc1", " nt"][opt["ost"]]
def rd_item(va, vb, dst):
    for w in range(8):
        b = PBASE[w & 3] + (w >> 2) * 64 * PSTR
        r, o = (va, b) if b < 65536 else (vb, b - 81920)
        a(f"    ds_read_b64 {P2(dst+2*w)}, v{r} offset:{o}")
def sum_item(dst, t, vg):
    for w in range(0, 8, 2):
        for k in range(2):
            u = t + 4 * k if w == 0 else 20 + 4 * k
            for i in range(2): a(f"    v_lshlrev_b32 v{u+2*i}, 16, v{dst+2*(w+k)+i}\n    v_and_b32 v{u+1+2*i}, 0xffff0000, v{dst+2*(w+k)+i}")
        for k in range(4 if w else 0): a(f"    v_pk_add_f32 {P2(t+2*k)}, {P2(t+2*k)}, {P2(20+2*k)}")
    a(f"    v_pk_add_f32 {P2(t)}, {P2(t)}, {P2(t+4)}\n    v_pk_add_f32 {P2(t+2)}, {P2(t+2)}, {P2(t+6)}")
    a(f"    v_cvt_pk_bf16_f32 v{t+8}, v{t}, v{t+1}\n    v_cvt_pk_bf16_f32 v{t+9}, v{t+2}, v{t+3}")
    a(f"    buffer_store_dwordx2 {P2(t+8)}, v{vg}, {S(SOUT)}, s59 offen{OST}")
rd_item(4, 16, 64)
rd_item(5, 17, 80)
a(f"""    s_cmp_ge_u32 s{sW}, 4
    s_cbranch_scc1 L_fin2
    s_waitcnt lgkmcnt(8)""")
rd_item(8, 18, 96)
sum_item(64, 32, 6)
a("    s_waitcnt lgkmcnt(8)")
sum_item(80, 44, 7)
a("    s_waitcnt lgkmcnt(0)")
sum_item(96, 32, 9)
a("    s_branch L_fin3\nL_fin2:\n    s_waitcnt lgkmcnt(8)")
sum_item(64, 32, 6)
a("    s_waitcnt lgkmcnt(0)")
sum_item(80, 44, 7)
a("L_fin3:")
stamp(7)
a(f"""    s_cmp_lg_u32 s2, 0
    s_cbranch_scc1 L_noep
    s_cmp_lg_u32 s{sW}, 7
    s_cbranch_scc1 L_noep
    s_mov_b64 exec, -1
    v_lshlrev_b32 v8, 9, v0
    s_mov_b32 s50, {WS_EF}
    s_mov_b32 s60, 0
L_ep:
    buffer_load_dword v12, v8, {S(SWS)}, s50 offen sc1
    buffer_load_dword v13, v8, {S(SWS)}, s50 offen offset:128 sc1
    buffer_load_dword v14, v8, {S(SWS)}, s50 offen offset:256 sc1
    buffer_load_dword v15, v8, {S(SWS)}, s50 offen offset:384 sc1
    s_add_u32 s60, s60, 1
    s_waitcnt vmcnt(0)
    v_xor_b32 v12, s47, v12
    v_xor_b32 v13, s47, v13
    v_xor_b32 v14, s47, v14
    v_xor_b32 v15, s47, v15
    v_or3_b32 v12, v12, v13, v14
    v_or_b32 v12, v12, v15
    v_cmp_ne_u32 vcc, 0, v12
    s_cbranch_vccz L_epd
    s_sleep 4
    s_cmp_lt_u32 s60, 0x40000
    s_cbranch_scc1 L_ep
L_epd:
    v_mov_b32 v12, s47
    v_mov_b32 v13, 0
    s_mov_b32 s50, {WS_EPOCH}
    s_mov_b64 exec, 1
    buffer_store_dword v12, v13, {S(SWS)}, s50 offen sc1
L_noep:""")
if PROF:
    mk_ws()
    a(f"""    s_memrealtime s[88:89]
    s_waitcnt lgkmcnt(0)
    s_mov_b32 s99, s88
    s_lshl_b32 s50, s2, 3
    s_add_u32 s50, s50, s{sW}
    s_lshl_b32 s50, s50, 6
    s_add_u32 s50, s50, {WS_PROF}
    v_mov_b32 v7, 0
    s_mov_b64 exec, 1""")
    for k in range(10):
        a(f"    v_mov_b32 v6, s{90+k}\n    buffer_store_dword v6, v7, {S(SWS)}, s50 offen offset:{4*k}")
a.label("L_end")
a("    s_endpgm")
a('.section .rodata,"a"')
a(kd(NAME, 256, 102, 256))
open(sys.argv[1], "w").write(a.text())
```

```python
import sys, math, struct
from asmlib import *

NAME = "parallel_sum__spectral_fnet__geglu_ffn__prompt_kernel"
opt = dict(prof=0, xo=2, irot=1, rot2=1, la=3, nodma=0, wrot=1, thr=3, pslp=3, touch=0, pp=0, cp=0, slp=0, nt=0, ost=0, sch=8, ssch=1, pp2=0, h1st=0, ex=0, fin=1, map2=0, cpf=1, lnd=3, el=0, il=1, il2=1, rmap=0, es=0, wdnt=1, wdt=0, tch=0, sst=0)
for a_ in sys.argv[2:]:
    k, v = a_.split("="); assert k in opt, k; opt[k] = int(v)
PROF = opt["prof"]

WS_STATS, WS_FLAGS, WS_WF, WS_CSP, WS_H, WS_G = 0, 0x8000, 0x10000, 0x300000, 0x400000, 0xC00000
WS_EF, WS_F2, WS_EPOCH = 0x340000, 0x348000, 0x4800
WS_SIZE = 0x1000000
WS_PROF = 0xF80000
WFT = 54 * 5120
STG = 49152
L_SCR, L_STAT, L_CS, L_CNT = 147456, 157696, 161792, 162304
O_CNT, O_REL, O_RDY, O_LAND, O_WOK, O_TAG, O_S1, O_WL, O_PF = 0, 4, 8, 12, 16, 20, 24, 28, 32
PSTR = 176
K1C = 2.0 * math.sqrt(2.0 / math.pi) * math.log2(math.e)
K2C = K1C * 0.044715
def f2u(x): return struct.unpack("<I", struct.pack("<f", x))[0]

a = Asm()
HDR = open("parallel_sum__spectral_fnet__geglu_ffn__prompt.s.ref").read().split("; Override launch")[0]
a(HDR.rstrip())
a("; @launch grid=(256,1,1) block=(512,1,1) lds=163840")
a('.amdgcn_target "amdgcn-amd-amdhsa--gfx950"\n.text')
kernel_head(a, NAME)

SX, SWA, SWB, SWS, SWD, SOUT, SDBG = 4, 8, 12, 16, 20, 32, 36
sM, sNT, sW, sDFT, sT1, sJ2, sMI = 40, 41, 42, 43, 44, 45, 48
P_X, P_HRE, P_HIM, P_WG, P_WU, P_WD, P_OUT, P_DBG, P_WS = 64, 70, 72, 76, 78, 80, 82, 84, 86
def S(b): return f"s[{b}:{b+3}]"
def V(b, n=4): return f"v[{b}:{b+n-1}]"
def P2(r): return f"v[{r}:{r+1}]"
def mk_x(): srd(a, SX, P_X, 2621440)
def mk_ws(): srd(a, SWS, P_WS, WS_SIZE)
def mk_wd(): srd(a, SWD, P_WD, 1728 * 1280)
def mk_out(): srd(a, SOUT, P_OUT, 2621440)
def mk_dbg(): srd(a, SDBG, P_DBG, 256)
def st_txt(k): return f"    s_memtime s[88:89]\n    s_waitcnt lgkmcnt(0)\n    s_sub_u32 s{90+k}, s88, s100"
def stamp(k):
    if PROF == 1: a(st_txt(k))
    if PROF == 4 or (PROF == 6 and k == 7): a(f"    s_memrealtime s[88:89]\n    s_waitcnt lgkmcnt(0)\n    s_sub_u32 s{90+k}, s88, s100")
def st8(k):
    if PROF == 8: a(f"    s_memrealtime s[88:89]\n    s_waitcnt lgkmcnt(0)\n    s_sub_u32 s{90+k}, s88, s100")
def st3(k):
    if PROF == 3: a(st_txt(k))
def bar(name, k=None):
    a(f"    s_barrier            ; {name}")
    if PROF == 2 and k is not None: a(st_txt(k))
def mfma(d, x, y, c=None):
    if opt["ex"] == 21 and d >= 176 and K2ON[0]: return "    s_nop 0"
    return f"    v_mfma_f32_16x16x32_bf16 {V(d)}, {V(x)}, {V(y)}, {V(d) if c is None else c}"
ACC2 = 176
K2ON = [False]
_u = [0]
def uniq():
    _u[0] += 1
    return _u[0]
PBASE = [0, 40960, 81920, 117760]
def lds_spin(tag, off, target, va, vd):
    if isinstance(off, int): a(f"    v_mov_b32 v{va}, {L_CNT + off}")
    else: a(f"    v_mov_b32 v{va}, {off}")
    a(f"""    s_mov_b32 s60, 0
L_{tag}:
    ds_read_b32 v{vd}, v{va}
    s_add_u32 s60, s60, 1
    s_waitcnt lgkmcnt(0)
    v_cmp_gt_u32 vcc, {target}, v{vd}
    s_cbranch_vccz L_{tag}d
    s_sleep 1
    s_cmp_lt_u32 s60, 0x400000
    s_cbranch_scc1 L_{tag}
L_{tag}d:""")
def lds_add(off, va, vd):
    a(f"""    v_mov_b32 v{va}, {L_CNT + off}
    v_mov_b32 v{vd}, 1
    s_mov_b64 exec, 1
    ds_add_u32 v{va}, v{vd}
    s_mov_b64 exec, -1""")
def poll(tag, vaddr, soff, vd, cmp, slp):
    a(f"""    s_mov_b32 s60, 0
L_{tag}:
    buffer_load_dword v{vd}, v{vaddr}, {S(SWS)}, {soff} offen sc1
    s_add_u32 s60, s60, 1
    s_waitcnt vmcnt(0)
    v_cmp_ne_u32 vcc, {cmp}, v{vd}
    s_cbranch_vccz L_{tag}d
    s_sleep {slp}
    s_cmp_lt_u32 s60, 0x40000
    s_cbranch_scc1 L_{tag}
L_{tag}d:""")
def rot_next(c, n):
    a(f"    s_add_u32 s{c}, s{c}, 1\n    s_cmp_eq_u32 s{c}, {n}\n    s_cselect_b32 s{c}, 0, s{c}")
def k2_setup():
    a(f"""    v_lshlrev_b32 v1, 4, v0
    s_mul_i32 s24, s{sJ2}, {WFT}
    s_add_u32 s24, s24, {WS_WF}
    s_mul_i32 s28, s39, {3 if opt['map2'] else 4}
    s_lshr_b32 s28, s28, 2
    s_add_u32 s28, s28, s29
    s_cmp_ge_u32 s28, 6
    s_cselect_b32 s30, 6, 0
    s_sub_u32 s28, s28, s30""")
    if not opt["rot2"]: a("    s_mov_b32 s28, 0")
    a(f"""    s_mul_i32 s26, s49, 6
    s_add_u32 s26, s26, 30
    s_mul_i32 s25, s26, 5120
    s_add_u32 s25, s25, s24
    s_lshl_b32 s26, s26, 17
    s_lshl_b32 s27, s{sT1}, 12
    s_add_u32 s26, s26, s27
    s_add_u32 s26, s26, {WS_H}
    s_mov_b32 s27, s28""")
def own_slot(sl):
    a("    s_mul_i32 s30, s27, 5120\n    s_add_u32 s30, s30, s25\n    s_add_u32 s31, s30, 4096")
    for nb in range(5):
        if nb < 4: a(f"    buffer_load_dwordx4 {V(8+20*sl+4*nb)}, v1, {S(SWS)}, s30 offen offset:{nb*1024} sc1")
        else: a(f"    buffer_load_dwordx4 {V(8+20*sl+4*nb)}, v1, {S(SWS)}, s31 offen sc1")
    rot_next(27, 6)
def own_w(s0, s1, thr=0):
    for sl in range(s0, s1):
        if thr: a(f"    s_waitcnt vmcnt({thr})")
        own_slot(sl)
def x_init_load():
    mk_x()
    a(f"""    v_and_b32 v2, 15, v0
    v_lshlrev_b32 v2, 6, v2
    v_add_u32 v2, s{sT1}, v2
    v_mul_u32_u24 v2, 1280, v2
    v_lshrrev_b32 v3, 4, v0
    v_lshl_add_u32 v2, v3, 3, v2
    s_and_b32 s30, s49, 1
    s_mul_i32 s30, s30, {1024*1280}
    s_lshr_b32 s31, s49, 1
    s_mul_i32 s31, s31, {32*1280}
    s_add_u32 s30, s30, s31
    s_mul_i32 s31, s{sJ2}, 160
    s_add_u32 s30, s30, s31""")
    for nb in range(5):
        a(f"    buffer_load_dwordx2 {P2(160+2*nb)}, v2, {S(SX)}, s30 offen offset:{32*nb}")
def trig4(t, d_cos, d_sin, mask, scale, neg):
    for i in range(4): a(f"    v_and_b32 v{t+i}, {mask}, v{t+i}")
    for i in range(4): a(f"    v_cvt_f32_u32 v{t+i}, v{t+i}")
    for i in range(4): a(f"    v_mul_f32 v{t+i}, {f2u(scale):#x}, v{t+i}")
    for i in range(4): a(f"    v_cos_f32 v{t+4+i}, v{t+i}")
    for i in range(4): a(f"    v_sin_f32 v{t+i}, {'-' if neg else ''}v{t+i}")
    a(f"""    v_cvt_pk_bf16_f32 v{d_cos}, v{t+4}, v{t+5}
    v_cvt_pk_bf16_f32 v{d_cos+1}, v{t+6}, v{t+7}
    v_cvt_pk_bf16_f32 v{d_sin}, v{t}, v{t+1}
    v_cvt_pk_bf16_f32 v{d_sin+1}, v{t+2}, v{t+3}""")

def trig_rows(young):
    a(f"""    s_cmp_ge_u32 s{sJ2}, 4
    s_cselect_b32 s58, -1, 0
    s_and_b32 s57, s58, 1
    v_and_b32 v2, 15, v0
    v_lshlrev_b32 v144, 6, v2
    v_add_u32 v144, s{sT1}, v144
    v_lshrrev_b32 v3, 4, v0
    s_lshl_b32 s52, s49, 4
    v_lshl_add_u32 v145, v3, 2, s52""")
    for ts in range(4):
        a(f"""    v_add_u32 v146, {1024*(ts&1) + 32*(ts>>1)}, v144
    v_xor_b32 v146, s58, v146
    v_add_u32 v146, s57, v146
    v_and_b32 v146, 2047, v146
    v_mul_u32_u24 v148, v146, v145
    v_add_u32 v149, v148, v146
    v_add_u32 v150, v149, v146
    v_add_u32 v151, v150, v146""")
        trig4(148, 128 + 4 * ts, 130 + 4 * ts, 2047, 1 / 2048, True)
    for r in range(ACC2, 256): a(f"    v_mov_b32 v{r}, 0")
    u = uniq()
    a(f"    s_waitcnt vmcnt({young})")
    for ts in range(4):
        a(f"    s_cmp_lg_u32 s49, {ts}\n    s_cbranch_scc1 L_xi{u}_{ts}")
        for nb in range(5):
            d = ACC2 + 4 * (nb * 4 + ts); x = 160 + 2 * nb
            a(f"""    v_lshlrev_b32 v{d}, 16, v{x}
    v_and_b32 v{d+1}, 0xffff0000, v{x}
    v_lshlrev_b32 v{d+2}, 16, v{x+1}
    v_and_b32 v{d+3}, 0xffff0000, v{x+1}""")
        a(f"L_xi{u}_{ts}:")

def w_touch(j, two, va, vd, sa):
    a(f"""    v_lshrrev_b32 v{va}, 5, v0
    v_mul_u32_u24 v{va}, {1728 - 32}, v{va}
    v_add_u32 v{va}, v{va}, v0
    s_lshr_b32 s{sa}, s2, 2
    s_mul_i32 s{sa}, s{sa}, 27
    s_bfe_u32 s{sa+1}, s2, 0x10001
    s_mul_i32 s{sa+1}, s{sa+1}, {5*1728}
    s_add_u32 s{sa}, s{sa}, s{sa+1}
    s_add_u32 s{sa}, s{sa}, {j*1728}
    v_add_u32 v{va}, s{sa}, v{va}
    v_lshlrev_b32 v{va}, 7, v{va}
    s_bitcmp1_b32 s2, 0
    s_cselect_b32 s{sa}, s{P_WU}, s{P_WG}
    s_cselect_b32 s{sa+1}, s{P_WU+1}, s{P_WG+1}
    s_mov_b32 exec_lo, 0x07ffffff
    s_mov_b32 exec_hi, {'0x07ffffff' if two else '0'}
    global_load_dword v{vd}, v{va}, s[{sa}:{sa+1}]
    s_mov_b64 exec, -1""")
RMAP = f"""    s_sub_u32 s50, s36, 24
    s_lshl_b32 s50, s50, 2
    s_lshr_b32 s50, 0x72651043, s50
    s_and_b32 s50, s50, 15
    s_add_u32 s50, s50, 24
    s_cmp_ge_u32 s36, 24
    s_cselect_b32 s{sNT}, s50, s{sNT}
""" if opt["rmap"] else ""
MAP2 = f"""    s_mov_b32 s38, s{sJ2}
    s_lshl_b32 s{sT1}, s47, 3
    s_bfe_u32 s29, s2, 0x30003
    s_add_u32 s{sT1}, s{sT1}, s29
    s_lshr_b32 s39, s2, 6
    s_and_b32 s{sJ2}, s46, 1
    s_lshl_b32 s{sJ2}, s{sJ2}, 2
    s_add_u32 s{sJ2}, s{sJ2}, s39
    s_lshl_b32 s39, s39, 1""" if opt["map2"] else f"""    s_mov_b32 s38, s{sJ2}
    s_mov_b32 s39, s{sJ2}
    s_mov_b32 s29, s{sMI}
    s_lshl_b32 s{sT1}, s46, 2
    s_add_u32 s{sT1}, s{sT1}, s{sMI}"""
a(f"""    s_cmp_ge_u32 s2, 256
    s_cbranch_scc1 L_end
    s_load_dwordx16 s[64:79], s[0:1], 0
    s_load_dwordx8 s[80:87], s[0:1], 64""")
if PROF:
    a("    s_memtime s[100:101]" if PROF not in (4, 6, 8) else "    s_memrealtime s[100:101]")
    for k in range(10): a(f"    s_mov_b32 s{90+k}, 0")
a(f"""    v_lshrrev_b32 v1, 6, v0
    v_and_b32 v0, 63, v0
    v_readfirstlane_b32 s{sW}, v1
    s_and_b32 s46, s2, 7
    s_lshr_b32 s47, s2, 3
    s_and_b32 s{sM}, s46, 1
    s_lshl_b32 s{sM}, s{sM}, 2
    s_and_b32 s{sMI}, s47, 3
    s_add_u32 s{sM}, s{sM}, s{sMI}
    s_lshr_b32 s{sJ2}, s47, 2
    s_lshl_b32 s{sNT}, s{sJ2}, 2
    s_lshr_b32 s47, s46, 1             ; n-group g
    s_add_u32 s{sNT}, s{sNT}, s47
    s_mov_b32 s36, s{sNT}              ; slot 4 j + g
{RMAP}{MAP2}
    s_cmp_ge_u32 s{sNT}, 27
    s_cselect_b32 s{sDFT}, 1, 0
    s_cmp_lt_u32 s{sW}, 4
    s_cbranch_scc1 L_cons
    s_setprio 3
    s_sub_u32 s49, s{sW}, 4
    s_cmp_eq_u32 s{sW}, 7
    s_cbranch_scc1 L_serv
    v_lshrrev_b32 v2, 3, v0
    v_and_b32 v3, 7, v0
    v_lshrrev_b32 v5, 1, v2
    s_lshl_b32 s63, s47, 2
    s_lshr_b32 s63, {[0, 0x3210, 0x8530][opt['xo']]:#x}, s63
    s_and_b32 s63, s63, 15
    s_and_b32 s62, s46, 1
    s_mul_i32 s62, s62, 5
    s_add_u32 s63, s63, s62
    s_cmp_ge_u32 s63, 10
    s_cselect_b32 s62, 10, 0
    s_sub_u32 s63, s63, s62
    s_cmp_eq_u32 s{sW}, 6
    s_cbranch_scc1 L_prodw
    v_mul_u32_u24 v4, 81920, v2
    v_xor_b32 v3, v3, v5
    v_lshl_add_u32 v8, v3, 4, v4
    v_xor_b32 v9, 64, v8
    s_lshl_b32 s50, s49, 5
    s_lshl_b32 s51, s{sM}, 2
    s_add_u32 s50, s50, s51
    s_mul_i32 s50, s50, 1280
    s_lshl_b32 s52, s63, 7
    s_add_u32 s50, s50, s52
    s_lshl_b32 s51, s49, 14
    s_lshl_b32 s57, s38, 1""")
if not opt["irot"]: a("    s_mov_b32 s57, 0")
a(f"""    s_lshl_b32 s53, s57, 10
    s_mov_b32 s54, 0x3fff
    s_mov_b32 s55, 0
    s_mov_b32 s56, 128
    s_mov_b32 s62, 1280
    s_waitcnt lgkmcnt(0)""")
st8(0)
srd(a, SWA, P_X, 2621440); srd(a, SWB, P_X, 2621440)
def dma(n, isw=0):
    a(f"""    s_add_u32 m0, s51, s53
    s_add_u32 s53, s53, 1024
    s_and_b32 s53, s53, s54""")
    if not opt["nodma"]: a(f"    buffer_load_dwordx4 v{128+n}, {S(SWA if n < 8 else SWB)}, s50 offen{' nt' if opt['nt'] >> isw & 1 else ''} lds")
for n in range(16):
    a(f"""    s_add_u32 s52, s57, {n}
    s_and_b32 s58, s52, 3
    s_mul_i32 s58, s58, {512*1280}
    s_bfe_u32 s52, s52, 0x20002
    s_mul_i32 s52, s52, 1280
    s_add_u32 s52, s52, s58
    v_add_u32 v{128+n}, s52, v{8 + (n & 1)}""")
    dma(n)
a(f"""    s_branch L_pfirst
L_prodw:
    s_mov_b32 s51, 32768
    s_lshl_b32 s57, s{sMI}, 1""")
if not opt["irot"]: a("    s_mov_b32 s57, 0")
a(f"""    s_lshl_b32 s53, s57, 10
    s_mov_b32 s54, 0x1fff
    s_mov_b32 s55, 8192
    s_cmp_eq_u32 s{sDFT}, 1
    s_cbranch_scc1 L_prodw_dft
    v_mul_u32_u24 v4, 3456, v2
    v_and_b32 v5, 1, v5
    v_lshlrev_b32 v5, 1, v5
    v_xor_b32 v3, v3, v5
    v_lshl_add_u32 v8, v3, 4, v4
    v_xor_b32 v9, 64, v8
    s_lshl_b32 s50, s{sNT}, 7
    s_mov_b32 s58, {8*3456}
    s_mov_b32 s56, {64*3456}
    s_waitcnt lgkmcnt(0)""")
st8(0)
srd(a, SWA, P_WG, 640 * 3456); srd(a, SWB, P_WU, 640 * 3456)
a(f"""    s_branch L_prodw_go
L_prodw_dft:
    v_mul_u32_u24 v4, 1280, v2
    v_xor_b32 v3, v3, v5
    v_lshl_add_u32 v8, v3, 4, v4
    v_xor_b32 v9, 64, v8
    s_sub_u32 s50, s{sNT}, 27
    s_lshl_b32 s50, s50, 6
    s_add_u32 s50, s50, 1
    s_mul_i32 s50, s50, 1280
    s_mov_b32 s58, {8*1280}
    s_mov_b32 s56, 128
    s_waitcnt lgkmcnt(0)""")
srd(a, SWA, P_HRE, 640 * 1280); srd(a, SWB, P_HIM, 640 * 1280)
a(f"""L_prodw_go:
    s_mul_i32 s52, s63, s56
    s_add_u32 s50, s50, s52
    s_mul_i32 s62, s56, 10""")
for n in range(8):
    a(f"""    s_add_u32 s52, s57, {n}
    s_and_b32 s52, s52, 7
    s_mul_i32 s52, s52, s58
    v_add_u32 v{128+n}, s52, v{8 + (n & 1)}
    v_add_u32 v{136+n}, s52, v{8 + (n & 1)}""")
    dma(n, 1)
a("    s_add_u32 s51, s51, s55")
for n in range(8, 16): dma(n, 1)
a.label("L_pfirst")
st8(1)
mk_ws()
k2_setup()
a(f"""    v_mov_b32 v144, {L_CNT}
    s_mov_b32 s60, 0
    s_branch L_pnext
L_ploop:""")
if opt["nt"] in (1, 2):
    a(f"    s_cmp_eq_u32 s{sW}, 6\n    s_cbranch_scc0 L_ploopx")
    for n in range(16):
        if n == 8: a("    s_add_u32 s51, s51, s55")
        dma(n, 1)
    a("    s_branch L_pnext\nL_ploopx:")
for n in range(16):
    if n == 8: a("    s_add_u32 s51, s51, s55")
    dma(n)
a(f"""L_pnext:
    s_sub_u32 s51, s51, s55
    s_add_u32 s50, s50, s56
    s_add_u32 s63, s63, 1
    s_cmp_eq_u32 s63, 10
    s_cselect_b32 s63, 0, s63
    s_cselect_b32 s52, s62, 0
    s_sub_u32 s50, s50, s52
    s_add_u32 s51, s51, {STG}
    s_cmp_ge_u32 s51, {3*STG}
    s_cselect_b32 s52, {3*STG}, 0
    s_sub_u32 s51, s51, s52
    s_add_u32 s60, s60, 1
    s_cmp_lt_u32 s60, 2
    s_cbranch_scc1 L_ploop
    s_waitcnt vmcnt(16)
    s_barrier
    s_cmp_lt_u32 s60, 10
    s_cbranch_scc1 L_ploop""")
stamp(0); st8(2)
def wpart(start, cnt, thr=0):
    a(f"""    s_mul_i32 s50, s49, {cnt*1024}
    s_add_u32 s50, s50, {start*1024}
    s_and_b32 s51, s29, 3
    s_lshl_b32 s51, s51, 12""")
    if not opt["wrot"]: a("    s_mov_b32 s51, 0")
    for g in range(4):
        if thr: a(f"    s_waitcnt vmcnt({thr})")
        a(f"""    s_add_u32 m0, s50, s51
    s_add_u32 s52, m0, s24
    s_add_u32 s51, s51, 4096
    s_and_b32 s51, s51, 0x3fff""")
        for i in range(4):
            a(f"    buffer_load_dwordx4 v1, {S(SWS)}, s52 offen offset:{i*1024} sc1 lds")
    if cnt > 16:
        a(f"    s_add_u32 m0, s50, 16384\n    s_add_u32 s52, m0, s24")
        for i in range(cnt - 16):
            a(f"    buffer_load_dwordx4 v1, {S(SWS)}, s52 offen offset:{i*1024} sc1 lds")
T = opt["thr"]
if opt["lnd"]:
    a(f"""    v_mov_b32 v144, {L_CNT}
{'' if opt['el'] else '    s_sleep %d' % opt['lnd']}
    ds_read_b32 v145, v144 offset:{O_WOK}
    s_waitcnt lgkmcnt(0)
    v_cmp_eq_u32 vcc, 0, v145
    s_cbranch_vccnz L_lnd0""")
    own_slot(0); own_slot(1)
    a("    s_waitcnt vmcnt(10)")
    lds_add(O_LAND, 144, 145)
    a("    s_branch L_lnd1\nL_lnd0:")
a("    s_waitcnt vmcnt(0)")
lds_add(O_LAND, 144, 145)
lds_spin("wok", O_WOK, 1, 144, 145)
if opt["lnd"]:
    own_slot(0); own_slot(1)
    a("L_lnd1:")
SCH = ["A o0 o1 r4 B X t o2 r8 o3 dr u C o4 o5 T",
       "A o0 o1 r4 B X o2 r8 t C o3 o4 o5 T",
       "A o0 o1 r4 B X r8 t C o2 dr u o3 o4 o5 T",
       "A o0 r4 B X o1 r8 t o2 C dr u o3 o4 o5 T",
       "A o0 o1 r4 B X r8 dr C o2 o3 o4 o5 T",
       "A o0 o1 r4 B X o2 r8 C o3 o4 o5 T",
       "A X o0 o1 r4 B r8 t C o2 o3 T dr u o4 o5",
       "A o0 o1 r4 B X t o2 r8 o3 pd u C o4 o5 T",
       "A o0 o1 r4 B X r8 pd C o2 o3 o4 o5 T",
       "A X o0 r8 pd B C o1 o2 o3 o4 o5 W25 T",
       "A X o0 o1 r8 pd B C o2 o3 o4 o5 W20 T",
       "A X r4 B r8 pd C o0 o1 o2 o3 o4 o5 W30 T",
       "A X o0 r8 T pd B C o1 o2 o3 o4 o5 W25",
       "A X r8 pd B C o0 o1 o2 o3 o4 o5 W30 T"][opt["sch"]]
def run_sched(sch, tag):
    thr = 0; young = None
    for tok in sch.split():
        n = 0
        if tok == "t": thr = T
        elif tok == "u": thr = 0
        elif tok == "A": wpart(48, 16, thr); n = 16
        elif tok == "B": a("    s_waitcnt vmcnt(40)"); wpart(96, 18, thr); n = 18
        elif tok == "C": a("    s_waitcnt vmcnt(40)"); wpart(0, 16, thr); n = 16
        elif tok == "X": x_init_load(); young = 0
        elif tok[0] == "o": own_w(int(tok[1]), int(tok[1]) + 1, thr); n = 5
        elif tok == "r4": lds_spin(tag + "r4", O_REL, 4, 144, 145)
        elif tok == "r8":
            lds_spin(tag + "r8", O_REL, 8, 144, 145); stamp(1); a("    s_setprio 0")
        elif tok == "dr": lds_spin(tag + "dr", O_CNT, 4, 144, 145)
        elif tok == "pd":
            a(f"    s_cmp_eq_u32 s{sDFT}, 1\n    s_cbranch_scc1 L_{tag}pdd")
            lds_spin(tag + "pd", O_CNT, 4, 144, 145)
        elif tok == "p0": a("    s_setprio 0")
        elif tok[0] == "W":
            a(f"    s_waitcnt vmcnt({tok[1:]})"); lds_add(O_WL, 144, 145)
        elif tok == "T": trig_rows(min(young, 63))
        if young is not None: young += n
if opt["lnd"]: SCH = SCH.replace("o0 ", "").replace("o1 ", "")
run_sched(SCH, "p")
a("    s_branch L_pown")

a.label("L_serv")
a(f"""    s_lshr_b32 s53, s2, 2
    s_and_b32 s54, s2, 3
    s_mul_i32 s51, s53, {32*1280}
    s_mul_i32 s52, s54, 320
    s_add_u32 s51, s51, s52
    s_cmp_ge_u32 s2, 216
    s_cselect_b32 s51, 0x40000000, s51
    s_mov_b32 s56, 3277""")
for q in range(10):
    a(f"""    v_add_u32 v6, {64*q}, v0
    v_mul_u32_u24 v7, s56, v6
    v_lshrrev_b32 v7, 16, v7
    v_mul_u32_u24 v8, 20, v7
    v_sub_u32 v6, v6, v8
    v_mul_u32_u24 v7, 1280, v7
    v_lshl_add_u32 v{88+q}, v6, 4, v7""")
a(f"""    ; column sums: k32-step (m & 1) of matrix (m >> 1) & 1 in the first five stages, on the matrix core
    v_mov_b32 v60, 0x3f803f80
    v_mov_b32 v61, v60
    v_mov_b32 v62, v60
    v_mov_b32 v63, v60
    v_lshrrev_b32 v3, 4, v0
    v_bfe_u32 v6, v0, 2, 2                ; rho
    v_and_b32 v7, 3, v0                   ; gamma
    v_lshl_add_u32 v15, v3, 2, v6
    v_mul_u32_u24 v15, 320, v15
    v_lshl_add_u32 v15, v7, 3, v15
    v_add_u32 v15, {L_SCR}, v15
    s_and_b32 s57, s{sMI}, 1
    s_lshr_b32 s58, s{sMI}, 1
    s_lshl_b32 s52, s58, 13
    s_add_u32 s52, s52, 32768
    s_cmp_eq_u32 s{sDFT}, 1
    s_cbranch_scc1 L_sa_d
    v_lshl_add_u32 v5, v3, 3, v6
    v_lshlrev_b32 v5, 7, v5
    v_lshl_add_u32 v5, v7, 3, v5
    v_lshrrev_b32 v6, 1, v6
    v_and_b32 v7, 1, v3
    v_lshl_add_u32 v6, v7, 1, v6
    v_lshl_add_u32 v5, v6, 5, v5
    s_lshl_b32 s57, s57, 12
    s_add_u32 s52, s52, s57
    v_add_u32 v16, s52, v5
    v_xor_b32 v17, 32, v16
    v_xor_b32 v18, 64, v16
    v_xor_b32 v19, 96, v16
    s_branch L_sa_e
L_sa_d:
    s_lshl_b32 s57, s57, 2
    v_add_u32 v7, s57, v3
    v_bfe_u32 v6, v0, 1, 3
    v_xor_b32 v7, v7, v6
    v_and_b32 v6, 15, v0
    v_lshlrev_b32 v5, 7, v6
    v_lshl_add_u32 v5, v7, 4, v5
    v_add_u32 v16, s52, v5
    v_add_u32 v17, 2048, v16
    v_add_u32 v18, 4096, v16
    v_add_u32 v19, 6144, v16
L_sa_e:
    v_lshlrev_b32 v1, 4, v0
    v_lshlrev_b32 v9, 2, v0
    v_add_u32 v9, {L_CNT}, v9
    v_mov_b32 v7, 0
    s_mov_b64 exec, 0xffff
    ds_write_b32 v9, v7
    s_mov_b64 exec, -1
    v_mov_b32 v10, {L_CNT}
    v_mov_b32 v11, 1""")
for r in range(144, 160): a(f"    v_mov_b32 v{r}, 0")
a("    s_waitcnt lgkmcnt(0)")
mk_ws()
a(f"""    s_mov_b32 s47, {WS_EPOCH}
    buffer_load_dword v137, v7, {S(SWS)}, s47 offen sc1""")
if opt["cpf"]:
    a(f"""    s_getpc_b64 s[60:61]
L_pc:
    s_sub_u32 s60, s60, L_pc - {NAME}
    s_subb_u32 s61, s61, 0
    s_lshr_b32 s52, s2, 3
    s_lshl_b32 s52, s52, 10
    v_lshlrev_b32 v6, 7, v0
    v_add_u32 v6, s52, v6
    v_min_u32 v6, L_end - {NAME}, v6
    s_mov_b64 exec, 0xff
    global_load_dword v138, v6, s[60:61]
    s_mov_b64 exec, -1""")
mk_wd()
def cs_pass(j):
    if opt["ex"] == 11: return
    a(f"    s_cmp_eq_u32 s{sDFT}, 1\n    s_cbranch_scc1 L_cs{j}_d")
    for i in range(4):
        a(f"    ds_read_b64_tr_b16 {P2(64+4*i)}, v{16+i}")
        a(f"    ds_read_b64_tr_b16 {P2(66+4*i)}, v{16+i} offset:512")
    a(f"    s_branch L_cs{j}_e\nL_cs{j}_d:")
    for i in range(4): a(f"    ds_read_b128 {V(64+4*i)}, v{16+i}")
    d = STG if j % 3 != 2 else -2 * STG
    a(f"L_cs{j}_e:\n    s_mov_b32 s52, {d}")
    for i in range(4): a(f"    v_add_u32 v{16+i}, s52, v{16+i}")
    a("    s_waitcnt lgkmcnt(0)")
    for i in range(4 if opt["ex"] != 10 else 0): a(mfma(144 + 4 * i, 64 + 4 * i, 60))
SST = opt["sst"]
def s_rows():
    a(f"""    v_lshrrev_b32 v2, 3, v0
    v_lshrrev_b32 v4, 2, v2
    v_lshlrev_b32 v4, 5, v4
    v_and_b32 v5, 3, v2
    v_add_u32 v4, v4, v5
    v_mul_u32_u24 v4, 1280, v4
    v_and_b32 v5, 7, v0
    v_lshl_add_u32 v4, v5, 4, v4
    s_lshl_b32 s60, s{sNT}, 6
    s_lshl_b32 s52, s{sM}, 2
    s_add_u32 s60, s60, s52
    s_mul_i32 s60, s60, 1280""")
    mk_x()
def s_load():
    for j in range(10): a(f"    buffer_load_dwordx4 {V(20+4*j)}, v4, {S(SX)}, s60 offen offset:{j*128}")
def s_init():
    a("""    v_lshlrev_b32 v136, 16, v20
    s_nop 1
    v_mov_b32_dpp v136, v136 quad_perm:[0,0,0,0] row_mask:0xf bank_mask:0xf
    s_nop 1
    v_mov_b32_dpp v136, v136 row_half_mirror row_mask:0xf bank_mask:0xa""")
    for r in range(80, 88): a(f"    v_mov_b32 v{r}, 0")
def s_chunk(i0, i1):
    for g in range(i0, i1, 2):
        for i in (g, g + 1): a(f"    v_lshlrev_b32 v{128+2*(i&1)}, 16, v{20+i}\n    v_and_b32 v{129+2*(i&1)}, 0xffff0000, v{20+i}")
        for t in range(4): a(f"    v_sub_f32 v{128+t}, v{128+t}, v136")
        for t in range(4): a(f"    v_add_f32 v{80+t}, v{80+t}, v{128+t}")
        for t in range(4): a(f"    v_fmac_f32 v{84+t}, v{128+t}, v{128+t}")
def s_fin():
    a("""    v_add_f32 v80, v80, v81
    v_add_f32 v84, v84, v85
    v_add_f32 v82, v82, v83
    v_add_f32 v86, v86, v87
    v_add_f32 v80, v80, v82
    v_add_f32 v84, v84, v86""")
    for mode in ("quad_perm:[1,0,3,2]", "quad_perm:[2,3,0,1]", "row_half_mirror"):
        a("    s_nop 1")
        for r in (80, 84): a(f"    v_add_f32_dpp v{r}, v{r}, v{r} {mode} row_mask:0xf bank_mask:0xf")
    a(f"""    v_mul_f32 v80, {f2u(1/640):#x}, v80
    v_mov_b32 v83, {f2u(1e-5):#x}
    v_fmac_f32 v83, {f2u(1/640):#x}, v84
    v_add_f32 v82, v80, v136
    v_fma_f32 v83, -v80, v80, v83
    v_max_f32 v83, {f2u(1e-5):#x}, v83
    s_lshl_b32 s60, s{sM}, 8
    s_add_u32 s60, s60, s{sNT}
    s_lshl_b32 s60, s60, 3
    v_lshlrev_b32 v2, 8, v2
    s_mov_b32 exec_lo, 0x01010101
    s_mov_b32 exec_hi, 0x01010101
    buffer_store_dwordx2 v[82:83], v2, {S(SWS)}, s60 offen sc1
    s_mov_b64 exec, -1""")
k2_setup()
if SST: s_rows()
if SST == 2: s_load()
bar("B_-1", 0)
j0 = 3 if opt["tch"] & 2 else 2
if opt["tch"] & 4: w_touch(j0, 1, 2, 4, 60)
cs_pass(0)
if SST == 1: s_load()
def wd_dma():
    for q in range(10):
        a(f"    s_mov_b32 m0, {L_SCR + q*1024}\n    s_nop 0\n    buffer_load_dwordx4 v{88+q}, {S(SWD)}, s51 offen{' nt' if opt['wdnt'] else ''} lds")
if opt["wdt"] == 0 and opt["ex"] not in (12, 13): wd_dma()
bar("B_0", 1)
if opt["tch"] & 4 and j0 == 2: w_touch(4, 0, 2, 4, 60)
cs_pass(1)
if opt["wdt"] == 1: wd_dma()
if SST:
    a(f"    s_waitcnt vmcnt({10 if opt['wdt'] == 1 else 0})")
    s_init(); s_chunk(0, 10)
bar("B_1", 2)
cs_pass(2)
if SST: s_chunk(10, 22)
def wf_read():
    a(f"""    s_waitcnt vmcnt(0)
    v_add_u32 v137, 1, v137
    ds_write_b32 v10, v137 offset:{O_TAG}
    v_readfirstlane_b32 s47, v137""")
    for jj in range(2):
        for nb in range(5):
            r = 88 + 4 * (5 * jj + nb); o = jj * 160 + nb * 32
            a(f"    ds_read_b64_tr_b16 v[{r}:{r+1}], v15 offset:{o}")
            a(f"    ds_read_b64_tr_b16 v[{r+2}:{r+3}], v15 offset:{o+5120}")
    a(f"""    s_mul_i32 s51, s54, {2*WFT}
    s_mul_i32 s52, s53, 5120
    s_add_u32 s51, s51, s52
    s_add_u32 s51, s51, {WS_WF}
    s_cmp_ge_u32 s2, 216
    s_cselect_b32 s51, 0x40000000, s51
    s_waitcnt lgkmcnt(0)""")
def wf_store(jj):
    if opt["ex"] in (12, 14): return
    for nb in range(5):
        r = 88 + 4 * (5 * jj + nb)
        if nb == 4:
            a(f"    s_add_u32 s52, s51, 4096\n    buffer_store_dwordx4 {V(r)}, v1, {S(SWS)}, s52 offen sc1")
        else:
            a(f"    buffer_store_dwordx4 {V(r)}, v1, {S(SWS)}, s51 offen offset:{nb*1024} sc1")
    if jj == 0: a(f"    s_add_u32 s51, s51, {WFT}")
if opt["wdt"] == 0: wf_read(); wf_store(0)
bar("B_2", 3)
cs_pass(3)
if opt["wdt"] == 1: wf_read(); wf_store(0)
wf_store(1)
if SST: s_chunk(22, 30)
F2L = """    v_bfe_u32 v171, v0, 1, 3
    v_and_b32 v170, 1, v0
    v_lshl_add_u32 v171, v171, 2, v170
    v_add_u32 v171, s50, v171""" if opt["es"] else "    v_add_u32 v171, s50, v0"
a(f"""    s_lshl_b32 s61, s54, 6
    s_add_u32 s61, s61, s53
    s_lshl_b32 s61, s61, 7
    s_add_u32 s61, s61, {WS_EF}
    s_lshl_b32 s53, s{sNT}, 3
    s_add_u32 s53, s53, s{sM}
    s_lshl_b32 s53, s53, 9
    s_lshl_b32 s58, s58, 8
    s_add_u32 s53, s53, s58
    s_add_u32 s53, s53, {WS_CSP}
    v_and_b32 v173, 48, v0
    ; F2 flags to wait for: lanes 0..31 (m, lane), lanes 32.. (lane & 7, nt)
    s_lshl_b32 s50, s{sM}, 5
{F2L}
    v_and_b32 v170, 7, v0
    v_lshlrev_b32 v170, 5, v170
    v_add_u32 v170, s36, v170
    v_cmp_gt_u32 vcc, 32, v0
    s_add_u32 s50, s50, s36
    s_lshl_b32 s50, s50, 7
    v_cndmask_b32 v171, v170, v171, vcc
    v_lshlrev_b32 v171, 7, v171
    v_min_u32 v170, 53, v0
    v_lshlrev_b32 v170, 7, v170
    s_add_u32 s50, s50, {WS_F2}
    s_lshr_b32 s51, s{sJ2}, 1
    s_lshl_b32 s51, s51, 13
    s_add_u32 s51, s51, {WS_EF}
    v_mov_b32 v172, s47
    v_mov_b32 v174, {L_CNT}
    v_mov_b32 v175, 1
    s_mov_b32 s59, 0""")
bar("B_3", 4)
cs_pass(4)
if SST: s_chunk(30, 40)
a(f"""    s_waitcnt vmcnt(0)
    s_mov_b64 exec, 1
    buffer_store_dword v172, v7, {S(SWS)}, s61 offen sc1
    s_mov_b32 exec_lo, 0x00010001
    s_mov_b32 exec_hi, 0x00010001
    s_nop 3""")
for i in range(4): a(f"    buffer_store_dwordx4 {V(144+4*i)}, v173, {S(SWS)}, s53 offen offset:{i*64} sc1")
a("    s_mov_b64 exec, -1")
if SST: s_fin()
bar("B_4", 5)
a(f"""    s_waitcnt vmcnt(0)
    s_mov_b64 exec, 1
    buffer_store_dword v172, v7, {S(SWS)}, s50 offen sc1     ; row statistics were drained before B_0
    s_mov_b64 exec, -1""")
if opt["el"]:
    def c_loads():
        a(f"""    v_lshlrev_b32 v6, 3, v0
    v_lshrrev_b32 v5, 5, v0
    v_lshl_add_u32 v5, v5, 10, v6
    s_lshl_b32 s53, s{sM}, 11
    s_lshl_b32 s52, s{sNT}, 12
    s_add_u32 s52, s52, {WS_CSP}""")
        for n in range(4):
            a(f"    buffer_load_dwordx2 v[{128+4*n}:{129+4*n}], v6, {S(SWS)}, s53 offen offset:{n*512} sc1")
        for n in range(4):
            a(f"    buffer_load_dwordx2 {P2(144+2*n)}, v5, {S(SWS)}, s52 offen offset:{(n>>1)*2048+(n&1)*512} sc1")
    bar("B_5", 6)
    a(f"""    s_mov_b32 s50, {WS_F2}
    buffer_load_dword v2, v170, {S(SWS)}, s51 offen sc1
    buffer_load_dword v3, v171, {S(SWS)}, s50 offen sc1""")
    bar("B_6", 7)
    a(f"""    s_waitcnt vmcnt(0)
    v_cmp_ne_u32 s[58:59], s47, v2
    v_cmp_ne_u32 s[60:61], s47, v3
    s_cmp_lg_u64 s[58:59], 0
    s_cbranch_scc1 L_l1
    ds_write_b32 v174, v175 offset:{O_WOK}
L_l1:
    s_cmp_lg_u64 s[60:61], 0
    s_cbranch_scc1 L_l2""")
    c_loads()
    a(f"""    s_branch L_l3
L_l2:
    buffer_load_dword v3, v171, {S(SWS)}, s50 offen sc1
L_l3:""")
    bar("B_7", 8)
    stamp(0)
    a(f"""    s_cmp_eq_u64 s[60:61], 0
    s_cbranch_scc1 L_l4
    s_waitcnt vmcnt(0)
    v_cmp_ne_u32 vcc, s47, v3
    s_cbranch_vccz L_p3d""")
    poll("p3", 171, "s50", 3, "s47", 3)
    c_loads()
    a(f"""L_l4:
    s_cmp_eq_u64 s[58:59], 0
    s_cbranch_scc1 L_l5""")
    poll("p1", 170, "s51", 2, "s47", 3)
    a(f"    ds_write_b32 v174, v175 offset:{O_WOK}\nL_l5:")
else:
    bar("B_5", 6)
    bar("B_6", 7)
    a(f"""    s_mov_b32 s50, {WS_F2}
    buffer_load_dword v5, v170, {S(SWS)}, s51 offen sc1
    buffer_load_dword v6, v171, {S(SWS)}, s50 offen sc1""")
    bar("B_7", 8)
    stamp(0)
    a(f"""    s_waitcnt vmcnt(0)
    v_cmp_ne_u32 s[58:59], s47, v5
    v_cmp_ne_u32 vcc, s47, v6
    s_cbranch_vccz L_p3d
    s_cmp_lg_u64 s[58:59], 0
    s_cbranch_scc1 L_p3w
    ds_write_b32 v174, v175 offset:{O_WOK}
L_p3w:""")
    poll("p3", 171, "s50", 6, "s47", 3)
    a(f"""    v_lshlrev_b32 v6, 3, v0
    v_lshrrev_b32 v5, 5, v0
    v_lshl_add_u32 v5, v5, 10, v6
    s_lshl_b32 s50, s{sM}, 11
    s_lshl_b32 s52, s{sNT}, 12
    s_add_u32 s52, s52, {WS_CSP}""")
    for n in range(4):
        a(f"    buffer_load_dwordx2 v[{128+4*n}:{129+4*n}], v6, {S(SWS)}, s50 offen offset:{n*512} sc1")
    for n in range(4):
        a(f"    buffer_load_dwordx2 {P2(144+2*n)}, v5, {S(SWS)}, s52 offen offset:{(n>>1)*2048+(n&1)*512} sc1")
    a(f"""    s_cmp_eq_u64 s[58:59], 0
    s_cbranch_scc1 L_p1d""")
    poll("p1", 170, "s51", 5, "s47", 3)
    a(f"    ds_write_b32 v174, v175 offset:{O_WOK}")
a(f"    s_waitcnt vmcnt(0)")
for n in range(4): a(f"    v_rsq_f32 v{152+n}, v{129+4*n}")
for n in range(1, 4): a(f"    v_add_f32 v144, v144, v{144+2*n}\n    v_add_f32 v145, v145, v{145+2*n}")
a(f"""    v_add_u32 v6, {L_CS}, v6
    ds_write_b64 v6, v[144:145]
    s_cmp_eq_u32 s{sDFT}, 1
    s_cbranch_scc1 L_serv_cdft
    v_add_u32 v6, {L_STAT}, v1""")
for n in range(4):
    b = 128 + 4 * n
    a(f"""    v_mov_b32 v{b+3}, v{b+1}
    v_mul_f32 v156, v{152+n}, v{152+n}
    v_xor_b32 v{b}, 0x80000000, v{b}
    v_mul_f32 v{b+1}, {f2u(-K1C):#x}, v{152+n}
    v_mul_f32 v156, v156, v{152+n}
    v_mul_f32 v{b+2}, {f2u(-K2C):#x}, v156
    ds_write_b128 v6, {V(b)} offset:{n*1024}""")
a(f"""    s_branch L_serv_cd
L_serv_cdft:
    v_lshlrev_b32 v6, 2, v0
    v_add_u32 v6, {L_STAT}, v6""")
for n in range(4):
    b = 128 + 4 * n
    a(f"""    v_mul_f32 v{b}, v{b}, v{152+n}
    v_xor_b32 v{b}, 0x80000000, v{b}
    ds_write_b32 v6, v{152+n} offset:{n*256}
    ds_write_b32 v6, v{b} offset:{1024+n*256}""")
a(f"""L_serv_cd:
    ds_write_b32 v174, v175 offset:{O_RDY}""")
stamp(1)
a("    s_waitcnt lgkmcnt(0)")
SSCH = ["X o0 o1 o2 o3 p0 t o4 o5 pd T", "X o0 o1 o2 o3 p0 T t o4 o5 pd", "X o0 o1 o2 o3 o4 o5 T p0 pd", "X o0 o1 T p0 t o2 o3 o4 o5 pd", "X o0 p0 T pd", "X o0 o1 p0 T pd", "X p0 T pd"][opt["ssch"]]
SREST = [sl for sl in range(6) if f"o{sl}" not in SSCH]
run_sched(SSCH, "s")

def item(vit, va, vg, t0):
    t1, t2 = t0 + 1, t0 + 2
    a(f"""    v_mul_u32_u24 v{t0}, s50, v{vit}
    v_lshrrev_b32 v{t0}, 16, v{t0}
    v_mul_u32_u24 v{t1}, 20, v{t0}
    v_sub_u32 v{t1}, v{vit}, v{t1}
    v_and_b32 v{vg}, 31, v{t0}
    v_lshlrev_b32 v{vg}, 6, v{vg}
    v_and_b32 v{t2}, 32, v{t0}
    v_add3_u32 v{vg}, v{vg}, v{t2}, s{sT1}
    v_mul_u32_u24 v{vg}, 1280, v{vg}
    v_lshl_add_u32 v{vg}, v{t1}, 3, v{vg}
    v_mul_u32_u24 v{va}, {PSTR}, v{t0}
    v_lshl_add_u32 v{va}, v{t1}, 3, v{va}""")
def fin_addr(tb):
    a(f"""    s_mov_b32 s50, 3277
    s_lshl_b32 s51, s{sW}, 7
    v_add_u32 v{tb}, s51, v0""")
    item(tb, 4, 6, tb + 1)
    a(f"    v_add_u32 v{tb}, 64, v{tb}")
    item(tb, 5, 7, tb + 1)
    a(f"    s_mul_i32 s59, s{sJ2}, 160")
    mk_out()
def x_loads(r):
    a(f"""    buffer_load_dwordx4 {V(r)}, v6, {S(SX)}, s59 offen
    s_mov_b64 exec, 0xffff
    buffer_load_dwordx4 {V(r+4)}, v7, {S(SX)}, s59 offen
    s_mov_b64 exec, -1""")
def part_addr(t0):
    a(f"""    v_and_b32 v{t0}, 15, v0
    v_lshrrev_b32 v{t0+1}, 4, v0
    v_mul_u32_u24 v{t0}, {PSTR}, v{t0}
    v_lshl_add_u32 v{t0}, v{t0+1}, 3, v{t0}""")
def capture(fn):
    n0 = len(a.lines); fn(); out = a.lines[n0:]; del a.lines[n0:]; return out
def k2_mfma(wbase, hbase, fill=(), start=0):
    fill = list(fill); k = 0
    for nb in range(5):
        for ts in range(4):
            a(mfma(ACC2 + 4 * (nb * 4 + ts), wbase + 4 * nb, hbase + 4 * ts))
            if k >= start and fill: a(fill.pop(0))
            k += 1
    for l in fill: a(l)
def h_load(hbase, cnt, n, oob=None, base=61):
    a(f"    s_lshl_b32 s52, s{cnt}, 17\n    s_add_u32 s52, s52, s{base}")
    if oob: a(oob)
    if opt["ex"] == 20: a("    s_mov_b32 s52, 0x40000000")
    for ts in range(4):
        a(f"    buffer_load_dwordx4 {V(hbase+4*ts)}, v1, {S(SWS)}, s52 offen offset:{ts*1024} sc1")
    rot_next(cnt, n)
def put(nb, ts, t, pr=None):
    d = ACC2 + 4 * (nb * 4 + ts)
    if pr is not None:
        a(f"""    v_lshlrev_b32 v{t}, 16, v{pr}
    v_and_b32 v{t+1}, 0xffff0000, v{pr}
    v_lshlrev_b32 v{t+2}, 16, v{pr+1}
    v_and_b32 v{t+3}, 0xffff0000, v{pr+1}""")
        for i in range(4): a(f"    v_add_f32 v{d+i}, v{d+i}, v{t+i}")
    a(f"""    v_cvt_pk_bf16_f32 v{d}, v{d}, v{d+1}
    v_cvt_pk_bf16_f32 v{d+1}, v{d+2}, v{d+3}
    ds_write_b64 v2, {P2(d)} offset:{ts*16*PSTR+nb*32}""")
def tail(steps, t, PR=None):
    for nb in range(5):
        i = 0
        if nb == 1 and PR: a("    s_waitcnt lgkmcnt(0)")
        for wb, hb in steps:
            for ts in range(4):
                a(mfma(ACC2 + 4 * (nb * 4 + ts), wb + 4 * nb, hb + 4 * ts))
                i += 1
                if nb and i >= 5: put(nb - 1, i - 5, t, PR(nb - 1, i - 5) if PR else None)
    stamp(5); st3(7)
    a("    s_nop 7")
    for ts in range(4): put(4, ts, t, PR(4, ts) if PR else None)

K2ON[0] = True
a.label("L_pown")
a(f"    v_mov_b32 v160, {L_CNT}\n    ds_read_b32 v161, v160 offset:{O_TAG}")
fin_addr(144)
a(f"""    s_mul_i32 s52, s{sJ2}, 80
    v_add_u32 v2, s52, v2             ; e (nb = 0)
    v_mul_u32_u24 v3, 5120, v3
    s_xor_b32 s56, s{sT1}, s58
    s_add_u32 s56, s56, s57
    s_and_b32 s56, s56, 31
    s_mul_i32 s56, s56, 81920
    s_mul_i32 s52, s49, {4*5120}
    s_add_u32 s56, s56, s52
    s_add_u32 s56, s56, {WS_G}
    s_cmp_ge_u32 s{sJ2}, 4
    s_cselect_b32 s57, 640, -1
    s_waitcnt lgkmcnt(0)
    v_readfirstlane_b32 s47, v161
    s_cmp_eq_u32 s{sW}, 7
    s_cbranch_scc1 L_sv2""")
if "W" not in SCH:
    a("    s_waitcnt vmcnt(0)")
    lds_add(O_WL, 144, 145)
stamp(4)
lds_spin("s1", O_S1, 1, 144, 145)
a(f"""    s_branch L_k2p
L_sv2:
"""[:-1])
a(f"""    s_lshr_b32 s50, s{sT1}, 2
    s_lshl_b32 s50, s50, 5
    v_min_u32 v144, 26, v0
    v_add_u32 v144, s50, v144
    v_lshlrev_b32 v144, 7, v144
    s_mov_b32 s50, {WS_FLAGS}""")
stamp(2)
if opt["slp"]: a(f"    s_sleep {opt['slp']}")
poll("p2", 144, "s50", 145, "s47", opt["pslp"])
stamp(4)
a(f"""    v_mov_b32 v145, 1
    ds_write_b32 v160, v145 offset:{O_S1}""")
for sl in SREST: own_slot(sl)
a("L_k2p:")
stamp(3); st3(0)
hl = [144, 160, 8, 144, 28, 160] if opt["il2"] else [144, 160, 144, 8, 160, 28]
a(f"    s_setprio {opt['pp']}")
def ph(i): h_load(hl[i], 28, 6, base=26)
def block_with_loads(wb, hb, i0, pre=()):
    if not opt["il2"]:
        k2_mfma(wb, hb)
        for l in pre: a(l)
        ph(i0); ph(i0 + 1)
        return
    A, B = capture(lambda: ph(i0)), capture(lambda: ph(i0 + 1))
    B = [l.replace("s52", "s53") for l in B]
    if opt["ex"] == 20: A = [A[0], A[2]] + A[3:]; B = [B[0], B[2]] + B[3:]
    slots = {0: A[0:1], 1: A[1:2], 2: list(pre), 4: A[2:3], 5: A[6:7], 6: A[7:8], 7: A[8:9], 8: A[3:4], 9: B[0:1], 10: B[1:2], 12: A[4:5],
             13: B[6:7], 14: B[7:8], 15: B[8:9], 16: A[5:6] + B[2:3], 17: B[3:4], 18: B[4:5], 19: B[5:6]}
    k = 0
    for nb in range(5):
        for ts in range(4):
            a(mfma(ACC2 + 4 * (nb * 4 + ts), wb + 4 * nb, hb + 4 * ts))
            for l in slots.get(k, []): a(l)
            k += 1
ph(0); ph(1)
a(f"""    s_sub_u32 s50, 7, s{sJ2}
    s_min_u32 s50, s50, s{sJ2}
    s_add_u32 s51, s50, 27
    s_mov_b32 s50, {WS_FLAGS}
    s_waitcnt vmcnt(4)""")
st3(1)
block_with_loads(8, hl[0], 2)
a(f"""    v_and_b32 v24, 7, v0
    v_lshlrev_b32 v24, 5, v24
    v_bfe_u32 v25, v0, 3, 1
    v_add3_u32 v24, v24, v25, s51
    v_lshlrev_b32 v24, 7, v24
    s_waitcnt vmcnt(8)""")
st3(2)
block_with_loads(28, hl[1], 4, [f"    buffer_load_dword v25, v24, {S(SWS)}, s50 offen sc1"])
a(f"    s_setprio {opt['pp2']}\n    s_waitcnt vmcnt(13)")
st3(3)
k2_mfma(48, hl[2])
a(f"""    s_waitcnt vmcnt(8)
    v_cmp_ne_u32 vcc, s47, v25
    s_cbranch_vccz L_pgd""")
GT = hl[2]
poll("pg", 24, "s50", 25, "s47", 2)
for nb in range(5):
    a(f"""    v_add_u32 v{GT}, {16*nb}, v2
    v_xor_b32 v{GT+1}, s58, v{GT}
    v_add_u32 v{GT+1}, s57, v{GT+1}
    v_lshl_add_u32 v{GT+1}, v{GT+1}, 4, v3""")
    if nb == 0:
        a(f"""    v_cmp_eq_u32 vcc, 0, v{GT}
    v_mov_b32 v{GT+2}, 0x40000000
    s_nop 0
    v_cndmask_b32 v{GT+1}, v{GT+1}, v{GT+2}, vcc""")
    a(f"    buffer_load_dwordx4 {V(48+4*nb)}, v{GT+1}, {S(SWS)}, s56 offen sc1")
st3(4)
k2_mfma(68, hl[3])
a("    s_waitcnt vmcnt(9)")
st3(5)
k2_mfma(88, hl[4])
part_addr(16)
a(f"""    s_mul_i32 s50, s49, 40960
    s_cmp_eq_u32 s49, 3
    s_cselect_b32 s50, {PBASE[3]}, s50
    s_add_u32 s50, s50, {64*PSTR}
    v_add_u32 v2, s50, v16
    s_lshl_b32 s50, s49, 2
    s_add_u32 s50, s50, {L_CNT + O_PF}""")
lds_spin("pf", "s50", 1, 16, 17)
a("    s_waitcnt vmcnt(0)")
st3(6)
tail(((108, hl[5]), (48, 128)), 16)
a("    s_branch L_final")

K2ON[0] = False
a.label("L_cons")
sNH, sSH = 47, 49
ESEL = f"""    s_bitcmp1_b32 s36, 1
    s_cbranch_scc1 L_ch3
    s_and_b32 s52, s36, 1
    s_add_u32 s53, s36, s52
    s_add_u32 s53, s53, s{sSH}           ; s1 = 4 j + 2 g + (w >> 1)
    s_mov_b32 s52, s{sNH}""" if opt["es"] else f"""    s_add_u32 s52, s{sW}, 1
    s_and_b32 s52, s52, 2
    s_cmp_eq_u32 s52, 0
    s_cbranch_scc1 L_ch3
    s_sub_u32 s52, s{sW}, 1
    s_mov_b32 s53, s36"""
a(f"""    s_and_b32 s{sNH}, s{sW}, 1
    s_lshr_b32 s{sSH}, s{sW}, 1
    v_and_b32 v2, 15, v0
    v_lshrrev_b32 v3, 4, v0
    v_bfe_u32 v6, v0, 1, 3
    s_lshl_b32 s50, s{sSH}, 14
    v_lshlrev_b32 v1, 7, v2
    v_add_u32 v1, s50, v1
    v_xor_b32 v7, v3, v6
    v_lshl_add_u32 v8, v7, 4, v1
    v_xor_b32 v9, 64, v8
{ESEL}
    v_mul_u32_u24 v6, 1280, v3
    v_lshl_add_u32 v6, v2, 4, v6
    s_lshl_b32 s50, s53, 6
    s_lshl_b32 s51, s52, 5
    s_add_u32 s50, s50, s51
    s_lshl_b32 s51, s{sM}, 2
    s_add_u32 s50, s50, s51
    s_mul_i32 s50, s50, 1280
    s_waitcnt lgkmcnt(0)""")
mk_x()
for j in range(5): a(f"    buffer_load_dwordx4 {V(16+4*j)}, v6, {S(SX)}, s50 offen offset:{j*256}")
mk_ws()
for r in range(128, 256): a(f"    v_mov_b32 v{r}, 0")
for r in range(40, 48): a(f"    v_mov_b32 v{r}, 0")
a(f"""    s_lshl_b32 s50, s{sM}, 11
    s_lshl_b32 s51, s52, 10
    s_add_u32 s50, s50, s51
    s_lshl_b32 s51, s53, 3
    s_add_u32 s50, s50, s51
    v_lshlrev_b32 v4, 8, v3
    s_waitcnt vmcnt(0)
    v_lshlrev_b32 v36, 16, v16
    s_nop 1
    v_mov_b32_dpp v36, v36 row_newbcast:0 row_mask:0xf bank_mask:0xf""")
for g in range(0, 20, 4):
    for i in range(g, g + 4): a(f"    v_lshlrev_b32 v{48+2*(i&3)}, 16, v{16+i}\n    v_and_b32 v{49+2*(i&3)}, 0xffff0000, v{16+i}")
    for i in range(g, g + 4): a(f"    v_pk_add_f32 {P2(48+2*(i&3))}, {P2(48+2*(i&3))}, v[36:37] op_sel_hi:[1,0] neg_lo:[0,1] neg_hi:[0,1]")
    for i in range(g, g + 4): a(f"    v_pk_add_f32 {P2(40+2*(i&1))}, {P2(40+2*(i&1))}, {P2(48+2*(i&3))}")
    for i in range(g, g + 4): a(f"    v_pk_fma_f32 {P2(44+2*(i&1))}, {P2(48+2*(i&3))}, {P2(48+2*(i&3))}, {P2(44+2*(i&1))}")
a("""    v_pk_add_f32 v[40:41], v[40:41], v[42:43]
    v_pk_add_f32 v[44:45], v[44:45], v[46:47]
    v_add_f32 v40, v40, v41
    v_add_f32 v44, v44, v45""")
for mode in ("quad_perm:[1,0,3,2]", "quad_perm:[2,3,0,1]", "row_half_mirror", "row_mirror"):
    a("    s_nop 1")
    for r in (40, 44): a(f"    v_add_f32_dpp v{r}, v{r}, v{r} {mode} row_mask:0xf bank_mask:0xf")
a(f"""    v_mul_f32 v40, {f2u(1/640):#x}, v40
    v_mov_b32 v39, {f2u(1e-5):#x}
    v_fmac_f32 v39, {f2u(1/640):#x}, v44
    v_add_f32 v38, v40, v36
    v_fma_f32 v39, -v40, v40, v39
    v_max_f32 v39, {f2u(1e-5):#x}, v39
    s_mov_b32 exec_lo, 0x00010001
    s_mov_b32 exec_hi, 0x00010001
    buffer_store_dwordx2 v[38:39], v4, {S(SWS)}, s50 offen sc1
    s_mov_b64 exec, -1
    s_branch L_chd
L_ch3:
    s_waitcnt lgkmcnt(0)""")
if opt["tch"] & 1:
    a(f"    s_cmp_lg_u32 s{sW}, 0\n    s_cbranch_scc1 L_nt")
    w_touch(1, opt["tch"] & 2, 6, 127, 50)
    a("L_nt:")
mk_ws()
for r in range(128, 256): a(f"    v_mov_b32 v{r}, 0")
a(f"""L_chd:
    s_mov_b32 s60, 10
    s_mov_b32 s61, 0
    v_mov_b32 v120, {L_CNT}
    v_mov_b32 v121, 1
    s_cmp_eq_u32 s{sDFT}, 1
    s_cbranch_scc1 L_cdft""")

XF = 16
WF = [48, 64]
def acc(i, st): return 128 + 16 * st + 4 * i
def xr(st, kk): return f"    ds_read_b128 {V(XF+4*st)}, v{8+kk} offset:{st*2048}"
def wr(dft, kk):
    b = WF[kk]
    if dft: return [[f"    ds_read_b128 {V(b+4*i)}, v{12+kk} offset:{(i>>1)*8192+(i&1)*2048}"] for i in range(4)]
    return [[f"    ds_read_b64_tr_b16 {P2(b+4*i)}, v{12+(i&1)} offset:{kk*4096+(i>>1)*8192}",
             f"    ds_read_b64_tr_b16 {P2(b+4*i+2)}, v{12+(i&1)} offset:{kk*4096+(i>>1)*8192+512}"] for i in range(4)]
def main_loop(dft, tag):
    nw = 1 if dft else 2
    stamp(8); st8(0)
    bar("B_-1")
    stamp(0); st8(1)
    W = wr(dft, 0)
    a(xr(0, 0)); a(xr(1, 0))
    for st in range(2, 8):
        a(xr(st, 0))
        if st < 6:
            for r in W[st - 2]: a(r)
    a(".p2align 3")
    a.label(f"L_{tag}_loop")
    for kk in range(2):
        W = wr(dft, 1 - kk)
        for st in range(8):
            if st == 0: a(f"    s_waitcnt lgkmcnt({2 if kk == 0 else 5})")
            if st == 4 and kk == 0: a(f"    s_waitcnt lgkmcnt({4 + 4*nw})")
            if kk == 1 and st == 2:
                a(f"""    s_cmp_le_u32 s60, 2
    s_cbranch_scc1 L_{tag}_rel
    s_waitcnt vmcnt(0) lgkmcnt(0)
    s_barrier
L_{tag}_reld:""")
                a(xr(0, 0)); a(xr(1, 0))
            ex = []
            if kk == 0: ex = [xr(st, 1)] + (W[st] if st < 4 else [])
            elif st >= 2: ex = [xr(st, 0)] + (W[st - 2] if st < 6 else [])
            for i in range(4):
                w, x = WF[kk] + 4 * i, XF + 4 * st
                i2, st2 = i, st
                if opt["ex"] == 6: i2, st2 = st & 3, (st & 4) + i
                if opt["ex"] == 7: i2, st2 = (i if st % 2 == 0 else 3 - i), st
                if opt["ex"] == 8: i2, st2 = (st >> 1), 4 * (st & 1) + i
                w, x = WF[kk] + 4 * i2, XF + 4 * st2
                if opt["ex"] == 9: a(mfma(acc(i2, st2), x, w))
                else: a(mfma(acc(i2, st2), x, w) if dft else mfma(acc(i2, st2), w, x))
                if i == 3: a(ex[0]) if ex else None
                elif i < len(ex) - 1: a(ex[1 + i])
            if kk == 0 and st == 7: a(f"    ds_read_b32 v122, v120 offset:{O_LAND}")
            if kk == 1 and st == 0:
                a(f"""    s_add_u32 s61, s61, 1
    s_cmp_eq_u32 s61, 3
    s_cselect_b32 s62, {-3*STG}, 0
    s_cselect_b32 s61, 0, s61
    s_add_u32 s62, s62, {STG}""")
            if kk == 1 and st == 1:
                for r in (8, 9, 12, 13): a(f"    v_add_u32 v{r}, s62, v{r}")
    a(f"""    s_sub_u32 s60, s60, 1
    s_cmp_lg_u32 s60, {1 if opt['fin'] and not dft else 0}
    s_cbranch_scc1 L_{tag}_loop
    s_branch L_{tag}_epi
L_{tag}_rel:
    s_mov_b32 s62, 0
    s_waitcnt lgkmcnt(0)
    s_mov_b64 exec, 1
    ds_add_u32 v120, v121 offset:{O_REL}
    s_mov_b64 exec, -1
L_{tag}_land:
    v_cmp_gt_u32 vcc, 3, v122
    s_cbranch_vccz L_{tag}_reld
    ds_read_b32 v122, v120 offset:{O_LAND}
    s_add_u32 s62, s62, 1
    s_waitcnt lgkmcnt(0)
    s_cmp_lt_u32 s62, 0x400000
    s_cbranch_scc1 L_{tag}_land
    s_branch L_{tag}_reld
L_{tag}_epi:""")
    stamp(1); st8(2)
    if opt["fin"] and not dft:
        for r in wr(False, 1):
            for q in r: a(q)
        a(f"    ds_read_b128 {V(80)}, v9 offset:0")
        a("    s_waitcnt lgkmcnt(11)")
        for i in range(4): a(mfma(acc(i, 0), WF[0] + 4 * i, XF))
    a("    s_setprio 3\n    s_mov_b32 s60, 0")
    a.label(f"L_{tag}_rdy")
    a(f"    ds_read_b32 v122, v120 offset:{O_RDY}\n    ds_read_b32 v123, v120 offset:{O_TAG}")
def rdy_check(tag, n):
    a(f"""    s_waitcnt lgkmcnt({n})
    v_cmp_eq_u32 vcc, 0, v122
    s_add_u32 s60, s60, 1
    s_cbranch_vccz L_{tag}_go
    s_cmp_lt_u32 s60, 0x400000
    s_cbranch_scc1 L_{tag}_rdy
L_{tag}_go:""")

a(f"""    v_bfe_u32 v6, v0, 2, 2            ; rho
    v_lshl_add_u32 v7, v3, 3, v6
    v_lshlrev_b32 v12, 7, v7
    v_and_b32 v7, 3, v0
    v_lshl_add_u32 v12, v7, 3, v12
    v_lshrrev_b32 v6, 1, v6
    v_and_b32 v7, 1, v3
    v_lshl_add_u32 v6, v7, 1, v6
    s_lshl_b32 s50, s{sNH}, 1
    v_xor_b32 v6, s50, v6
    v_lshl_add_u32 v12, v6, 5, v12
    v_add_u32 v12, 32768, v12
    v_xor_b32 v13, 32, v12
    s_lshl_b32 s50, s{sNH}, 7
    s_add_u32 s50, s50, {L_CS}
    v_lshl_add_u32 v4, v3, 4, s50
    s_lshl_b32 s51, s{sSH}, 11
    s_add_u32 s51, s51, {L_STAT}
    v_lshl_add_u32 v5, v2, 4, s51
    v_lshlrev_b32 v6, 4, v0
    s_lshl_b32 s50, s{sNT}, 1
    s_add_u32 s50, s50, s{sNH}
    s_lshl_b32 s50, s50, 17
    s_lshl_b32 s51, s{sM}, 14
    s_add_u32 s50, s50, s51
    s_lshl_b32 s51, s{sSH}, 11
    s_add_u32 s50, s50, s51
    s_add_u32 s50, s50, {WS_H}""")
main_loop(False, "cf")
if opt["fin"]:
    CG, RC, Z = 96, 112, 88
    for i in range(4): a(f"    ds_read_b128 {V(CG+4*i)}, v4 offset:{(i>>1)*256+(i&1)*64}")
    a(f"    ds_read_b128 {V(RC)}, v5")
    rdy_check("cf", 0)
    def mf(st, kk): return [mfma(acc(i, st), WF[kk] + 4 * i, (XF + 4 * st) if kk == 0 else 80 + 4 * (st & 1)) for i in range(4)]
    a(f"    ds_read_b128 {V(84)}, v9 offset:2048")
    for m_ in mf(0, 1): a(m_)
    for st in range(8):
        c0, c1 = P2(RC + 4 * (st & 1)), P2(RC + 2 + 4 * (st & 1))
        A = lambda i: P2(acc(0, st) + 2 * i)
        U = lambda i: P2(acc(2, st) + 2 * i)
        ZZ = lambda i: P2(Z + 2 * i)
        nx = st + 1
        a("    s_waitcnt lgkmcnt(0)")
        if nx < 8: a(f"    ds_read_b128 {V(RC+4*(nx&1))}, v5 offset:{nx*256}")
        if nx < 7: a(f"    ds_read_b128 {V(80+4*(st&1))}, v9 offset:{(nx+1)*2048}")
        if nx == 7:
            a(f"    s_mov_b64 exec, 1\n    ds_add_u32 v120, v121 offset:{O_REL}\n    s_mov_b64 exec, -1")
        if st == 0: a("    s_nop 4")
        for i in range(4): a(f"    v_pk_fma_f32 {A(i)}, {P2(CG+2*i)}, {c0}, {A(i)} op_sel_hi:[1,0,1]")
        for i in range(4): a(f"    v_pk_mul_f32 {ZZ(i)}, {A(i)}, {A(i)}")
        for i in range(4): a(f"    v_pk_fma_f32 {ZZ(i)}, {ZZ(i)}, {c1}, {c0} op_sel:[0,0,1] op_sel_hi:[1,0,1]")
        for i in range(4): a(f"    v_pk_mul_f32 {ZZ(i)}, {ZZ(i)}, {A(i)}")
        for i in range(4): a(f"    v_pk_fma_f32 {U(i)}, {P2(CG+8+2*i)}, {c0}, {U(i)} op_sel_hi:[1,0,1]")
        for i in range(4): a(f"    v_pk_mul_f32 {U(i)}, {U(i)}, {A(i)}")
        m0_ = mf(nx, 0) if nx < 8 else [None] * 4
        m1_ = mf(nx, 1) if nx < 8 else [None] * 4
        for i in range(4):
            if m0_[i]: a(m0_[i])
            a(f"    v_exp_f32 v{Z+2*i}, v{Z+2*i}\n    v_exp_f32 v{Z+2*i+1}, v{Z+2*i+1}")
        for i in range(8): a(f"    v_fma_f32 v{Z+i}, v{Z+i}, v{RC+3+4*(st&1)}, v{RC+3+4*(st&1)}")
        for i in range(4):
            if m1_[i]: a(m1_[i])
            a(f"    v_rcp_f32 v{Z+2*i}, v{Z+2*i}\n    v_rcp_f32 v{Z+2*i+1}, v{Z+2*i+1}")
        for i in range(4): a(f"    v_pk_mul_f32 {U(i)}, {U(i)}, {ZZ(i)}")
        for i in range(4): a(f"    v_cvt_pk_bf16_f32 v{acc(0,st)+i}, v{acc(2,st)+2*i}, v{acc(2,st)+2*i+1}")
        a(f"    buffer_store_dwordx4 {V(acc(0,st))}, v6, {S(SWS)}, s50 offen offset:{(st&1)*1024} sc1")
        if st & 1 and st < 7: a("    s_add_u32 s50, s50, 4096")
else:
    a(f"    ds_read_b128 {V(32)}, v5")
    for i in range(4): a(f"    ds_read_b128 {V(16+4*i)}, v4 offset:{(i>>1)*256+(i&1)*64}")
    for st in range(1, 8): a(f"    ds_read_b128 {V(32+4*st)}, v5 offset:{st*256}")
    rdy_check("cf", 7)
    for st in range(8):
        c0, c1 = P2(32 + 4 * st), P2(34 + 4 * st)
        if st == 1: a("    s_waitcnt lgkmcnt(0)")
        ob = 88 + 4 * (st & 1)
        TG = lambda i: 64 + 2 * i
        TU = lambda i: 72 + 2 * i
        Z = lambda i: 80 + 2 * i
        for i in range(4): a(f"    v_pk_fma_f32 {P2(TG(i))}, {P2(16+2*i)}, {c0}, {P2(acc(0,st)+2*i)} op_sel_hi:[1,0,1]")
        for i in range(4): a(f"    v_pk_mul_f32 {P2(Z(i))}, {P2(TG(i))}, {P2(TG(i))}")
        for i in range(4): a(f"    v_pk_fma_f32 {P2(Z(i))}, {P2(Z(i))}, {c1}, {c0} op_sel:[0,0,1] op_sel_hi:[1,0,1]")
        for i in range(4): a(f"    v_pk_mul_f32 {P2(Z(i))}, {P2(Z(i))}, {P2(TG(i))}")
        for i in range(4): a(f"    v_exp_f32 v{Z(i)}, v{Z(i)}\n    v_exp_f32 v{Z(i)+1}, v{Z(i)+1}")
        for i in range(4): a(f"    v_pk_fma_f32 {P2(TU(i))}, {P2(24+2*i)}, {c0}, {P2(acc(2,st)+2*i)} op_sel_hi:[1,0,1]")
        for i in range(4): a(f"    v_pk_fma_f32 {P2(Z(i))}, {P2(Z(i))}, {c1}, {c1} op_sel:[0,1,1] op_sel_hi:[1,1,1]")
        for i in range(4): a(f"    v_rcp_f32 v{Z(i)}, v{Z(i)}\n    v_rcp_f32 v{Z(i)+1}, v{Z(i)+1}")
        for i in range(4): a(f"    v_pk_mul_f32 {P2(TU(i))}, {P2(TU(i))}, {P2(TG(i))}")
        for i in range(4): a(f"    v_pk_mul_f32 {P2(TU(i))}, {P2(TU(i))}, {P2(Z(i))}")
        for i in range(4): a(f"    v_cvt_pk_bf16_f32 v{ob+i}, v{TU(i)}, v{TU(i)+1}")
        a(f"    buffer_store_dwordx4 {V(ob)}, v6, {S(SWS)}, s50 offen offset:{(st&1)*1024} sc1")
        if st & 1 and st < 7: a("    s_add_u32 s50, s50, 4096")
a("    s_branch L_cdone")

a.label("L_cdft")
a(f"""    s_lshl_b32 s50, s{sNH}, 12
    s_lshl_b32 s51, s{sSH}, 14
    s_sub_u32 s50, s50, s51
    s_add_u32 s50, s50, 32768
    v_add_u32 v12, s50, v8
    v_add_u32 v13, s50, v9
    s_lshl_b32 s51, s{sSH}, 9
    s_add_u32 s51, s51, {L_STAT}
    v_lshl_add_u32 v1, v3, 4, s51
    s_lshl_b32 s50, s{sNH}, 7
    s_add_u32 s50, s50, {L_CS}
    v_lshl_add_u32 v7, v2, 2, s50
    v_mul_u32_u24 v6, {4*81920}, v3
    v_lshl_add_u32 v6, v2, 4, v6
    s_lshl_b32 s50, s{sSH}, 3
    s_add_u32 s50, s50, s{sM}
    s_mul_i32 s50, s50, 5120
    s_sub_u32 s51, s{sNT}, 27
    s_lshl_b32 s51, s51, 1
    s_add_u32 s51, s51, s{sNH}
    s_lshl_b32 s51, s51, 9
    s_add_u32 s50, s50, s51
    s_add_u32 s50, s50, {WS_G}
    ; 32-point DFT fragments (row t1 = 16 th + (l & 15), s1 = 16 b + 4 (l >> 4) + 0..3): cos v80.., sin v88.., -cos v96..
    v_lshlrev_b32 v104, 2, v3""")
for th in range(2):
    a(f"    v_add_u32 v105, {16*th}, v2")
    for b in range(2):
        a(f"""    v_add_u32 v106, {16*b}, v104
    v_mul_u32_u24 v108, v106, v105
    v_add_u32 v109, v108, v105
    v_add_u32 v110, v109, v105
    v_add_u32 v111, v110, v105""")
        trig4(108, 80 + 4 * th + 2 * b, 88 + 4 * th + 2 * b, 31, 1 / 32, False)
for r in range(8): a(f"    v_xor_b32 v{96+r}, 0x80008000, v{80+r}")
main_loop(True, "cd")
for i in range(4): a(f"    ds_read_b32 v{8+i}, v7 offset:{(i>>1)*256+(i&1)*64}")
def rd_rows(st):
    a(f"    ds_read_b128 {V(16+4*st)}, v1 offset:{st*64}\n    ds_read_b128 {V(48+4*st)}, v1 offset:{1024+st*64}")
for st in range(4): rd_rows(st)
rdy_check("cd", 0)
for st in range(4, 8): rd_rows(st)
for et in range(2):
    for c in range(4):
        if et == 0 and c == 2: a("    s_waitcnt lgkmcnt(0)")
        for mat in range(2):
            i = 2 * mat + et
            cs = P2(8 + (i & ~1)); sel = "op_sel_hi:[1,0]" if (i & 1) == 0 else "op_sel:[0,1] op_sel_hi:[1,1]"
            q = [(st, p) for st in (2 * c, 2 * c + 1) for p in range(2)]
            for n, (st, p) in enumerate(q): a(f"    v_pk_mul_f32 {P2(104+2*n)}, {P2(48+4*st+2*p)}, {cs} {sel}")
            for n, (st, p) in enumerate(q): a(f"    v_pk_fma_f32 {P2(104+2*n)}, {P2(acc(i,st)+2*p)}, {P2(16+4*st+2*p)}, {P2(104+2*n)}")
            for n, (st, p) in enumerate(q): a(f"    v_cvt_pk_bf16_f32 v{acc(i,2*c)+n}, v{104+2*n}, v{105+2*n}")
def dreg(rnd, c, im): return acc(2 * im + (rnd & 1), 2 * c + 1)
def g_store(rnd, r):
    et, th = rnd >> 1, rnd & 1
    ob = 104 + 4 * (r & 1)
    return [f"    v_cvt_pk_bf16_f32 v{ob}, v{dreg(rnd,0,0)+r}, v{dreg(rnd,1,0)+r}",
            f"    v_cvt_pk_bf16_f32 v{ob+1}, v{dreg(rnd,2,0)+r}, v{dreg(rnd,3,0)+r}",
            f"    v_cvt_pk_bf16_f32 v{ob+2}, v{dreg(rnd,0,1)+r}, v{dreg(rnd,1,1)+r}",
            f"    v_cvt_pk_bf16_f32 v{ob+3}, v{dreg(rnd,2,1)+r}, v{dreg(rnd,3,1)+r}",
            f"    s_add_u32 s51, s50, {(16*th + r)*81920 + et*256}\n    buffer_store_dwordx4 {V(ob)}, v6, {S(SWS)}, s51 offen sc1"]
a("    s_nop 1")
for rnd in range(4):
    et, th = rnd >> 1, rnd & 1
    mf = []
    for c in range(4):
        mf.append(mfma(dreg(rnd, c, 0), 80 + 4 * th, acc(et, 2 * c), "0"))
        mf.append(mfma(dreg(rnd, c, 1), 88 + 4 * th, acc(et, 2 * c), "0"))
    for c in range(4):
        mf.append(mfma(dreg(rnd, c, 0), 88 + 4 * th, acc(2 + et, 2 * c)))
        mf.append(mfma(dreg(rnd, c, 1), 96 + 4 * th, acc(2 + et, 2 * c)))
    fill = sum((g_store(rnd - 1, r) for r in range(4)), []) if rnd else []
    for n, m_ in enumerate(mf):
        a(m_)
        if n >= 8 and fill:
            for o in fill[:3]: a(o)
            fill = fill[3:]
    for o in fill: a(o)
a("    s_nop 7")
for r in range(4):
    for o in g_store(3, r): a(o)

K2ON[0] = True
a.label("L_cdone")
stamp(2)
a(f"""    s_lshl_b32 s46, s{sM}, 5
    s_add_u32 s46, s46, s{sNT}
    s_lshl_b32 s46, s46, 7
    s_add_u32 s46, s46, {WS_FLAGS}
    v_mov_b32 v124, 0
    s_waitcnt vmcnt(0)
    s_mov_b64 exec, 1
    ds_add_rtn_u32 v122, v120, v121
    s_waitcnt lgkmcnt(0)
    v_cmp_eq_u32 vcc, 3, v122
    s_cbranch_vccz L_nofl
    buffer_store_dword v123, v124, {S(SWS)}, s46 offen sc1
L_nofl:
    s_mov_b64 exec, -1""")
stamp(3)
a(f"    s_setprio {opt['cp']}")
fin_addr(8)
for r in range(ACC2, 256): a(f"    v_mov_b32 v{r}, 0")
a(f"""    v_lshlrev_b32 v1, 4, v0
    s_lshl_b32 s50, s{sW}, 3
    s_cmp_eq_u32 s{sW}, 3
    s_cselect_b32 s50, 23, s50
    s_mul_i32 s55, s50, 5120
    v_add_u32 v3, s55, v1
    s_lshl_b32 s61, s50, 17
    s_lshl_b32 s62, s{sT1}, 12
    s_add_u32 s61, s61, s62
    s_add_u32 s61, s61, {WS_H}
    s_cmp_lt_u32 s{sW}, 2
    s_cselect_b32 s62, 8, 7
    s_cmp_ge_u32 s39, s62
    s_cselect_b32 s63, 0, s39""")
if not opt["rot2"]: a("    s_mov_b32 s63, 0")
lds_spin("cs1", O_S1, 1, 8, 9)
stamp(4); st3(0)
LA = opt['la']
def c_hload(st):
    h_load(48 + 16 * st, 63, "s62", oob=(f"    s_cmp_lt_u32 s{sW}, 2\n    s_cselect_b32 s52, s52, 0x40000000" if st == 7 else None))
a("    s_mov_b32 s58, s63")
for st in range(opt["h1st"] or LA): c_hload(st)
lds_spin("cwl", O_WL, 3, 8, 9)
def w_reads(st):
    b = 8 + 20 * (st & 1)
    a("    s_mul_i32 s52, s58, 5120\n    v_add_u32 v2, s52, v3")
    rot_next(58, "s62")
    for nb in range(5): a(f"    ds_read_b128 {V(b+4*nb)}, v2 offset:{nb*1024}")
w_reads(0)
for st in range(opt["h1st"] or LA, LA): c_hload(st)
if opt["il"]:
    for st in range(6):
        a(f"    s_waitcnt vmcnt({4 * min(LA - 1, 7 - st)}) lgkmcnt(0)")
        st3(1 + st)
        fill = capture(lambda: w_reads(st + 1))
        if st + LA < 8: fill += capture(lambda: c_hload(st + LA))
        k2_mfma(8 + 20 * (st & 1), 48 + 16 * st, fill)
else:
    for st in range(6):
        w_reads(st + 1)
        a(f"    s_waitcnt vmcnt({4 * min(LA - 1, 7 - st)}) lgkmcnt(5)")
        if PROF == 3: a("    s_waitcnt lgkmcnt(0)"); st3(1 + st)
        k2_mfma(8 + 20 * (st & 1), 48 + 16 * st)
        if st + LA < 8: c_hload(st + LA)
w_reads(7)
part_addr(56)
a(f"""    s_lshl_b32 s50, s{sW}, 2
    s_add_u32 s50, s50, {L_CNT + O_PF}
    v_mov_b32 v57, s50
    v_mov_b32 v58, 1
    s_waitcnt vmcnt(0) lgkmcnt(0)
    ds_write_b32 v57, v58
    v_add_u32 v2, s55, v56""")
tail(((8, 144), (28, 160)), 60)
st3(8)

a(f"""    s_mov_b32 s50, 3277
    s_lshl_b32 s51, s{sW}, 6
    s_add_u32 s51, s51, 1024
    v_add_u32 v64, s51, v0""")
item(64, 8, 9, 65)
a.label("L_final")
a(f"""    v_add_u32 v16, 81920, v4
    v_add_u32 v17, 81920, v5
    v_add_u32 v18, 81920, v8
    s_waitcnt lgkmcnt(0)""")
bar("R2")
stamp(6)
OST = ["", " sc1", " nt"][opt["ost"]]
def rd_item(va, vb, dst):
    for w in range(8):
        b = PBASE[w & 3] + (w >> 2) * 64 * PSTR
        r, o = (va, b) if b < 65536 else (vb, b - 81920)
        a(f"    ds_read_b64 {P2(dst+2*w)}, v{r} offset:{o}")
def sum_item(dst, t, vg):
    for w in range(0, 8, 2):
        for k in range(2):
            u = t + 4 * k if w == 0 else 20 + 4 * k
            for i in range(2): a(f"    v_lshlrev_b32 v{u+2*i}, 16, v{dst+2*(w+k)+i}\n    v_and_b32 v{u+1+2*i}, 0xffff0000, v{dst+2*(w+k)+i}")
        for k in range(4 if w else 0): a(f"    v_pk_add_f32 {P2(t+2*k)}, {P2(t+2*k)}, {P2(20+2*k)}")
    a(f"    v_pk_add_f32 {P2(t)}, {P2(t)}, {P2(t+4)}\n    v_pk_add_f32 {P2(t+2)}, {P2(t+2)}, {P2(t+6)}")
    a(f"    v_cvt_pk_bf16_f32 v{t+8}, v{t}, v{t+1}\n    v_cvt_pk_bf16_f32 v{t+9}, v{t+2}, v{t+3}")
    a(f"    buffer_store_dwordx2 {P2(t+8)}, v{vg}, {S(SOUT)}, s59 offen{OST}")
rd_item(4, 16, 64)
rd_item(5, 17, 80)
a(f"""    s_cmp_ge_u32 s{sW}, 4
    s_cbranch_scc1 L_fin2
    s_waitcnt lgkmcnt(8)""")
rd_item(8, 18, 96)
sum_item(64, 32, 6)
a("    s_waitcnt lgkmcnt(8)")
sum_item(80, 44, 7)
a("    s_waitcnt lgkmcnt(0)")
sum_item(96, 32, 9)
a("    s_branch L_fin3\nL_fin2:\n    s_waitcnt lgkmcnt(8)")
sum_item(64, 32, 6)
a("    s_waitcnt lgkmcnt(0)")
sum_item(80, 44, 7)
a("L_fin3:")
stamp(7)
a(f"""    s_cmp_lg_u32 s2, 0
    s_cbranch_scc1 L_noep
    s_cmp_lg_u32 s{sW}, 7
    s_cbranch_scc1 L_noep
    s_mov_b64 exec, -1
    v_lshlrev_b32 v8, 9, v0
    s_mov_b32 s50, {WS_EF}
    s_mov_b32 s60, 0
L_ep:
    buffer_load_dword v12, v8, {S(SWS)}, s50 offen sc1
    buffer_load_dword v13, v8, {S(SWS)}, s50 offen offset:128 sc1
    buffer_load_dword v14, v8, {S(SWS)}, s50 offen offset:256 sc1
    buffer_load_dword v15, v8, {S(SWS)}, s50 offen offset:384 sc1
    s_add_u32 s60, s60, 1
    s_waitcnt vmcnt(0)
    v_xor_b32 v12, s47, v12
    v_xor_b32 v13, s47, v13
    v_xor_b32 v14, s47, v14
    v_xor_b32 v15, s47, v15
    v_or3_b32 v12, v12, v13, v14
    v_or_b32 v12, v12, v15
    v_cmp_ne_u32 vcc, 0, v12
    s_cbranch_vccz L_epd
    s_sleep 4
    s_cmp_lt_u32 s60, 0x40000
    s_cbranch_scc1 L_ep
L_epd:
    v_mov_b32 v12, s47
    v_mov_b32 v13, 0
    s_mov_b32 s50, {WS_EPOCH}
    s_mov_b64 exec, 1
    buffer_store_dword v12, v13, {S(SWS)}, s50 offen sc1
L_noep:""")
if PROF == 8:
    mk_dbg()
    a(f"""    s_cmp_lg_u32 s2, 77
    s_cbranch_scc1 L_end
    s_memrealtime s[88:89]
    s_waitcnt lgkmcnt(0)
    s_sub_u32 s93, s88, s100
    s_lshr_b32 s50, s{sW}, 1
    s_lshl_b32 s50, s50, 4
    s_bitcmp1_b32 s{sW}, 0
    s_cbranch_scc1 L_end
    v_mov_b32 v7, 0
    s_mov_b64 exec, 1""")
    for k in range(4):
        a(f"    v_mov_b32 v6, s{90+k}\n    buffer_store_dword v6, v7, {S(SDBG)}, s50 offen offset:{4*k}")
elif PROF:
    mk_ws()
    a(f"""    s_memrealtime s[88:89]
    s_waitcnt lgkmcnt(0)
    s_mov_b32 s99, s88
    s_lshl_b32 s50, s2, 3
    s_add_u32 s50, s50, s{sW}
    s_lshl_b32 s50, s50, 6
    s_add_u32 s50, s50, {WS_PROF}
    v_mov_b32 v7, 0
    s_mov_b64 exec, 1""")
    for k in range(10):
        a(f"    v_mov_b32 v6, s{90+k}\n    buffer_store_dword v6, v7, {S(SWS)}, s50 offen offset:{4*k}")
a.label("L_end")
a("    s_endpgm")
a('.section .rodata,"a"')
a(kd(NAME, 256, 102, 256))
open(sys.argv[1], "w").write(a.text())
```

```python
import sys, math, struct
from asmlib import *

NAME = "parallel_sum__spectral_fnet__geglu_ffn__prompt_kernel"
opt = dict(prof=0, xo=2, irot=1, rot2=1, la=3, nodma=0, wrot=1, thr=3, pslp=3, touch=0, pp=0, cp=0, slp=0, nt=0, ost=0, sch=8, ssch=1, pp2=0, h1st=0, ex=0, fin=1, map2=0, cpf=1, tlb=0, lnd=3, el=0, il=1, il2=1, rmap=0, es=0, wdnt=1, wdt=0, tch=0, sst=0)
for a_ in sys.argv[2:]:
    k, v = a_.split("="); assert k in opt, k; opt[k] = int(v)
PROF = opt["prof"]

WS_STATS, WS_FLAGS, WS_WF, WS_CSP, WS_H, WS_G = 0, 0x8000, 0x10000, 0x300000, 0x400000, 0xC00000
WS_EF, WS_F2, WS_EPOCH = 0x340000, 0x348000, 0x4800
WS_SIZE = 0x1000000
WS_PROF = 0xF80000
WFT = 54 * 5120
STG = 49152
L_SCR, L_STAT, L_CS, L_CNT = 147456, 157696, 161792, 162304
O_CNT, O_REL, O_RDY, O_LAND, O_WOK, O_TAG, O_S1, O_WL, O_PF = 0, 4, 8, 12, 16, 20, 24, 28, 32
PSTR = 176
K1C = 2.0 * math.sqrt(2.0 / math.pi) * math.log2(math.e)
K2C = K1C * 0.044715
def f2u(x): return struct.unpack("<I", struct.pack("<f", x))[0]

a = Asm()
HDR = open("parallel_sum__spectral_fnet__geglu_ffn__prompt.s.ref").read().split("; Override launch")[0]
a(HDR.rstrip())
a("; @launch grid=(256,1,1) block=(512,1,1) lds=163840")
a('.amdgcn_target "amdgcn-amd-amdhsa--gfx950"\n.text')
kernel_head(a, NAME)

SX, SWA, SWB, SWS, SWD, SOUT, SDBG = 4, 8, 12, 16, 20, 32, 36
sM, sNT, sW, sDFT, sT1, sJ2, sMI = 40, 41, 42, 43, 44, 45, 48
P_X, P_HRE, P_HIM, P_WG, P_WU, P_WD, P_OUT, P_DBG, P_WS = 64, 70, 72, 76, 78, 80, 82, 84, 86
def S(b): return f"s[{b}:{b+3}]"
def V(b, n=4): return f"v[{b}:{b+n-1}]"
def P2(r): return f"v[{r}:{r+1}]"
def mk_x(): srd(a, SX, P_X, 2621440)
def mk_ws(): srd(a, SWS, P_WS, WS_SIZE)
def mk_wd(): srd(a, SWD, P_WD, 1728 * 1280)
def mk_out(): srd(a, SOUT, P_OUT, 2621440)
def mk_dbg(): srd(a, SDBG, P_DBG, 256)
def st_txt(k): return f"    s_memtime s[88:89]\n    s_waitcnt lgkmcnt(0)\n    s_sub_u32 s{90+k}, s88, s100"
def stamp(k):
    if PROF == 1: a(st_txt(k))
    if PROF == 4 or (PROF == 6 and k == 7): a(f"    s_memrealtime s[88:89]\n    s_waitcnt lgkmcnt(0)\n    s_sub_u32 s{90+k}, s88, s100")
def st8(k):
    if PROF == 8: a(f"    s_memrealtime s[88:89]\n    s_waitcnt lgkmcnt(0)\n    s_sub_u32 s{90+k}, s88, s100")
def st3(k):
    if PROF == 3: a(st_txt(k))
def bar(name, k=None):
    a(f"    s_barrier            ; {name}")
    if PROF == 2 and k is not None: a(st_txt(k))
def mfma(d, x, y, c=None):
    if opt["ex"] == 21 and d >= 176 and K2ON[0]: return "    s_nop 0"
    return f"    v_mfma_f32_16x16x32_bf16 {V(d)}, {V(x)}, {V(y)}, {V(d) if c is None else c}"
ACC2 = 176
K2ON = [False]
_u = [0]
def uniq():
    _u[0] += 1
    return _u[0]
PBASE = [0, 40960, 81920, 117760]
def lds_spin(tag, off, target, va, vd):
    if isinstance(off, int): a(f"    v_mov_b32 v{va}, {L_CNT + off}")
    else: a(f"    v_mov_b32 v{va}, {off}")
    a(f"""    s_mov_b32 s60, 0
L_{tag}:
    ds_read_b32 v{vd}, v{va}
    s_add_u32 s60, s60, 1
    s_waitcnt lgkmcnt(0)
    v_cmp_gt_u32 vcc, {target}, v{vd}
    s_cbranch_vccz L_{tag}d
    s_sleep 1
    s_cmp_lt_u32 s60, 0x400000
    s_cbranch_scc1 L_{tag}
L_{tag}d:""")
def lds_add(off, va, vd):
    a(f"""    v_mov_b32 v{va}, {L_CNT + off}
    v_mov_b32 v{vd}, 1
    s_mov_b64 exec, 1
    ds_add_u32 v{va}, v{vd}
    s_mov_b64 exec, -1""")
def poll(tag, vaddr, soff, vd, cmp, slp):
    a(f"""    s_mov_b32 s60, 0
L_{tag}:
    buffer_load_dword v{vd}, v{vaddr}, {S(SWS)}, {soff} offen sc1
    s_add_u32 s60, s60, 1
    s_waitcnt vmcnt(0)
    v_cmp_ne_u32 vcc, {cmp}, v{vd}
    s_cbranch_vccz L_{tag}d
    s_sleep {slp}
    s_cmp_lt_u32 s60, 0x40000
    s_cbranch_scc1 L_{tag}
L_{tag}d:""")
def rot_next(c, n):
    a(f"    s_add_u32 s{c}, s{c}, 1\n    s_cmp_eq_u32 s{c}, {n}\n    s_cselect_b32 s{c}, 0, s{c}")
def k2_setup():
    a(f"""    v_lshlrev_b32 v1, 4, v0
    s_mul_i32 s24, s{sJ2}, {WFT}
    s_add_u32 s24, s24, {WS_WF}
    s_mul_i32 s28, s39, {3 if opt['map2'] else 4}
    s_lshr_b32 s28, s28, 2
    s_add_u32 s28, s28, s29
    s_cmp_ge_u32 s28, 6
    s_cselect_b32 s30, 6, 0
    s_sub_u32 s28, s28, s30""")
    if not opt["rot2"]: a("    s_mov_b32 s28, 0")
    a(f"""    s_mul_i32 s26, s49, 6
    s_add_u32 s26, s26, 30
    s_mul_i32 s25, s26, 5120
    s_add_u32 s25, s25, s24
    s_lshl_b32 s26, s26, 17
    s_lshl_b32 s27, s{sT1}, 12
    s_add_u32 s26, s26, s27
    s_add_u32 s26, s26, {WS_H}
    s_mov_b32 s27, s28""")
def own_slot(sl):
    a("    s_mul_i32 s30, s27, 5120\n    s_add_u32 s30, s30, s25\n    s_add_u32 s31, s30, 4096")
    for nb in range(5):
        if nb < 4: a(f"    buffer_load_dwordx4 {V(8+20*sl+4*nb)}, v1, {S(SWS)}, s30 offen offset:{nb*1024} sc1")
        else: a(f"    buffer_load_dwordx4 {V(8+20*sl+4*nb)}, v1, {S(SWS)}, s31 offen sc1")
    rot_next(27, 6)
def own_w(s0, s1, thr=0):
    for sl in range(s0, s1):
        if thr: a(f"    s_waitcnt vmcnt({thr})")
        own_slot(sl)
def x_init_load():
    mk_x()
    a(f"""    v_and_b32 v2, 15, v0
    v_lshlrev_b32 v2, 6, v2
    v_add_u32 v2, s{sT1}, v2
    v_mul_u32_u24 v2, 1280, v2
    v_lshrrev_b32 v3, 4, v0
    v_lshl_add_u32 v2, v3, 3, v2
    s_and_b32 s30, s49, 1
    s_mul_i32 s30, s30, {1024*1280}
    s_lshr_b32 s31, s49, 1
    s_mul_i32 s31, s31, {32*1280}
    s_add_u32 s30, s30, s31
    s_mul_i32 s31, s{sJ2}, 160
    s_add_u32 s30, s30, s31""")
    for nb in range(5):
        a(f"    buffer_load_dwordx2 {P2(160+2*nb)}, v2, {S(SX)}, s30 offen offset:{32*nb}")
def trig4(t, d_cos, d_sin, mask, scale, neg):
    for i in range(4): a(f"    v_and_b32 v{t+i}, {mask}, v{t+i}")
    for i in range(4): a(f"    v_cvt_f32_u32 v{t+i}, v{t+i}")
    for i in range(4): a(f"    v_mul_f32 v{t+i}, {f2u(scale):#x}, v{t+i}")
    for i in range(4): a(f"    v_cos_f32 v{t+4+i}, v{t+i}")
    for i in range(4): a(f"    v_sin_f32 v{t+i}, {'-' if neg else ''}v{t+i}")
    a(f"""    v_cvt_pk_bf16_f32 v{d_cos}, v{t+4}, v{t+5}
    v_cvt_pk_bf16_f32 v{d_cos+1}, v{t+6}, v{t+7}
    v_cvt_pk_bf16_f32 v{d_sin}, v{t}, v{t+1}
    v_cvt_pk_bf16_f32 v{d_sin+1}, v{t+2}, v{t+3}""")

def trig_rows(young):
    a(f"""    s_cmp_ge_u32 s{sJ2}, 4
    s_cselect_b32 s58, -1, 0
    s_and_b32 s57, s58, 1
    v_and_b32 v2, 15, v0
    v_lshlrev_b32 v144, 6, v2
    v_add_u32 v144, s{sT1}, v144
    v_lshrrev_b32 v3, 4, v0
    s_lshl_b32 s52, s49, 4
    v_lshl_add_u32 v145, v3, 2, s52""")
    for ts in range(4):
        a(f"""    v_add_u32 v146, {1024*(ts&1) + 32*(ts>>1)}, v144
    v_xor_b32 v146, s58, v146
    v_add_u32 v146, s57, v146
    v_and_b32 v146, 2047, v146
    v_mul_u32_u24 v148, v146, v145
    v_add_u32 v149, v148, v146
    v_add_u32 v150, v149, v146
    v_add_u32 v151, v150, v146""")
        trig4(148, 128 + 4 * ts, 130 + 4 * ts, 2047, 1 / 2048, True)
    for r in range(ACC2, 256): a(f"    v_mov_b32 v{r}, 0")
    u = uniq()
    a(f"    s_waitcnt vmcnt({young})")
    for ts in range(4):
        a(f"    s_cmp_lg_u32 s49, {ts}\n    s_cbranch_scc1 L_xi{u}_{ts}")
        for nb in range(5):
            d = ACC2 + 4 * (nb * 4 + ts); x = 160 + 2 * nb
            a(f"""    v_lshlrev_b32 v{d}, 16, v{x}
    v_and_b32 v{d+1}, 0xffff0000, v{x}
    v_lshlrev_b32 v{d+2}, 16, v{x+1}
    v_and_b32 v{d+3}, 0xffff0000, v{x+1}""")
        a(f"L_xi{u}_{ts}:")

def w_touch(j, two, va, vd, sa):
    a(f"""    v_lshrrev_b32 v{va}, 5, v0
    v_mul_u32_u24 v{va}, {1728 - 32}, v{va}
    v_add_u32 v{va}, v{va}, v0
    s_lshr_b32 s{sa}, s2, 2
    s_mul_i32 s{sa}, s{sa}, 27
    s_bfe_u32 s{sa+1}, s2, 0x10001
    s_mul_i32 s{sa+1}, s{sa+1}, {5*1728}
    s_add_u32 s{sa}, s{sa}, s{sa+1}
    s_add_u32 s{sa}, s{sa}, {j*1728}
    v_add_u32 v{va}, s{sa}, v{va}
    v_lshlrev_b32 v{va}, 7, v{va}
    s_bitcmp1_b32 s2, 0
    s_cselect_b32 s{sa}, s{P_WU}, s{P_WG}
    s_cselect_b32 s{sa+1}, s{P_WU+1}, s{P_WG+1}
    s_mov_b32 exec_lo, 0x07ffffff
    s_mov_b32 exec_hi, {'0x07ffffff' if two else '0'}
    global_load_dword v{vd}, v{va}, s[{sa}:{sa+1}]
    s_mov_b64 exec, -1""")
RMAP = f"""    s_sub_u32 s50, s36, 24
    s_lshl_b32 s50, s50, 2
    s_lshr_b32 s50, 0x72651043, s50
    s_and_b32 s50, s50, 15
    s_add_u32 s50, s50, 24
    s_cmp_ge_u32 s36, 24
    s_cselect_b32 s{sNT}, s50, s{sNT}
""" if opt["rmap"] else ""
MAP2 = f"""    s_mov_b32 s38, s{sJ2}
    s_lshl_b32 s{sT1}, s47, 3
    s_bfe_u32 s29, s2, 0x30003
    s_add_u32 s{sT1}, s{sT1}, s29
    s_lshr_b32 s39, s2, 6
    s_and_b32 s{sJ2}, s46, 1
    s_lshl_b32 s{sJ2}, s{sJ2}, 2
    s_add_u32 s{sJ2}, s{sJ2}, s39
    s_lshl_b32 s39, s39, 1""" if opt["map2"] else f"""    s_mov_b32 s38, s{sJ2}
    s_mov_b32 s39, s{sJ2}
    s_mov_b32 s29, s{sMI}
    s_lshl_b32 s{sT1}, s46, 2
    s_add_u32 s{sT1}, s{sT1}, s{sMI}"""
a(f"""    s_cmp_ge_u32 s2, 256
    s_cbranch_scc1 L_end
    s_load_dwordx16 s[64:79], s[0:1], 0
    s_load_dwordx8 s[80:87], s[0:1], 64""")
if PROF:
    a("    s_memtime s[100:101]" if PROF not in (4, 6, 8) else "    s_memrealtime s[100:101]")
    for k in range(10): a(f"    s_mov_b32 s{90+k}, 0")
a(f"""    v_lshrrev_b32 v1, 6, v0
    v_and_b32 v0, 63, v0
    v_readfirstlane_b32 s{sW}, v1
    s_and_b32 s46, s2, 7
    s_lshr_b32 s47, s2, 3
    s_and_b32 s{sM}, s46, 1
    s_lshl_b32 s{sM}, s{sM}, 2
    s_and_b32 s{sMI}, s47, 3
    s_add_u32 s{sM}, s{sM}, s{sMI}
    s_lshr_b32 s{sJ2}, s47, 2
    s_lshl_b32 s{sNT}, s{sJ2}, 2
    s_lshr_b32 s47, s46, 1             ; n-group g
    s_add_u32 s{sNT}, s{sNT}, s47
    s_mov_b32 s36, s{sNT}              ; slot 4 j + g
{RMAP}{MAP2}
    s_cmp_ge_u32 s{sNT}, 27
    s_cselect_b32 s{sDFT}, 1, 0
    s_cmp_lt_u32 s{sW}, 4
    s_cbranch_scc1 L_cons
    s_setprio 3
    s_sub_u32 s49, s{sW}, 4
    s_cmp_eq_u32 s{sW}, 7
    s_cbranch_scc1 L_serv
    v_lshrrev_b32 v2, 3, v0
    v_and_b32 v3, 7, v0
    v_lshrrev_b32 v5, 1, v2
    s_lshl_b32 s63, s47, 2
    s_lshr_b32 s63, {[0, 0x3210, 0x8530][opt['xo']]:#x}, s63
    s_and_b32 s63, s63, 15
    s_and_b32 s62, s46, 1
    s_mul_i32 s62, s62, 5
    s_add_u32 s63, s63, s62
    s_cmp_ge_u32 s63, 10
    s_cselect_b32 s62, 10, 0
    s_sub_u32 s63, s63, s62
    s_cmp_eq_u32 s{sW}, 6
    s_cbranch_scc1 L_prodw
    v_mul_u32_u24 v4, 81920, v2
    v_xor_b32 v3, v3, v5
    v_lshl_add_u32 v8, v3, 4, v4
    v_xor_b32 v9, 64, v8
    s_lshl_b32 s50, s49, 5
    s_lshl_b32 s51, s{sM}, 2
    s_add_u32 s50, s50, s51
    s_mul_i32 s50, s50, 1280
    s_lshl_b32 s52, s63, 7
    s_add_u32 s50, s50, s52
    s_lshl_b32 s51, s49, 14
    s_lshl_b32 s57, s38, 1""")
if not opt["irot"]: a("    s_mov_b32 s57, 0")
a(f"""    s_lshl_b32 s53, s57, 10
    s_mov_b32 s54, 0x3fff
    s_mov_b32 s55, 0
    s_mov_b32 s56, 128
    s_mov_b32 s62, 1280
    s_waitcnt lgkmcnt(0)""")
st8(0)
srd(a, SWA, P_X, 2621440); srd(a, SWB, P_X, 2621440)
def dma(n, isw=0):
    a(f"""    s_add_u32 m0, s51, s53
    s_add_u32 s53, s53, 1024
    s_and_b32 s53, s53, s54""")
    if not opt["nodma"]: a(f"    buffer_load_dwordx4 v{128+n}, {S(SWA if n < 8 else SWB)}, s50 offen{' nt' if opt['nt'] >> isw & 1 else ''} lds")
for n in range(16):
    a(f"""    s_add_u32 s52, s57, {n}
    s_and_b32 s58, s52, 3
    s_mul_i32 s58, s58, {512*1280}
    s_bfe_u32 s52, s52, 0x20002
    s_mul_i32 s52, s52, 1280
    s_add_u32 s52, s52, s58
    v_add_u32 v{128+n}, s52, v{8 + (n & 1)}""")
    dma(n)
a(f"""    s_branch L_pfirst
L_prodw:
    s_mov_b32 s51, 32768
    s_lshl_b32 s57, s{sMI}, 1""")
if not opt["irot"]: a("    s_mov_b32 s57, 0")
a(f"""    s_lshl_b32 s53, s57, 10
    s_mov_b32 s54, 0x1fff
    s_mov_b32 s55, 8192
    s_cmp_eq_u32 s{sDFT}, 1
    s_cbranch_scc1 L_prodw_dft
    v_mul_u32_u24 v4, 3456, v2
    v_and_b32 v5, 1, v5
    v_lshlrev_b32 v5, 1, v5
    v_xor_b32 v3, v3, v5
    v_lshl_add_u32 v8, v3, 4, v4
    v_xor_b32 v9, 64, v8
    s_lshl_b32 s50, s{sNT}, 7
    s_mov_b32 s58, {8*3456}
    s_mov_b32 s56, {64*3456}
    s_waitcnt lgkmcnt(0)""")
st8(0)
srd(a, SWA, P_WG, 640 * 3456); srd(a, SWB, P_WU, 640 * 3456)
a(f"""    s_branch L_prodw_go
L_prodw_dft:
    v_mul_u32_u24 v4, 1280, v2
    v_xor_b32 v3, v3, v5
    v_lshl_add_u32 v8, v3, 4, v4
    v_xor_b32 v9, 64, v8
    s_sub_u32 s50, s{sNT}, 27
    s_lshl_b32 s50, s50, 6
    s_add_u32 s50, s50, 1
    s_mul_i32 s50, s50, 1280
    s_mov_b32 s58, {8*1280}
    s_mov_b32 s56, 128
    s_waitcnt lgkmcnt(0)""")
srd(a, SWA, P_HRE, 640 * 1280); srd(a, SWB, P_HIM, 640 * 1280)
a(f"""L_prodw_go:
    s_mul_i32 s52, s63, s56
    s_add_u32 s50, s50, s52
    s_mul_i32 s62, s56, 10""")
for n in range(8):
    a(f"""    s_add_u32 s52, s57, {n}
    s_and_b32 s52, s52, 7
    s_mul_i32 s52, s52, s58
    v_add_u32 v{128+n}, s52, v{8 + (n & 1)}
    v_add_u32 v{136+n}, s52, v{8 + (n & 1)}""")
    dma(n, 1)
a("    s_add_u32 s51, s51, s55")
for n in range(8, 16): dma(n, 1)
a.label("L_pfirst")
st8(1)
mk_ws()
k2_setup()
a(f"""    v_mov_b32 v144, {L_CNT}
    s_mov_b32 s60, 0
    s_branch L_pnext
L_ploop:""")
if opt["nt"] in (1, 2):
    a(f"    s_cmp_eq_u32 s{sW}, 6\n    s_cbranch_scc0 L_ploopx")
    for n in range(16):
        if n == 8: a("    s_add_u32 s51, s51, s55")
        dma(n, 1)
    a("    s_branch L_pnext\nL_ploopx:")
for n in range(16):
    if n == 8: a("    s_add_u32 s51, s51, s55")
    dma(n)
a(f"""L_pnext:
    s_sub_u32 s51, s51, s55
    s_add_u32 s50, s50, s56
    s_add_u32 s63, s63, 1
    s_cmp_eq_u32 s63, 10
    s_cselect_b32 s63, 0, s63
    s_cselect_b32 s52, s62, 0
    s_sub_u32 s50, s50, s52
    s_add_u32 s51, s51, {STG}
    s_cmp_ge_u32 s51, {3*STG}
    s_cselect_b32 s52, {3*STG}, 0
    s_sub_u32 s51, s51, s52
    s_add_u32 s60, s60, 1
    s_cmp_lt_u32 s60, 2
    s_cbranch_scc1 L_ploop
    s_waitcnt vmcnt(16)
    s_barrier
    s_cmp_lt_u32 s60, 10
    s_cbranch_scc1 L_ploop""")
stamp(0); st8(2)
def wpart(start, cnt, thr=0):
    a(f"""    s_mul_i32 s50, s49, {cnt*1024}
    s_add_u32 s50, s50, {start*1024}
    s_and_b32 s51, s29, 3
    s_lshl_b32 s51, s51, 12""")
    if not opt["wrot"]: a("    s_mov_b32 s51, 0")
    for g in range(4):
        if thr: a(f"    s_waitcnt vmcnt({thr})")
        a(f"""    s_add_u32 m0, s50, s51
    s_add_u32 s52, m0, s24
    s_add_u32 s51, s51, 4096
    s_and_b32 s51, s51, 0x3fff""")
        for i in range(4):
            a(f"    buffer_load_dwordx4 v1, {S(SWS)}, s52 offen offset:{i*1024} sc1 lds")
    if cnt > 16:
        a(f"    s_add_u32 m0, s50, 16384\n    s_add_u32 s52, m0, s24")
        for i in range(cnt - 16):
            a(f"    buffer_load_dwordx4 v1, {S(SWS)}, s52 offen offset:{i*1024} sc1 lds")
T = opt["thr"]
if opt["lnd"]:
    a(f"""    v_mov_b32 v144, {L_CNT}
{'' if opt['el'] else '    s_sleep %d' % opt['lnd']}
    ds_read_b32 v145, v144 offset:{O_WOK}
    s_waitcnt lgkmcnt(0)
    v_cmp_eq_u32 vcc, 0, v145
    s_cbranch_vccnz L_lnd0""")
    own_slot(0); own_slot(1)
    a("    s_waitcnt vmcnt(10)")
    lds_add(O_LAND, 144, 145)
    a("    s_branch L_lnd1\nL_lnd0:")
a("    s_waitcnt vmcnt(0)")
lds_add(O_LAND, 144, 145)
lds_spin("wok", O_WOK, 1, 144, 145)
if opt["lnd"]:
    own_slot(0); own_slot(1)
    a("L_lnd1:")
SCH = ["A o0 o1 r4 B X t o2 r8 o3 dr u C o4 o5 T",
       "A o0 o1 r4 B X o2 r8 t C o3 o4 o5 T",
       "A o0 o1 r4 B X r8 t C o2 dr u o3 o4 o5 T",
       "A o0 r4 B X o1 r8 t o2 C dr u o3 o4 o5 T",
       "A o0 o1 r4 B X r8 dr C o2 o3 o4 o5 T",
       "A o0 o1 r4 B X o2 r8 C o3 o4 o5 T",
       "A X o0 o1 r4 B r8 t C o2 o3 T dr u o4 o5",
       "A o0 o1 r4 B X t o2 r8 o3 pd u C o4 o5 T",
       "A o0 o1 r4 B X r8 pd C o2 o3 o4 o5 T",
       "A X o0 r8 pd B C o1 o2 o3 o4 o5 W25 T",
       "A X o0 o1 r8 pd B C o2 o3 o4 o5 W20 T",
       "A X r4 B r8 pd C o0 o1 o2 o3 o4 o5 W30 T",
       "A X o0 r8 T pd B C o1 o2 o3 o4 o5 W25",
       "A X r8 pd B C o0 o1 o2 o3 o4 o5 W30 T"][opt["sch"]]
def run_sched(sch, tag):
    thr = 0; young = None
    for tok in sch.split():
        n = 0
        if tok == "t": thr = T
        elif tok == "u": thr = 0
        elif tok == "A": wpart(48, 16, thr); n = 16
        elif tok == "B": a("    s_waitcnt vmcnt(40)"); wpart(96, 18, thr); n = 18
        elif tok == "C": a("    s_waitcnt vmcnt(40)"); wpart(0, 16, thr); n = 16
        elif tok == "X": x_init_load(); young = 0
        elif tok[0] == "o": own_w(int(tok[1]), int(tok[1]) + 1, thr); n = 5
        elif tok == "r4": lds_spin(tag + "r4", O_REL, 4, 144, 145)
        elif tok == "r8":
            lds_spin(tag + "r8", O_REL, 8, 144, 145); stamp(1); a("    s_setprio 0")
        elif tok == "dr": lds_spin(tag + "dr", O_CNT, 4, 144, 145)
        elif tok == "pd":
            a(f"    s_cmp_eq_u32 s{sDFT}, 1\n    s_cbranch_scc1 L_{tag}pdd")
            lds_spin(tag + "pd", O_CNT, 4, 144, 145)
        elif tok == "p0": a("    s_setprio 0")
        elif tok[0] == "W":
            a(f"    s_waitcnt vmcnt({tok[1:]})"); lds_add(O_WL, 144, 145)
        elif tok == "T": trig_rows(min(young, 63))
        if young is not None: young += n
if opt["lnd"]: SCH = SCH.replace("o0 ", "").replace("o1 ", "")
run_sched(SCH, "p")
a("    s_branch L_pown")

a.label("L_serv")
a(f"""    s_lshr_b32 s53, s2, 2
    s_and_b32 s54, s2, 3
    s_mul_i32 s51, s53, {32*1280}
    s_mul_i32 s52, s54, 320
    s_add_u32 s51, s51, s52
    s_cmp_ge_u32 s2, 216
    s_cselect_b32 s51, 0x40000000, s51
    s_mov_b32 s56, 3277""")
for q in range(10):
    a(f"""    v_add_u32 v6, {64*q}, v0
    v_mul_u32_u24 v7, s56, v6
    v_lshrrev_b32 v7, 16, v7
    v_mul_u32_u24 v8, 20, v7
    v_sub_u32 v6, v6, v8
    v_mul_u32_u24 v7, 1280, v7
    v_lshl_add_u32 v{88+q}, v6, 4, v7""")
a(f"""    ; column sums: k32-step (m & 1) of matrix (m >> 1) & 1 in the first five stages, on the matrix core
    v_mov_b32 v60, 0x3f803f80
    v_mov_b32 v61, v60
    v_mov_b32 v62, v60
    v_mov_b32 v63, v60
    v_lshrrev_b32 v3, 4, v0
    v_bfe_u32 v6, v0, 2, 2                ; rho
    v_and_b32 v7, 3, v0                   ; gamma
    v_lshl_add_u32 v15, v3, 2, v6
    v_mul_u32_u24 v15, 320, v15
    v_lshl_add_u32 v15, v7, 3, v15
    v_add_u32 v15, {L_SCR}, v15
    s_and_b32 s57, s{sMI}, 1
    s_lshr_b32 s58, s{sMI}, 1
    s_lshl_b32 s52, s58, 13
    s_add_u32 s52, s52, 32768
    s_cmp_eq_u32 s{sDFT}, 1
    s_cbranch_scc1 L_sa_d
    v_lshl_add_u32 v5, v3, 3, v6
    v_lshlrev_b32 v5, 7, v5
    v_lshl_add_u32 v5, v7, 3, v5
    v_lshrrev_b32 v6, 1, v6
    v_and_b32 v7, 1, v3
    v_lshl_add_u32 v6, v7, 1, v6
    v_lshl_add_u32 v5, v6, 5, v5
    s_lshl_b32 s57, s57, 12
    s_add_u32 s52, s52, s57
    v_add_u32 v16, s52, v5
    v_xor_b32 v17, 32, v16
    v_xor_b32 v18, 64, v16
    v_xor_b32 v19, 96, v16
    s_branch L_sa_e
L_sa_d:
    s_lshl_b32 s57, s57, 2
    v_add_u32 v7, s57, v3
    v_bfe_u32 v6, v0, 1, 3
    v_xor_b32 v7, v7, v6
    v_and_b32 v6, 15, v0
    v_lshlrev_b32 v5, 7, v6
    v_lshl_add_u32 v5, v7, 4, v5
    v_add_u32 v16, s52, v5
    v_add_u32 v17, 2048, v16
    v_add_u32 v18, 4096, v16
    v_add_u32 v19, 6144, v16
L_sa_e:
    v_lshlrev_b32 v1, 4, v0
    v_lshlrev_b32 v9, 2, v0
    v_add_u32 v9, {L_CNT}, v9
    v_mov_b32 v7, 0
    s_mov_b64 exec, 0xffff
    ds_write_b32 v9, v7
    s_mov_b64 exec, -1
    v_mov_b32 v10, {L_CNT}
    v_mov_b32 v11, 1""")
for r in range(144, 160): a(f"    v_mov_b32 v{r}, 0")
a("    s_waitcnt lgkmcnt(0)")
mk_ws()
a(f"""    s_mov_b32 s47, {WS_EPOCH}
    buffer_load_dword v137, v7, {S(SWS)}, s47 offen sc1""")
if opt["cpf"]:
    a(f"""    s_getpc_b64 s[60:61]
L_pc:
    s_sub_u32 s60, s60, L_pc - {NAME}
    s_subb_u32 s61, s61, 0
    s_lshr_b32 s52, s2, 3
    s_lshl_b32 s52, s52, 10
    v_lshlrev_b32 v6, 7, v0
    v_add_u32 v6, s52, v6
    v_min_u32 v6, L_end - {NAME}, v6
    s_mov_b64 exec, 0xff
    global_load_dword v138, v6, s[60:61]
    s_mov_b64 exec, -1""")
if opt["tlb"]:
    mk_out()
    if opt["tlb"] == 1:
        a(f"""    v_lshlrev_b32 v6, 21, v0
    v_add_u32 v6, 0x1fff80, v6
    s_mov_b64 exec, 0xff
    buffer_load_dword v139, v6, {S(SWS)}, 0 offen sc1
    s_mov_b64 exec, 3
    v_lshlrev_b32 v6, 21, v0
    buffer_load_dword v140, v6, {S(SOUT)}, 0 offen
    s_mov_b64 exec, -1""")
    else:
        a(f"""    s_lshr_b32 s52, s2, 3
    s_lshl_b32 s52, s52, 3
    v_add_u32 v6, s52, v0
    v_lshlrev_b32 v6, 16, v6
    v_add_u32 v6, 0xff80, v6
    s_mov_b64 exec, 0xff
    buffer_load_dword v139, v6, {S(SWS)}, 0 offen sc1
    s_lshr_b32 s52, s2, 3
    s_lshl_b32 s52, s52, 1
    v_add_u32 v6, s52, v0
    v_lshlrev_b32 v6, 16, v6
    s_mov_b64 exec, 3
    buffer_load_dword v140, v6, {S(SOUT)}, 0 offen
    s_mov_b64 exec, -1""")
mk_wd()
def cs_pass(j):
    if opt["ex"] == 11: return
    a(f"    s_cmp_eq_u32 s{sDFT}, 1\n    s_cbranch_scc1 L_cs{j}_d")
    for i in range(4):
        a(f"    ds_read_b64_tr_b16 {P2(64+4*i)}, v{16+i}")
        a(f"    ds_read_b64_tr_b16 {P2(66+4*i)}, v{16+i} offset:512")
    a(f"    s_branch L_cs{j}_e\nL_cs{j}_d:")
    for i in range(4): a(f"    ds_read_b128 {V(64+4*i)}, v{16+i}")
    d = STG if j % 3 != 2 else -2 * STG
    a(f"L_cs{j}_e:\n    s_mov_b32 s52, {d}")
    for i in range(4): a(f"    v_add_u32 v{16+i}, s52, v{16+i}")
    a("    s_waitcnt lgkmcnt(0)")
    for i in range(4 if opt["ex"] != 10 else 0): a(mfma(144 + 4 * i, 64 + 4 * i, 60))
SST = opt["sst"]
def s_rows():
    a(f"""    v_lshrrev_b32 v2, 3, v0
    v_lshrrev_b32 v4, 2, v2
    v_lshlrev_b32 v4, 5, v4
    v_and_b32 v5, 3, v2
    v_add_u32 v4, v4, v5
    v_mul_u32_u24 v4, 1280, v4
    v_and_b32 v5, 7, v0
    v_lshl_add_u32 v4, v5, 4, v4
    s_lshl_b32 s60, s{sNT}, 6
    s_lshl_b32 s52, s{sM}, 2
    s_add_u32 s60, s60, s52
    s_mul_i32 s60, s60, 1280""")
    mk_x()
def s_load():
    for j in range(10): a(f"    buffer_load_dwordx4 {V(20+4*j)}, v4, {S(SX)}, s60 offen offset:{j*128}")
def s_init():
    a("""    v_lshlrev_b32 v136, 16, v20
    s_nop 1
    v_mov_b32_dpp v136, v136 quad_perm:[0,0,0,0] row_mask:0xf bank_mask:0xf
    s_nop 1
    v_mov_b32_dpp v136, v136 row_half_mirror row_mask:0xf bank_mask:0xa""")
    for r in range(80, 88): a(f"    v_mov_b32 v{r}, 0")
def s_chunk(i0, i1):
    for g in range(i0, i1, 2):
        for i in (g, g + 1): a(f"    v_lshlrev_b32 v{128+2*(i&1)}, 16, v{20+i}\n    v_and_b32 v{129+2*(i&1)}, 0xffff0000, v{20+i}")
        for t in range(4): a(f"    v_sub_f32 v{128+t}, v{128+t}, v136")
        for t in range(4): a(f"    v_add_f32 v{80+t}, v{80+t}, v{128+t}")
        for t in range(4): a(f"    v_fmac_f32 v{84+t}, v{128+t}, v{128+t}")
def s_fin():
    a("""    v_add_f32 v80, v80, v81
    v_add_f32 v84, v84, v85
    v_add_f32 v82, v82, v83
    v_add_f32 v86, v86, v87
    v_add_f32 v80, v80, v82
    v_add_f32 v84, v84, v86""")
    for mode in ("quad_perm:[1,0,3,2]", "quad_perm:[2,3,0,1]", "row_half_mirror"):
        a("    s_nop 1")
        for r in (80, 84): a(f"    v_add_f32_dpp v{r}, v{r}, v{r} {mode} row_mask:0xf bank_mask:0xf")
    a(f"""    v_mul_f32 v80, {f2u(1/640):#x}, v80
    v_mov_b32 v83, {f2u(1e-5):#x}
    v_fmac_f32 v83, {f2u(1/640):#x}, v84
    v_add_f32 v82, v80, v136
    v_fma_f32 v83, -v80, v80, v83
    v_max_f32 v83, {f2u(1e-5):#x}, v83
    s_lshl_b32 s60, s{sM}, 8
    s_add_u32 s60, s60, s{sNT}
    s_lshl_b32 s60, s60, 3
    v_lshlrev_b32 v2, 8, v2
    s_mov_b32 exec_lo, 0x01010101
    s_mov_b32 exec_hi, 0x01010101
    buffer_store_dwordx2 v[82:83], v2, {S(SWS)}, s60 offen sc1
    s_mov_b64 exec, -1""")
k2_setup()
if SST: s_rows()
if SST == 2: s_load()
bar("B_-1", 0)
j0 = 3 if opt["tch"] & 2 else 2
if opt["tch"] & 4: w_touch(j0, 1, 2, 4, 60)
cs_pass(0)
if SST == 1: s_load()
def wd_dma():
    for q in range(10):
        a(f"    s_mov_b32 m0, {L_SCR + q*1024}\n    s_nop 0\n    buffer_load_dwordx4 v{88+q}, {S(SWD)}, s51 offen{' nt' if opt['wdnt'] else ''} lds")
if opt["wdt"] == 0 and opt["ex"] not in (12, 13): wd_dma()
bar("B_0", 1)
if opt["tch"] & 4 and j0 == 2: w_touch(4, 0, 2, 4, 60)
cs_pass(1)
if opt["wdt"] == 1: wd_dma()
if SST:
    a(f"    s_waitcnt vmcnt({10 if opt['wdt'] == 1 else 0})")
    s_init(); s_chunk(0, 10)
bar("B_1", 2)
cs_pass(2)
if SST: s_chunk(10, 22)
def wf_read():
    a(f"""    s_waitcnt vmcnt(0)
    v_add_u32 v137, 1, v137
    ds_write_b32 v10, v137 offset:{O_TAG}
    v_readfirstlane_b32 s47, v137""")
    for jj in range(2):
        for nb in range(5):
            r = 88 + 4 * (5 * jj + nb); o = jj * 160 + nb * 32
            a(f"    ds_read_b64_tr_b16 v[{r}:{r+1}], v15 offset:{o}")
            a(f"    ds_read_b64_tr_b16 v[{r+2}:{r+3}], v15 offset:{o+5120}")
    a(f"""    s_mul_i32 s51, s54, {2*WFT}
    s_mul_i32 s52, s53, 5120
    s_add_u32 s51, s51, s52
    s_add_u32 s51, s51, {WS_WF}
    s_cmp_ge_u32 s2, 216
    s_cselect_b32 s51, 0x40000000, s51
    s_waitcnt lgkmcnt(0)""")
def wf_store(jj):
    if opt["ex"] in (12, 14): return
    for nb in range(5):
        r = 88 + 4 * (5 * jj + nb)
        if nb == 4:
            a(f"    s_add_u32 s52, s51, 4096\n    buffer_store_dwordx4 {V(r)}, v1, {S(SWS)}, s52 offen sc1")
        else:
            a(f"    buffer_store_dwordx4 {V(r)}, v1, {S(SWS)}, s51 offen offset:{nb*1024} sc1")
    if jj == 0: a(f"    s_add_u32 s51, s51, {WFT}")
if opt["wdt"] == 0: wf_read(); wf_store(0)
bar("B_2", 3)
cs_pass(3)
if opt["wdt"] == 1: wf_read(); wf_store(0)
wf_store(1)
if SST: s_chunk(22, 30)
F2L = """    v_bfe_u32 v171, v0, 1, 3
    v_and_b32 v170, 1, v0
    v_lshl_add_u32 v171, v171, 2, v170
    v_add_u32 v171, s50, v171""" if opt["es"] else "    v_add_u32 v171, s50, v0"
a(f"""    s_lshl_b32 s61, s54, 6
    s_add_u32 s61, s61, s53
    s_lshl_b32 s61, s61, 7
    s_add_u32 s61, s61, {WS_EF}
    s_lshl_b32 s53, s{sNT}, 3
    s_add_u32 s53, s53, s{sM}
    s_lshl_b32 s53, s53, 9
    s_lshl_b32 s58, s58, 8
    s_add_u32 s53, s53, s58
    s_add_u32 s53, s53, {WS_CSP}
    v_and_b32 v173, 48, v0
    ; F2 flags to wait for: lanes 0..31 (m, lane), lanes 32.. (lane & 7, nt)
    s_lshl_b32 s50, s{sM}, 5
{F2L}
    v_and_b32 v170, 7, v0
    v_lshlrev_b32 v170, 5, v170
    v_add_u32 v170, s36, v170
    v_cmp_gt_u32 vcc, 32, v0
    s_add_u32 s50, s50, s36
    s_lshl_b32 s50, s50, 7
    v_cndmask_b32 v171, v170, v171, vcc
    v_lshlrev_b32 v171, 7, v171
    v_min_u32 v170, 53, v0
    v_lshlrev_b32 v170, 7, v170
    s_add_u32 s50, s50, {WS_F2}
    s_lshr_b32 s51, s{sJ2}, 1
    s_lshl_b32 s51, s51, 13
    s_add_u32 s51, s51, {WS_EF}
    v_mov_b32 v172, s47
    v_mov_b32 v174, {L_CNT}
    v_mov_b32 v175, 1
    s_mov_b32 s59, 0""")
bar("B_3", 4)
cs_pass(4)
if SST: s_chunk(30, 40)
a(f"""    s_waitcnt vmcnt(0)
    s_mov_b64 exec, 1
    buffer_store_dword v172, v7, {S(SWS)}, s61 offen sc1
    s_mov_b32 exec_lo, 0x00010001
    s_mov_b32 exec_hi, 0x00010001
    s_nop 3""")
for i in range(4): a(f"    buffer_store_dwordx4 {V(144+4*i)}, v173, {S(SWS)}, s53 offen offset:{i*64} sc1")
a("    s_mov_b64 exec, -1")
if SST: s_fin()
bar("B_4", 5)
a(f"""    s_waitcnt vmcnt(0)
    s_mov_b64 exec, 1
    buffer_store_dword v172, v7, {S(SWS)}, s50 offen sc1     ; row statistics were drained before B_0
    s_mov_b64 exec, -1""")
if opt["el"]:
    def c_loads():
        a(f"""    v_lshlrev_b32 v6, 3, v0
    v_lshrrev_b32 v5, 5, v0
    v_lshl_add_u32 v5, v5, 10, v6
    s_lshl_b32 s53, s{sM}, 11
    s_lshl_b32 s52, s{sNT}, 12
    s_add_u32 s52, s52, {WS_CSP}""")
        for n in range(4):
            a(f"    buffer_load_dwordx2 v[{128+4*n}:{129+4*n}], v6, {S(SWS)}, s53 offen offset:{n*512} sc1")
        for n in range(4):
            a(f"    buffer_load_dwordx2 {P2(144+2*n)}, v5, {S(SWS)}, s52 offen offset:{(n>>1)*2048+(n&1)*512} sc1")
    bar("B_5", 6)
    a(f"""    s_mov_b32 s50, {WS_F2}
    buffer_load_dword v2, v170, {S(SWS)}, s51 offen sc1
    buffer_load_dword v3, v171, {S(SWS)}, s50 offen sc1""")
    bar("B_6", 7)
    a(f"""    s_waitcnt vmcnt(0)
    v_cmp_ne_u32 s[58:59], s47, v2
    v_cmp_ne_u32 s[60:61], s47, v3
    s_cmp_lg_u64 s[58:59], 0
    s_cbranch_scc1 L_l1
    ds_write_b32 v174, v175 offset:{O_WOK}
L_l1:
    s_cmp_lg_u64 s[60:61], 0
    s_cbranch_scc1 L_l2""")
    c_loads()
    a(f"""    s_branch L_l3
L_l2:
    buffer_load_dword v3, v171, {S(SWS)}, s50 offen sc1
L_l3:""")
    bar("B_7", 8)
    stamp(0)
    a(f"""    s_cmp_eq_u64 s[60:61], 0
    s_cbranch_scc1 L_l4
    s_waitcnt vmcnt(0)
    v_cmp_ne_u32 vcc, s47, v3
    s_cbranch_vccz L_p3d""")
    poll("p3", 171, "s50", 3, "s47", 3)
    c_loads()
    a(f"""L_l4:
    s_cmp_eq_u64 s[58:59], 0
    s_cbranch_scc1 L_l5""")
    poll("p1", 170, "s51", 2, "s47", 3)
    a(f"    ds_write_b32 v174, v175 offset:{O_WOK}\nL_l5:")
else:
    bar("B_5", 6)
    bar("B_6", 7)
    a(f"""    s_mov_b32 s50, {WS_F2}
    buffer_load_dword v5, v170, {S(SWS)}, s51 offen sc1
    buffer_load_dword v6, v171, {S(SWS)}, s50 offen sc1""")
    bar("B_7", 8)
    stamp(0)
    a(f"""    s_waitcnt vmcnt(0)
    v_cmp_ne_u32 s[58:59], s47, v5
    v_cmp_ne_u32 vcc, s47, v6
    s_cbranch_vccz L_p3d
    s_cmp_lg_u64 s[58:59], 0
    s_cbranch_scc1 L_p3w
    ds_write_b32 v174, v175 offset:{O_WOK}
L_p3w:""")
    poll("p3", 171, "s50", 6, "s47", 3)
    a(f"""    v_lshlrev_b32 v6, 3, v0
    v_lshrrev_b32 v5, 5, v0
    v_lshl_add_u32 v5, v5, 10, v6
    s_lshl_b32 s50, s{sM}, 11
    s_lshl_b32 s52, s{sNT}, 12
    s_add_u32 s52, s52, {WS_CSP}""")
    for n in range(4):
        a(f"    buffer_load_dwordx2 v[{128+4*n}:{129+4*n}], v6, {S(SWS)}, s50 offen offset:{n*512} sc1")
    for n in range(4):
        a(f"    buffer_load_dwordx2 {P2(144+2*n)}, v5, {S(SWS)}, s52 offen offset:{(n>>1)*2048+(n&1)*512} sc1")
    a(f"""    s_cmp_eq_u64 s[58:59], 0
    s_cbranch_scc1 L_p1d""")
    poll("p1", 170, "s51", 5, "s47", 3)
    a(f"    ds_write_b32 v174, v175 offset:{O_WOK}")
a(f"    s_waitcnt vmcnt(0)")
for n in range(4): a(f"    v_rsq_f32 v{152+n}, v{129+4*n}")
for n in range(1, 4): a(f"    v_add_f32 v144, v144, v{144+2*n}\n    v_add_f32 v145, v145, v{145+2*n}")
a(f"""    v_add_u32 v6, {L_CS}, v6
    ds_write_b64 v6, v[144:145]
    s_cmp_eq_u32 s{sDFT}, 1
    s_cbranch_scc1 L_serv_cdft
    v_add_u32 v6, {L_STAT}, v1""")
for n in range(4):
    b = 128 + 4 * n
    a(f"""    v_mov_b32 v{b+3}, v{b+1}
    v_mul_f32 v156, v{152+n}, v{152+n}
    v_xor_b32 v{b}, 0x80000000, v{b}
    v_mul_f32 v{b+1}, {f2u(-K1C):#x}, v{152+n}
    v_mul_f32 v156, v156, v{152+n}
    v_mul_f32 v{b+2}, {f2u(-K2C):#x}, v156
    ds_write_b128 v6, {V(b)} offset:{n*1024}""")
a(f"""    s_branch L_serv_cd
L_serv_cdft:
    v_lshlrev_b32 v6, 2, v0
    v_add_u32 v6, {L_STAT}, v6""")
for n in range(4):
    b = 128 + 4 * n
    a(f"""    v_mul_f32 v{b}, v{b}, v{152+n}
    v_xor_b32 v{b}, 0x80000000, v{b}
    ds_write_b32 v6, v{152+n} offset:{n*256}
    ds_write_b32 v6, v{b} offset:{1024+n*256}""")
a(f"""L_serv_cd:
    ds_write_b32 v174, v175 offset:{O_RDY}""")
stamp(1)
a("    s_waitcnt lgkmcnt(0)")
SSCH = ["X o0 o1 o2 o3 p0 t o4 o5 pd T", "X o0 o1 o2 o3 p0 T t o4 o5 pd", "X o0 o1 o2 o3 o4 o5 T p0 pd", "X o0 o1 T p0 t o2 o3 o4 o5 pd", "X o0 p0 T pd", "X o0 o1 p0 T pd", "X p0 T pd"][opt["ssch"]]
SREST = [sl for sl in range(6) if f"o{sl}" not in SSCH]
run_sched(SSCH, "s")

def item(vit, va, vg, t0):
    t1, t2 = t0 + 1, t0 + 2
    a(f"""    v_mul_u32_u24 v{t0}, s50, v{vit}
    v_lshrrev_b32 v{t0}, 16, v{t0}
    v_mul_u32_u24 v{t1}, 20, v{t0}
    v_sub_u32 v{t1}, v{vit}, v{t1}
    v_and_b32 v{vg}, 31, v{t0}
    v_lshlrev_b32 v{vg}, 6, v{vg}
    v_and_b32 v{t2}, 32, v{t0}
    v_add3_u32 v{vg}, v{vg}, v{t2}, s{sT1}
    v_mul_u32_u24 v{vg}, 1280, v{vg}
    v_lshl_add_u32 v{vg}, v{t1}, 3, v{vg}
    v_mul_u32_u24 v{va}, {PSTR}, v{t0}
    v_lshl_add_u32 v{va}, v{t1}, 3, v{va}""")
def fin_addr(tb):
    a(f"""    s_mov_b32 s50, 3277
    s_lshl_b32 s51, s{sW}, 7
    v_add_u32 v{tb}, s51, v0""")
    item(tb, 4, 6, tb + 1)
    a(f"    v_add_u32 v{tb}, 64, v{tb}")
    item(tb, 5, 7, tb + 1)
    a(f"    s_mul_i32 s59, s{sJ2}, 160")
    mk_out()
def x_loads(r):
    a(f"""    buffer_load_dwordx4 {V(r)}, v6, {S(SX)}, s59 offen
    s_mov_b64 exec, 0xffff
    buffer_load_dwordx4 {V(r+4)}, v7, {S(SX)}, s59 offen
    s_mov_b64 exec, -1""")
def part_addr(t0):
    a(f"""    v_and_b32 v{t0}, 15, v0
    v_lshrrev_b32 v{t0+1}, 4, v0
    v_mul_u32_u24 v{t0}, {PSTR}, v{t0}
    v_lshl_add_u32 v{t0}, v{t0+1}, 3, v{t0}""")
def capture(fn):
    n0 = len(a.lines); fn(); out = a.lines[n0:]; del a.lines[n0:]; return out
def k2_mfma(wbase, hbase, fill=(), start=0):
    fill = list(fill); k = 0
    for nb in range(5):
        for ts in range(4):
            a(mfma(ACC2 + 4 * (nb * 4 + ts), wbase + 4 * nb, hbase + 4 * ts))
            if k >= start and fill: a(fill.pop(0))
            k += 1
    for l in fill: a(l)
def h_load(hbase, cnt, n, oob=None, base=61):
    a(f"    s_lshl_b32 s52, s{cnt}, 17\n    s_add_u32 s52, s52, s{base}")
    if oob: a(oob)
    if opt["ex"] == 20: a("    s_mov_b32 s52, 0x40000000")
    for ts in range(4):
        a(f"    buffer_load_dwordx4 {V(hbase+4*ts)}, v1, {S(SWS)}, s52 offen offset:{ts*1024} sc1")
    rot_next(cnt, n)
def put(nb, ts, t, pr=None):
    d = ACC2 + 4 * (nb * 4 + ts)
    if pr is not None:
        a(f"""    v_lshlrev_b32 v{t}, 16, v{pr}
    v_and_b32 v{t+1}, 0xffff0000, v{pr}
    v_lshlrev_b32 v{t+2}, 16, v{pr+1}
    v_and_b32 v{t+3}, 0xffff0000, v{pr+1}""")
        for i in range(4): a(f"    v_add_f32 v{d+i}, v{d+i}, v{t+i}")
    a(f"""    v_cvt_pk_bf16_f32 v{d}, v{d}, v{d+1}
    v_cvt_pk_bf16_f32 v{d+1}, v{d+2}, v{d+3}
    ds_write_b64 v2, {P2(d)} offset:{ts*16*PSTR+nb*32}""")
def tail(steps, t, PR=None):
    for nb in range(5):
        i = 0
        if nb == 1 and PR: a("    s_waitcnt lgkmcnt(0)")
        for wb, hb in steps:
            for ts in range(4):
                a(mfma(ACC2 + 4 * (nb * 4 + ts), wb + 4 * nb, hb + 4 * ts))
                i += 1
                if nb and i >= 5: put(nb - 1, i - 5, t, PR(nb - 1, i - 5) if PR else None)
    stamp(5); st3(7)
    a("    s_nop 7")
    for ts in range(4): put(4, ts, t, PR(4, ts) if PR else None)

K2ON[0] = True
a.label("L_pown")
a(f"    v_mov_b32 v160, {L_CNT}\n    ds_read_b32 v161, v160 offset:{O_TAG}")
fin_addr(144)
a(f"""    s_mul_i32 s52, s{sJ2}, 80
    v_add_u32 v2, s52, v2             ; e (nb = 0)
    v_mul_u32_u24 v3, 5120, v3
    s_xor_b32 s56, s{sT1}, s58
    s_add_u32 s56, s56, s57
    s_and_b32 s56, s56, 31
    s_mul_i32 s56, s56, 81920
    s_mul_i32 s52, s49, {4*5120}
    s_add_u32 s56, s56, s52
    s_add_u32 s56, s56, {WS_G}
    s_cmp_ge_u32 s{sJ2}, 4
    s_cselect_b32 s57, 640, -1
    s_waitcnt lgkmcnt(0)
    v_readfirstlane_b32 s47, v161
    s_cmp_eq_u32 s{sW}, 7
    s_cbranch_scc1 L_sv2""")
if "W" not in SCH:
    a("    s_waitcnt vmcnt(0)")
    lds_add(O_WL, 144, 145)
stamp(4)
lds_spin("s1", O_S1, 1, 144, 145)
a(f"""    s_branch L_k2p
L_sv2:
"""[:-1])
a(f"""    s_lshr_b32 s50, s{sT1}, 2
    s_lshl_b32 s50, s50, 5
    v_min_u32 v144, 26, v0
    v_add_u32 v144, s50, v144
    v_lshlrev_b32 v144, 7, v144
    s_mov_b32 s50, {WS_FLAGS}""")
stamp(2)
if opt["slp"]: a(f"    s_sleep {opt['slp']}")
poll("p2", 144, "s50", 145, "s47", opt["pslp"])
stamp(4)
a(f"""    v_mov_b32 v145, 1
    ds_write_b32 v160, v145 offset:{O_S1}""")
for sl in SREST: own_slot(sl)
a("L_k2p:")
stamp(3); st3(0)
hl = [144, 160, 8, 144, 28, 160] if opt["il2"] else [144, 160, 144, 8, 160, 28]
a(f"    s_setprio {opt['pp']}")
def ph(i): h_load(hl[i], 28, 6, base=26)
def block_with_loads(wb, hb, i0, pre=()):
    if not opt["il2"]:
        k2_mfma(wb, hb)
        for l in pre: a(l)
        ph(i0); ph(i0 + 1)
        return
    A, B = capture(lambda: ph(i0)), capture(lambda: ph(i0 + 1))
    B = [l.replace("s52", "s53") for l in B]
    if opt["ex"] == 20: A = [A[0], A[2]] + A[3:]; B = [B[0], B[2]] + B[3:]
    slots = {0: A[0:1], 1: A[1:2], 2: list(pre), 4: A[2:3], 5: A[6:7], 6: A[7:8], 7: A[8:9], 8: A[3:4], 9: B[0:1], 10: B[1:2], 12: A[4:5],
             13: B[6:7], 14: B[7:8], 15: B[8:9], 16: A[5:6] + B[2:3], 17: B[3:4], 18: B[4:5], 19: B[5:6]}
    k = 0
    for nb in range(5):
        for ts in range(4):
            a(mfma(ACC2 + 4 * (nb * 4 + ts), wb + 4 * nb, hb + 4 * ts))
            for l in slots.get(k, []): a(l)
            k += 1
ph(0); ph(1)
a(f"""    s_sub_u32 s50, 7, s{sJ2}
    s_min_u32 s50, s50, s{sJ2}
    s_add_u32 s51, s50, 27
    s_mov_b32 s50, {WS_FLAGS}
    s_waitcnt vmcnt(4)""")
st3(1)
block_with_loads(8, hl[0], 2)
a(f"""    v_and_b32 v24, 7, v0
    v_lshlrev_b32 v24, 5, v24
    v_bfe_u32 v25, v0, 3, 1
    v_add3_u32 v24, v24, v25, s51
    v_lshlrev_b32 v24, 7, v24
    s_waitcnt vmcnt(8)""")
st3(2)
block_with_loads(28, hl[1], 4, [f"    buffer_load_dword v25, v24, {S(SWS)}, s50 offen sc1"])
a(f"    s_setprio {opt['pp2']}\n    s_waitcnt vmcnt(13)")
st3(3)
k2_mfma(48, hl[2])
a(f"""    s_waitcnt vmcnt(8)
    v_cmp_ne_u32 vcc, s47, v25
    s_cbranch_vccz L_pgd""")
GT = hl[2]
poll("pg", 24, "s50", 25, "s47", 2)
for nb in range(5):
    a(f"""    v_add_u32 v{GT}, {16*nb}, v2
    v_xor_b32 v{GT+1}, s58, v{GT}
    v_add_u32 v{GT+1}, s57, v{GT+1}
    v_lshl_add_u32 v{GT+1}, v{GT+1}, 4, v3""")
    if nb == 0:
        a(f"""    v_cmp_eq_u32 vcc, 0, v{GT}
    v_mov_b32 v{GT+2}, 0x40000000
    s_nop 0
    v_cndmask_b32 v{GT+1}, v{GT+1}, v{GT+2}, vcc""")
    a(f"    buffer_load_dwordx4 {V(48+4*nb)}, v{GT+1}, {S(SWS)}, s56 offen sc1")
st3(4)
k2_mfma(68, hl[3])
a("    s_waitcnt vmcnt(9)")
st3(5)
k2_mfma(88, hl[4])
part_addr(16)
a(f"""    s_mul_i32 s50, s49, 40960
    s_cmp_eq_u32 s49, 3
    s_cselect_b32 s50, {PBASE[3]}, s50
    s_add_u32 s50, s50, {64*PSTR}
    v_add_u32 v2, s50, v16
    s_lshl_b32 s50, s49, 2
    s_add_u32 s50, s50, {L_CNT + O_PF}""")
lds_spin("pf", "s50", 1, 16, 17)
a("    s_waitcnt vmcnt(0)")
st3(6)
tail(((108, hl[5]), (48, 128)), 16)
a("    s_branch L_final")

K2ON[0] = False
a.label("L_cons")
sNH, sSH = 47, 49
ESEL = f"""    s_bitcmp1_b32 s36, 1
    s_cbranch_scc1 L_ch3
    s_and_b32 s52, s36, 1
    s_add_u32 s53, s36, s52
    s_add_u32 s53, s53, s{sSH}           ; s1 = 4 j + 2 g + (w >> 1)
    s_mov_b32 s52, s{sNH}""" if opt["es"] else f"""    s_add_u32 s52, s{sW}, 1
    s_and_b32 s52, s52, 2
    s_cmp_eq_u32 s52, 0
    s_cbranch_scc1 L_ch3
    s_sub_u32 s52, s{sW}, 1
    s_mov_b32 s53, s36"""
a(f"""    s_and_b32 s{sNH}, s{sW}, 1
    s_lshr_b32 s{sSH}, s{sW}, 1
    v_and_b32 v2, 15, v0
    v_lshrrev_b32 v3, 4, v0
    v_bfe_u32 v6, v0, 1, 3
    s_lshl_b32 s50, s{sSH}, 14
    v_lshlrev_b32 v1, 7, v2
    v_add_u32 v1, s50, v1
    v_xor_b32 v7, v3, v6
    v_lshl_add_u32 v8, v7, 4, v1
    v_xor_b32 v9, 64, v8
{ESEL}
    v_mul_u32_u24 v6, 1280, v3
    v_lshl_add_u32 v6, v2, 4, v6
    s_lshl_b32 s50, s53, 6
    s_lshl_b32 s51, s52, 5
    s_add_u32 s50, s50, s51
    s_lshl_b32 s51, s{sM}, 2
    s_add_u32 s50, s50, s51
    s_mul_i32 s50, s50, 1280
    s_waitcnt lgkmcnt(0)""")
mk_x()
for j in range(5): a(f"    buffer_load_dwordx4 {V(16+4*j)}, v6, {S(SX)}, s50 offen offset:{j*256}")
mk_ws()
for r in range(128, 256): a(f"    v_mov_b32 v{r}, 0")
for r in range(40, 48): a(f"    v_mov_b32 v{r}, 0")
a(f"""    s_lshl_b32 s50, s{sM}, 11
    s_lshl_b32 s51, s52, 10
    s_add_u32 s50, s50, s51
    s_lshl_b32 s51, s53, 3
    s_add_u32 s50, s50, s51
    v_lshlrev_b32 v4, 8, v3
    s_waitcnt vmcnt(0)
    v_lshlrev_b32 v36, 16, v16
    s_nop 1
    v_mov_b32_dpp v36, v36 row_newbcast:0 row_mask:0xf bank_mask:0xf""")
for g in range(0, 20, 4):
    for i in range(g, g + 4): a(f"    v_lshlrev_b32 v{48+2*(i&3)}, 16, v{16+i}\n    v_and_b32 v{49+2*(i&3)}, 0xffff0000, v{16+i}")
    for i in range(g, g + 4): a(f"    v_pk_add_f32 {P2(48+2*(i&3))}, {P2(48+2*(i&3))}, v[36:37] op_sel_hi:[1,0] neg_lo:[0,1] neg_hi:[0,1]")
    for i in range(g, g + 4): a(f"    v_pk_add_f32 {P2(40+2*(i&1))}, {P2(40+2*(i&1))}, {P2(48+2*(i&3))}")
    for i in range(g, g + 4): a(f"    v_pk_fma_f32 {P2(44+2*(i&1))}, {P2(48+2*(i&3))}, {P2(48+2*(i&3))}, {P2(44+2*(i&1))}")
a("""    v_pk_add_f32 v[40:41], v[40:41], v[42:43]
    v_pk_add_f32 v[44:45], v[44:45], v[46:47]
    v_add_f32 v40, v40, v41
    v_add_f32 v44, v44, v45""")
for mode in ("quad_perm:[1,0,3,2]", "quad_perm:[2,3,0,1]", "row_half_mirror", "row_mirror"):
    a("    s_nop 1")
    for r in (40, 44): a(f"    v_add_f32_dpp v{r}, v{r}, v{r} {mode} row_mask:0xf bank_mask:0xf")
a(f"""    v_mul_f32 v40, {f2u(1/640):#x}, v40
    v_mov_b32 v39, {f2u(1e-5):#x}
    v_fmac_f32 v39, {f2u(1/640):#x}, v44
    v_add_f32 v38, v40, v36
    v_fma_f32 v39, -v40, v40, v39
    v_max_f32 v39, {f2u(1e-5):#x}, v39
    s_mov_b32 exec_lo, 0x00010001
    s_mov_b32 exec_hi, 0x00010001
    buffer_store_dwordx2 v[38:39], v4, {S(SWS)}, s50 offen sc1
    s_mov_b64 exec, -1
    s_branch L_chd
L_ch3:
    s_waitcnt lgkmcnt(0)""")
if opt["tch"] & 1:
    a(f"    s_cmp_lg_u32 s{sW}, 0\n    s_cbranch_scc1 L_nt")
    w_touch(1, opt["tch"] & 2, 6, 127, 50)
    a("L_nt:")
mk_ws()
for r in range(128, 256): a(f"    v_mov_b32 v{r}, 0")
a(f"""L_chd:
    s_mov_b32 s60, 10
    s_mov_b32 s61, 0
    v_mov_b32 v120, {L_CNT}
    v_mov_b32 v121, 1
    s_cmp_eq_u32 s{sDFT}, 1
    s_cbranch_scc1 L_cdft""")

XF = 16
WF = [48, 64]
def acc(i, st): return 128 + 16 * st + 4 * i
def xr(st, kk): return f"    ds_read_b128 {V(XF+4*st)}, v{8+kk} offset:{st*2048}"
def wr(dft, kk):
    b = WF[kk]
    if dft: return [[f"    ds_read_b128 {V(b+4*i)}, v{12+kk} offset:{(i>>1)*8192+(i&1)*2048}"] for i in range(4)]
    return [[f"    ds_read_b64_tr_b16 {P2(b+4*i)}, v{12+(i&1)} offset:{kk*4096+(i>>1)*8192}",
             f"    ds_read_b64_tr_b16 {P2(b+4*i+2)}, v{12+(i&1)} offset:{kk*4096+(i>>1)*8192+512}"] for i in range(4)]
def main_loop(dft, tag):
    nw = 1 if dft else 2
    stamp(8); st8(0)
    bar("B_-1")
    stamp(0); st8(1)
    W = wr(dft, 0)
    a(xr(0, 0)); a(xr(1, 0))
    for st in range(2, 8):
        a(xr(st, 0))
        if st < 6:
            for r in W[st - 2]: a(r)
    a(".p2align 3")
    a.label(f"L_{tag}_loop")
    for kk in range(2):
        W = wr(dft, 1 - kk)
        for st in range(8):
            if st == 0: a(f"    s_waitcnt lgkmcnt({2 if kk == 0 else 5})")
            if st == 4 and kk == 0: a(f"    s_waitcnt lgkmcnt({4 + 4*nw})")
            if kk == 1 and st == 2:
                a(f"""    s_cmp_le_u32 s60, 2
    s_cbranch_scc1 L_{tag}_rel
    s_waitcnt vmcnt(0) lgkmcnt(0)
    s_barrier
L_{tag}_reld:""")
                a(xr(0, 0)); a(xr(1, 0))
            ex = []
            if kk == 0: ex = [xr(st, 1)] + (W[st] if st < 4 else [])
            elif st >= 2: ex = [xr(st, 0)] + (W[st - 2] if st < 6 else [])
            for i in range(4):
                w, x = WF[kk] + 4 * i, XF + 4 * st
                i2, st2 = i, st
                if opt["ex"] == 6: i2, st2 = st & 3, (st & 4) + i
                if opt["ex"] == 7: i2, st2 = (i if st % 2 == 0 else 3 - i), st
                if opt["ex"] == 8: i2, st2 = (st >> 1), 4 * (st & 1) + i
                w, x = WF[kk] + 4 * i2, XF + 4 * st2
                if opt["ex"] == 9: a(mfma(acc(i2, st2), x, w))
                else: a(mfma(acc(i2, st2), x, w) if dft else mfma(acc(i2, st2), w, x))
                if i == 3: a(ex[0]) if ex else None
                elif i < len(ex) - 1: a(ex[1 + i])
            if kk == 0 and st == 7: a(f"    ds_read_b32 v122, v120 offset:{O_LAND}")
            if kk == 1 and st == 0:
                a(f"""    s_add_u32 s61, s61, 1
    s_cmp_eq_u32 s61, 3
    s_cselect_b32 s62, {-3*STG}, 0
    s_cselect_b32 s61, 0, s61
    s_add_u32 s62, s62, {STG}""")
            if kk == 1 and st == 1:
                for r in (8, 9, 12, 13): a(f"    v_add_u32 v{r}, s62, v{r}")
    a(f"""    s_sub_u32 s60, s60, 1
    s_cmp_lg_u32 s60, {1 if opt['fin'] and not dft else 0}
    s_cbranch_scc1 L_{tag}_loop
    s_branch L_{tag}_epi
L_{tag}_rel:
    s_mov_b32 s62, 0
    s_waitcnt lgkmcnt(0)
    s_mov_b64 exec, 1
    ds_add_u32 v120, v121 offset:{O_REL}
    s_mov_b64 exec, -1
L_{tag}_land:
    v_cmp_gt_u32 vcc, 3, v122
    s_cbranch_vccz L_{tag}_reld
    ds_read_b32 v122, v120 offset:{O_LAND}
    s_add_u32 s62, s62, 1
    s_waitcnt lgkmcnt(0)
    s_cmp_lt_u32 s62, 0x400000
    s_cbranch_scc1 L_{tag}_land
    s_branch L_{tag}_reld
L_{tag}_epi:""")
    stamp(1); st8(2)
    if opt["fin"] and not dft:
        for r in wr(False, 1):
            for q in r: a(q)
        a(f"    ds_read_b128 {V(80)}, v9 offset:0")
        a("    s_waitcnt lgkmcnt(11)")
        for i in range(4): a(mfma(acc(i, 0), WF[0] + 4 * i, XF))
    a("    s_setprio 3\n    s_mov_b32 s60, 0")
    a.label(f"L_{tag}_rdy")
    a(f"    ds_read_b32 v122, v120 offset:{O_RDY}\n    ds_read_b32 v123, v120 offset:{O_TAG}")
def rdy_check(tag, n):
    a(f"""    s_waitcnt lgkmcnt({n})
    v_cmp_eq_u32 vcc, 0, v122
    s_add_u32 s60, s60, 1
    s_cbranch_vccz L_{tag}_go
    s_cmp_lt_u32 s60, 0x400000
    s_cbranch_scc1 L_{tag}_rdy
L_{tag}_go:""")

a(f"""    v_bfe_u32 v6, v0, 2, 2            ; rho
    v_lshl_add_u32 v7, v3, 3, v6
    v_lshlrev_b32 v12, 7, v7
    v_and_b32 v7, 3, v0
    v_lshl_add_u32 v12, v7, 3, v12
    v_lshrrev_b32 v6, 1, v6
    v_and_b32 v7, 1, v3
    v_lshl_add_u32 v6, v7, 1, v6
    s_lshl_b32 s50, s{sNH}, 1
    v_xor_b32 v6, s50, v6
    v_lshl_add_u32 v12, v6, 5, v12
    v_add_u32 v12, 32768, v12
    v_xor_b32 v13, 32, v12
    s_lshl_b32 s50, s{sNH}, 7
    s_add_u32 s50, s50, {L_CS}
    v_lshl_add_u32 v4, v3, 4, s50
    s_lshl_b32 s51, s{sSH}, 11
    s_add_u32 s51, s51, {L_STAT}
    v_lshl_add_u32 v5, v2, 4, s51
    v_lshlrev_b32 v6, 4, v0
    s_lshl_b32 s50, s{sNT}, 1
    s_add_u32 s50, s50, s{sNH}
    s_lshl_b32 s50, s50, 17
    s_lshl_b32 s51, s{sM}, 14
    s_add_u32 s50, s50, s51
    s_lshl_b32 s51, s{sSH}, 11
    s_add_u32 s50, s50, s51
    s_add_u32 s50, s50, {WS_H}""")
main_loop(False, "cf")
if opt["fin"]:
    CG, RC, Z = 96, 112, 88
    for i in range(4): a(f"    ds_read_b128 {V(CG+4*i)}, v4 offset:{(i>>1)*256+(i&1)*64}")
    a(f"    ds_read_b128 {V(RC)}, v5")
    rdy_check("cf", 0)
    def mf(st, kk): return [mfma(acc(i, st), WF[kk] + 4 * i, (XF + 4 * st) if kk == 0 else 80 + 4 * (st & 1)) for i in range(4)]
    a(f"    ds_read_b128 {V(84)}, v9 offset:2048")
    for m_ in mf(0, 1): a(m_)
    for st in range(8):
        c0, c1 = P2(RC + 4 * (st & 1)), P2(RC + 2 + 4 * (st & 1))
        A = lambda i: P2(acc(0, st) + 2 * i)
        U = lambda i: P2(acc(2, st) + 2 * i)
        ZZ = lambda i: P2(Z + 2 * i)
        nx = st + 1
        a("    s_waitcnt lgkmcnt(0)")
        if nx < 8: a(f"    ds_read_b128 {V(RC+4*(nx&1))}, v5 offset:{nx*256}")
        if nx < 7: a(f"    ds_read_b128 {V(80+4*(st&1))}, v9 offset:{(nx+1)*2048}")
        if nx == 7:
            a(f"    s_mov_b64 exec, 1\n    ds_add_u32 v120, v121 offset:{O_REL}\n    s_mov_b64 exec, -1")
        if st == 0: a("    s_nop 4")
        for i in range(4): a(f"    v_pk_fma_f32 {A(i)}, {P2(CG+2*i)}, {c0}, {A(i)} op_sel_hi:[1,0,1]")
        for i in range(4): a(f"    v_pk_mul_f32 {ZZ(i)}, {A(i)}, {A(i)}")
        for i in range(4): a(f"    v_pk_fma_f32 {ZZ(i)}, {ZZ(i)}, {c1}, {c0} op_sel:[0,0,1] op_sel_hi:[1,0,1]")
        for i in range(4): a(f"    v_pk_mul_f32 {ZZ(i)}, {ZZ(i)}, {A(i)}")
        for i in range(4): a(f"    v_pk_fma_f32 {U(i)}, {P2(CG+8+2*i)}, {c0}, {U(i)} op_sel_hi:[1,0,1]")
        for i in range(4): a(f"    v_pk_mul_f32 {U(i)}, {U(i)}, {A(i)}")
        m0_ = mf(nx, 0) if nx < 8 else [None] * 4
        m1_ = mf(nx, 1) if nx < 8 else [None] * 4
        for i in range(4):
            if m0_[i]: a(m0_[i])
            a(f"    v_exp_f32 v{Z+2*i}, v{Z+2*i}\n    v_exp_f32 v{Z+2*i+1}, v{Z+2*i+1}")
        for i in range(8): a(f"    v_fma_f32 v{Z+i}, v{Z+i}, v{RC+3+4*(st&1)}, v{RC+3+4*(st&1)}")
        for i in range(4):
            if m1_[i]: a(m1_[i])
            a(f"    v_rcp_f32 v{Z+2*i}, v{Z+2*i}\n    v_rcp_f32 v{Z+2*i+1}, v{Z+2*i+1}")
        for i in range(4): a(f"    v_pk_mul_f32 {U(i)}, {U(i)}, {ZZ(i)}")
        for i in range(4): a(f"    v_cvt_pk_bf16_f32 v{acc(0,st)+i}, v{acc(2,st)+2*i}, v{acc(2,st)+2*i+1}")
        a(f"    buffer_store_dwordx4 {V(acc(0,st))}, v6, {S(SWS)}, s50 offen offset:{(st&1)*1024} sc1")
        if st & 1 and st < 7: a("    s_add_u32 s50, s50, 4096")
else:
    a(f"    ds_read_b128 {V(32)}, v5")
    for i in range(4): a(f"    ds_read_b128 {V(16+4*i)}, v4 offset:{(i>>1)*256+(i&1)*64}")
    for st in range(1, 8): a(f"    ds_read_b128 {V(32+4*st)}, v5 offset:{st*256}")
    rdy_check("cf", 7)
    for st in range(8):
        c0, c1 = P2(32 + 4 * st), P2(34 + 4 * st)
        if st == 1: a("    s_waitcnt lgkmcnt(0)")
        ob = 88 + 4 * (st & 1)
        TG = lambda i: 64 + 2 * i
        TU = lambda i: 72 + 2 * i
        Z = lambda i: 80 + 2 * i
        for i in range(4): a(f"    v_pk_fma_f32 {P2(TG(i))}, {P2(16+2*i)}, {c0}, {P2(acc(0,st)+2*i)} op_sel_hi:[1,0,1]")
        for i in range(4): a(f"    v_pk_mul_f32 {P2(Z(i))}, {P2(TG(i))}, {P2(TG(i))}")
        for i in range(4): a(f"    v_pk_fma_f32 {P2(Z(i))}, {P2(Z(i))}, {c1}, {c0} op_sel:[0,0,1] op_sel_hi:[1,0,1]")
        for i in range(4): a(f"    v_pk_mul_f32 {P2(Z(i))}, {P2(Z(i))}, {P2(TG(i))}")
        for i in range(4): a(f"    v_exp_f32 v{Z(i)}, v{Z(i)}\n    v_exp_f32 v{Z(i)+1}, v{Z(i)+1}")
        for i in range(4): a(f"    v_pk_fma_f32 {P2(TU(i))}, {P2(24+2*i)}, {c0}, {P2(acc(2,st)+2*i)} op_sel_hi:[1,0,1]")
        for i in range(4): a(f"    v_pk_fma_f32 {P2(Z(i))}, {P2(Z(i))}, {c1}, {c1} op_sel:[0,1,1] op_sel_hi:[1,1,1]")
        for i in range(4): a(f"    v_rcp_f32 v{Z(i)}, v{Z(i)}\n    v_rcp_f32 v{Z(i)+1}, v{Z(i)+1}")
        for i in range(4): a(f"    v_pk_mul_f32 {P2(TU(i))}, {P2(TU(i))}, {P2(TG(i))}")
        for i in range(4): a(f"    v_pk_mul_f32 {P2(TU(i))}, {P2(TU(i))}, {P2(Z(i))}")
        for i in range(4): a(f"    v_cvt_pk_bf16_f32 v{ob+i}, v{TU(i)}, v{TU(i)+1}")
        a(f"    buffer_store_dwordx4 {V(ob)}, v6, {S(SWS)}, s50 offen offset:{(st&1)*1024} sc1")
        if st & 1 and st < 7: a("    s_add_u32 s50, s50, 4096")
a("    s_branch L_cdone")

a.label("L_cdft")
a(f"""    s_lshl_b32 s50, s{sNH}, 12
    s_lshl_b32 s51, s{sSH}, 14
    s_sub_u32 s50, s50, s51
    s_add_u32 s50, s50, 32768
    v_add_u32 v12, s50, v8
    v_add_u32 v13, s50, v9
    s_lshl_b32 s51, s{sSH}, 9
    s_add_u32 s51, s51, {L_STAT}
    v_lshl_add_u32 v1, v3, 4, s51
    s_lshl_b32 s50, s{sNH}, 7
    s_add_u32 s50, s50, {L_CS}
    v_lshl_add_u32 v7, v2, 2, s50
    v_mul_u32_u24 v6, {4*81920}, v3
    v_lshl_add_u32 v6, v2, 4, v6
    s_lshl_b32 s50, s{sSH}, 3
    s_add_u32 s50, s50, s{sM}
    s_mul_i32 s50, s50, 5120
    s_sub_u32 s51, s{sNT}, 27
    s_lshl_b32 s51, s51, 1
    s_add_u32 s51, s51, s{sNH}
    s_lshl_b32 s51, s51, 9
    s_add_u32 s50, s50, s51
    s_add_u32 s50, s50, {WS_G}
    ; 32-point DFT fragments (row t1 = 16 th + (l & 15), s1 = 16 b + 4 (l >> 4) + 0..3): cos v80.., sin v88.., -cos v96..
    v_lshlrev_b32 v104, 2, v3""")
for th in range(2):
    a(f"    v_add_u32 v105, {16*th}, v2")
    for b in range(2):
        a(f"""    v_add_u32 v106, {16*b}, v104
    v_mul_u32_u24 v108, v106, v105
    v_add_u32 v109, v108, v105
    v_add_u32 v110, v109, v105
    v_add_u32 v111, v110, v105""")
        trig4(108, 80 + 4 * th + 2 * b, 88 + 4 * th + 2 * b, 31, 1 / 32, False)
for r in range(8): a(f"    v_xor_b32 v{96+r}, 0x80008000, v{80+r}")
main_loop(True, "cd")
for i in range(4): a(f"    ds_read_b32 v{8+i}, v7 offset:{(i>>1)*256+(i&1)*64}")
def rd_rows(st):
    a(f"    ds_read_b128 {V(16+4*st)}, v1 offset:{st*64}\n    ds_read_b128 {V(48+4*st)}, v1 offset:{1024+st*64}")
for st in range(4): rd_rows(st)
rdy_check("cd", 0)
for st in range(4, 8): rd_rows(st)
for et in range(2):
    for c in range(4):
        if et == 0 and c == 2: a("    s_waitcnt lgkmcnt(0)")
        for mat in range(2):
            i = 2 * mat + et
            cs = P2(8 + (i & ~1)); sel = "op_sel_hi:[1,0]" if (i & 1) == 0 else "op_sel:[0,1] op_sel_hi:[1,1]"
            q = [(st, p) for st in (2 * c, 2 * c + 1) for p in range(2)]
            for n, (st, p) in enumerate(q): a(f"    v_pk_mul_f32 {P2(104+2*n)}, {P2(48+4*st+2*p)}, {cs} {sel}")
            for n, (st, p) in enumerate(q): a(f"    v_pk_fma_f32 {P2(104+2*n)}, {P2(acc(i,st)+2*p)}, {P2(16+4*st+2*p)}, {P2(104+2*n)}")
            for n, (st, p) in enumerate(q): a(f"    v_cvt_pk_bf16_f32 v{acc(i,2*c)+n}, v{104+2*n}, v{105+2*n}")
def dreg(rnd, c, im): return acc(2 * im + (rnd & 1), 2 * c + 1)
def g_store(rnd, r):
    et, th = rnd >> 1, rnd & 1
    ob = 104 + 4 * (r & 1)
    return [f"    v_cvt_pk_bf16_f32 v{ob}, v{dreg(rnd,0,0)+r}, v{dreg(rnd,1,0)+r}",
            f"    v_cvt_pk_bf16_f32 v{ob+1}, v{dreg(rnd,2,0)+r}, v{dreg(rnd,3,0)+r}",
            f"    v_cvt_pk_bf16_f32 v{ob+2}, v{dreg(rnd,0,1)+r}, v{dreg(rnd,1,1)+r}",
            f"    v_cvt_pk_bf16_f32 v{ob+3}, v{dreg(rnd,2,1)+r}, v{dreg(rnd,3,1)+r}",
            f"    s_add_u32 s51, s50, {(16*th + r)*81920 + et*256}\n    buffer_store_dwordx4 {V(ob)}, v6, {S(SWS)}, s51 offen sc1"]
a("    s_nop 1")
for rnd in range(4):
    et, th = rnd >> 1, rnd & 1
    mf = []
    for c in range(4):
        mf.append(mfma(dreg(rnd, c, 0), 80 + 4 * th, acc(et, 2 * c), "0"))
        mf.append(mfma(dreg(rnd, c, 1), 88 + 4 * th, acc(et, 2 * c), "0"))
    for c in range(4):
        mf.append(mfma(dreg(rnd, c, 0), 88 + 4 * th, acc(2 + et, 2 * c)))
        mf.append(mfma(dreg(rnd, c, 1), 96 + 4 * th, acc(2 + et, 2 * c)))
    fill = sum((g_store(rnd - 1, r) for r in range(4)), []) if rnd else []
    for n, m_ in enumerate(mf):
        a(m_)
        if n >= 8 and fill:
            for o in fill[:3]: a(o)
            fill = fill[3:]
    for o in fill: a(o)
a("    s_nop 7")
for r in range(4):
    for o in g_store(3, r): a(o)

K2ON[0] = True
a.label("L_cdone")
stamp(2)
a(f"""    s_lshl_b32 s46, s{sM}, 5
    s_add_u32 s46, s46, s{sNT}
    s_lshl_b32 s46, s46, 7
    s_add_u32 s46, s46, {WS_FLAGS}
    v_mov_b32 v124, 0
    s_waitcnt vmcnt(0)
    s_mov_b64 exec, 1
    ds_add_rtn_u32 v122, v120, v121
    s_waitcnt lgkmcnt(0)
    v_cmp_eq_u32 vcc, 3, v122
    s_cbranch_vccz L_nofl
    buffer_store_dword v123, v124, {S(SWS)}, s46 offen sc1
L_nofl:
    s_mov_b64 exec, -1""")
stamp(3)
a(f"    s_setprio {opt['cp']}")
fin_addr(8)
for r in range(ACC2, 256): a(f"    v_mov_b32 v{r}, 0")
a(f"""    v_lshlrev_b32 v1, 4, v0
    s_lshl_b32 s50, s{sW}, 3
    s_cmp_eq_u32 s{sW}, 3
    s_cselect_b32 s50, 23, s50
    s_mul_i32 s55, s50, 5120
    v_add_u32 v3, s55, v1
    s_lshl_b32 s61, s50, 17
    s_lshl_b32 s62, s{sT1}, 12
    s_add_u32 s61, s61, s62
    s_add_u32 s61, s61, {WS_H}
    s_cmp_lt_u32 s{sW}, 2
    s_cselect_b32 s62, 8, 7
    s_cmp_ge_u32 s39, s62
    s_cselect_b32 s63, 0, s39""")
if not opt["rot2"]: a("    s_mov_b32 s63, 0")
lds_spin("cs1", O_S1, 1, 8, 9)
stamp(4); st3(0)
LA = opt['la']
def c_hload(st):
    h_load(48 + 16 * st, 63, "s62", oob=(f"    s_cmp_lt_u32 s{sW}, 2\n    s_cselect_b32 s52, s52, 0x40000000" if st == 7 else None))
a("    s_mov_b32 s58, s63")
for st in range(opt["h1st"] or LA): c_hload(st)
lds_spin("cwl", O_WL, 3, 8, 9)
def w_reads(st):
    b = 8 + 20 * (st & 1)
    a("    s_mul_i32 s52, s58, 5120\n    v_add_u32 v2, s52, v3")
    rot_next(58, "s62")
    for nb in range(5): a(f"    ds_read_b128 {V(b+4*nb)}, v2 offset:{nb*1024}")
w_reads(0)
for st in range(opt["h1st"] or LA, LA): c_hload(st)
if opt["il"]:
    for st in range(6):
        a(f"    s_waitcnt vmcnt({4 * min(LA - 1, 7 - st)}) lgkmcnt(0)")
        st3(1 + st)
        fill = capture(lambda: w_reads(st + 1))
        if st + LA < 8: fill += capture(lambda: c_hload(st + LA))
        k2_mfma(8 + 20 * (st & 1), 48 + 16 * st, fill)
else:
    for st in range(6):
        w_reads(st + 1)
        a(f"    s_waitcnt vmcnt({4 * min(LA - 1, 7 - st)}) lgkmcnt(5)")
        if PROF == 3: a("    s_waitcnt lgkmcnt(0)"); st3(1 + st)
        k2_mfma(8 + 20 * (st & 1), 48 + 16 * st)
        if st + LA < 8: c_hload(st + LA)
w_reads(7)
part_addr(56)
a(f"""    s_lshl_b32 s50, s{sW}, 2
    s_add_u32 s50, s50, {L_CNT + O_PF}
    v_mov_b32 v57, s50
    v_mov_b32 v58, 1
    s_waitcnt vmcnt(0) lgkmcnt(0)
    ds_write_b32 v57, v58
    v_add_u32 v2, s55, v56""")
tail(((8, 144), (28, 160)), 60)
st3(8)

a(f"""    s_mov_b32 s50, 3277
    s_lshl_b32 s51, s{sW}, 6
    s_add_u32 s51, s51, 1024
    v_add_u32 v64, s51, v0""")
item(64, 8, 9, 65)
a.label("L_final")
a(f"""    v_add_u32 v16, 81920, v4
    v_add_u32 v17, 81920, v5
    v_add_u32 v18, 81920, v8
    s_waitcnt lgkmcnt(0)""")
bar("R2")
stamp(6)
OST = ["", " sc1", " nt"][opt["ost"]]
def rd_item(va, vb, dst):
    for w in range(8):
        b = PBASE[w & 3] + (w >> 2) * 64 * PSTR
        r, o = (va, b) if b < 65536 else (vb, b - 81920)
        a(f"    ds_read_b64 {P2(dst+2*w)}, v{r} offset:{o}")
def sum_item(dst, t, vg):
    for w in range(0, 8, 2):
        for k in range(2):
            u = t + 4 * k if w == 0 else 20 + 4 * k
            for i in range(2): a(f"    v_lshlrev_b32 v{u+2*i}, 16, v{dst+2*(w+k)+i}\n    v_and_b32 v{u+1+2*i}, 0xffff0000, v{dst+2*(w+k)+i}")
        for k in range(4 if w else 0): a(f"    v_pk_add_f32 {P2(t+2*k)}, {P2(t+2*k)}, {P2(20+2*k)}")
    a(f"    v_pk_add_f32 {P2(t)}, {P2(t)}, {P2(t+4)}\n    v_pk_add_f32 {P2(t+2)}, {P2(t+2)}, {P2(t+6)}")
    a(f"    v_cvt_pk_bf16_f32 v{t+8}, v{t}, v{t+1}\n    v_cvt_pk_bf16_f32 v{t+9}, v{t+2}, v{t+3}")
    a(f"    buffer_store_dwordx2 {P2(t+8)}, v{vg}, {S(SOUT)}, s59 offen{OST}")
rd_item(4, 16, 64)
rd_item(5, 17, 80)
a(f"""    s_cmp_ge_u32 s{sW}, 4
    s_cbranch_scc1 L_fin2
    s_waitcnt lgkmcnt(8)""")
rd_item(8, 18, 96)
sum_item(64, 32, 6)
a("    s_waitcnt lgkmcnt(8)")
sum_item(80, 44, 7)
a("    s_waitcnt lgkmcnt(0)")
sum_item(96, 32, 9)
a("    s_branch L_fin3\nL_fin2:\n    s_waitcnt lgkmcnt(8)")
sum_item(64, 32, 6)
a("    s_waitcnt lgkmcnt(0)")
sum_item(80, 44, 7)
a("L_fin3:")
stamp(7)
a(f"""    s_cmp_lg_u32 s2, 0
    s_cbranch_scc1 L_noep
    s_cmp_lg_u32 s{sW}, 7
    s_cbranch_scc1 L_noep
    s_mov_b64 exec, -1
    v_lshlrev_b32 v8, 9, v0
    s_mov_b32 s50, {WS_EF}
    s_mov_b32 s60, 0
L_ep:
    buffer_load_dword v12, v8, {S(SWS)}, s50 offen sc1
    buffer_load_dword v13, v8, {S(SWS)}, s50 offen offset:128 sc1
    buffer_load_dword v14, v8, {S(SWS)}, s50 offen offset:256 sc1
    buffer_load_dword v15, v8, {S(SWS)}, s50 offen offset:384 sc1
    s_add_u32 s60, s60, 1
    s_waitcnt vmcnt(0)
    v_xor_b32 v12, s47, v12
    v_xor_b32 v13, s47, v13
    v_xor_b32 v14, s47, v14
    v_xor_b32 v15, s47, v15
    v_or3_b32 v12, v12, v13, v14
    v_or_b32 v12, v12, v15
    v_cmp_ne_u32 vcc, 0, v12
    s_cbranch_vccz L_epd
    s_sleep 4
    s_cmp_lt_u32 s60, 0x40000
    s_cbranch_scc1 L_ep
L_epd:
    v_mov_b32 v12, s47
    v_mov_b32 v13, 0
    s_mov_b32 s50, {WS_EPOCH}
    s_mov_b64 exec, 1
    buffer_store_dword v12, v13, {S(SWS)}, s50 offen sc1
L_noep:""")
if PROF == 8:
    mk_dbg()
    a(f"""    s_cmp_lg_u32 s2, 77
    s_cbranch_scc1 L_end
    s_memrealtime s[88:89]
    s_waitcnt lgkmcnt(0)
    s_sub_u32 s93, s88, s100
    s_lshr_b32 s50, s{sW}, 1
    s_lshl_b32 s50, s50, 4
    s_bitcmp1_b32 s{sW}, 0
    s_cbranch_scc1 L_end
    v_mov_b32 v7, 0
    s_mov_b64 exec, 1""")
    for k in range(4):
        a(f"    v_mov_b32 v6, s{90+k}\n    buffer_store_dword v6, v7, {S(SDBG)}, s50 offen offset:{4*k}")
elif PROF:
    mk_ws()
    a(f"""    s_memrealtime s[88:89]
    s_waitcnt lgkmcnt(0)
    s_mov_b32 s99, s88
    s_lshl_b32 s50, s2, 3
    s_add_u32 s50, s50, s{sW}
    s_lshl_b32 s50, s50, 6
    s_add_u32 s50, s50, {WS_PROF}
    v_mov_b32 v7, 0
    s_mov_b64 exec, 1""")
    for k in range(10):
        a(f"    v_mov_b32 v6, s{90+k}\n    buffer_store_dword v6, v7, {S(SWS)}, s50 offen offset:{4*k}")
a.label("L_end")
a("    s_endpgm")
a('.section .rodata,"a"')
a(kd(NAME, 256, 102, 256))
open(sys.argv[1], "w").write(a.text())
```

```python
import sys, math, struct
from asmlib import *

NAME = "parallel_sum__spectral_fnet__geglu_ffn__prompt_kernel"
opt = dict(prof=0, xo=2, irot=1, rot2=1, la=3, nodma=0, wrot=1, thr=3, pslp=3, touch=0, pp=0, cp=0, slp=0, nt=0, ost=0, sch=8, ssch=1, pp2=0, h1st=0, ex=0, fin=1, map2=0, cpf=1, tlb=0, lnd=3, el=0, il=1, il2=1, rmap=0, es=0, wdnt=1, wdt=0, tch=0, sst=0)
for a_ in sys.argv[2:]:
    k, v = a_.split("="); assert k in opt, k; opt[k] = int(v)
PROF = opt["prof"]

WS_STATS, WS_FLAGS, WS_WF, WS_CSP, WS_H, WS_G = 0, 0x8000, 0x10000, 0x300000, 0x400000, 0xC00000
WS_EF, WS_F2, WS_EPOCH = 0x340000, 0x348000, 0x4800
WS_SIZE = 0x1000000
WS_PROF = 0xF80000
WFT = 54 * 5120
STG = 49152
L_SCR, L_STAT, L_CS, L_CNT = 147456, 157696, 161792, 162304
O_CNT, O_REL, O_RDY, O_LAND, O_WOK, O_TAG, O_S1, O_WL, O_PF = 0, 4, 8, 12, 16, 20, 24, 28, 32
PSTR = 176
K1C = 2.0 * math.sqrt(2.0 / math.pi) * math.log2(math.e)
K2C = K1C * 0.044715
def f2u(x): return struct.unpack("<I", struct.pack("<f", x))[0]

a = Asm()
HDR = open("parallel_sum__spectral_fnet__geglu_ffn__prompt.s.ref").read().split("; Override launch")[0]
a(HDR.rstrip())
a("; @launch grid=(256,1,1) block=(512,1,1) lds=163840")
a('.amdgcn_target "amdgcn-amd-amdhsa--gfx950"\n.text')
kernel_head(a, NAME)

SX, SWA, SWB, SWS, SWD, SOUT, SDBG = 4, 8, 12, 16, 20, 32, 36
sM, sNT, sW, sDFT, sT1, sJ2, sMI = 40, 41, 42, 43, 44, 45, 48
P_X, P_HRE, P_HIM, P_WG, P_WU, P_WD, P_OUT, P_DBG, P_WS = 64, 70, 72, 76, 78, 80, 82, 84, 86
def S(b): return f"s[{b}:{b+3}]"
def V(b, n=4): return f"v[{b}:{b+n-1}]"
def P2(r): return f"v[{r}:{r+1}]"
def mk_x(): srd(a, SX, P_X, 2621440)
def mk_ws(): srd(a, SWS, P_WS, WS_SIZE)
def mk_wd(): srd(a, SWD, P_WD, 1728 * 1280)
def mk_out(): srd(a, SOUT, P_OUT, 2621440)
def mk_dbg(): srd(a, SDBG, P_DBG, 256)
def st_txt(k): return f"    s_memtime s[88:89]\n    s_waitcnt lgkmcnt(0)\n    s_sub_u32 s{90+k}, s88, s100"
def stamp(k):
    if PROF == 1: a(st_txt(k))
    if PROF == 4 or (PROF == 6 and k == 7): a(f"    s_memrealtime s[88:89]\n    s_waitcnt lgkmcnt(0)\n    s_sub_u32 s{90+k}, s88, s100")
def st8(k):
    if PROF == 8: a(f"    s_memrealtime s[88:89]\n    s_waitcnt lgkmcnt(0)\n    s_sub_u32 s{90+k}, s88, s100")
def st3(k):
    if PROF == 3: a(st_txt(k))
def bar(name, k=None):
    a(f"    s_barrier            ; {name}")
    if PROF == 2 and k is not None: a(st_txt(k))
def mfma(d, x, y, c=None):
    if opt["ex"] == 21 and d >= 176 and K2ON[0]: return "    s_nop 0"
    return f"    v_mfma_f32_16x16x32_bf16 {V(d)}, {V(x)}, {V(y)}, {V(d) if c is None else c}"
ACC2 = 176
K2ON = [False]
_u = [0]
def uniq():
    _u[0] += 1
    return _u[0]
PBASE = [0, 40960, 81920, 117760]
def lds_spin(tag, off, target, va, vd):
    if isinstance(off, int): a(f"    v_mov_b32 v{va}, {L_CNT + off}")
    else: a(f"    v_mov_b32 v{va}, {off}")
    a(f"""    s_mov_b32 s60, 0
L_{tag}:
    ds_read_b32 v{vd}, v{va}
    s_add_u32 s60, s60, 1
    s_waitcnt lgkmcnt(0)
    v_cmp_gt_u32 vcc, {target}, v{vd}
    s_cbranch_vccz L_{tag}d
    s_sleep 1
    s_cmp_lt_u32 s60, 0x400000
    s_cbranch_scc1 L_{tag}
L_{tag}d:""")
def lds_add(off, va, vd):
    a(f"""    v_mov_b32 v{va}, {L_CNT + off}
    v_mov_b32 v{vd}, 1
    s_mov_b64 exec, 1
    ds_add_u32 v{va}, v{vd}
    s_mov_b64 exec, -1""")
def poll(tag, vaddr, soff, vd, cmp, slp):
    a(f"""    s_mov_b32 s60, 0
L_{tag}:
    buffer_load_dword v{vd}, v{vaddr}, {S(SWS)}, {soff} offen sc1
    s_add_u32 s60, s60, 1
    s_waitcnt vmcnt(0)
    v_cmp_ne_u32 vcc, {cmp}, v{vd}
    s_cbranch_vccz L_{tag}d
    s_sleep {slp}
    s_cmp_lt_u32 s60, 0x40000
    s_cbranch_scc1 L_{tag}
L_{tag}d:""")
def rot_next(c, n):
    a(f"    s_add_u32 s{c}, s{c}, 1\n    s_cmp_eq_u32 s{c}, {n}\n    s_cselect_b32 s{c}, 0, s{c}")
def k2_setup():
    a(f"""    v_lshlrev_b32 v1, 4, v0
    s_mul_i32 s24, s{sJ2}, {WFT}
    s_add_u32 s24, s24, {WS_WF}
    s_mul_i32 s28, s39, {3 if opt['map2'] else 4}
    s_lshr_b32 s28, s28, 2
    s_add_u32 s28, s28, s29
    s_cmp_ge_u32 s28, 6
    s_cselect_b32 s30, 6, 0
    s_sub_u32 s28, s28, s30""")
    if not opt["rot2"]: a("    s_mov_b32 s28, 0")
    a(f"""    s_mul_i32 s26, s49, 6
    s_add_u32 s26, s26, 30
    s_mul_i32 s25, s26, 5120
    s_add_u32 s25, s25, s24
    s_lshl_b32 s26, s26, 17
    s_lshl_b32 s27, s{sT1}, 12
    s_add_u32 s26, s26, s27
    s_add_u32 s26, s26, {WS_H}
    s_mov_b32 s27, s28""")
def own_slot(sl):
    a("    s_mul_i32 s30, s27, 5120\n    s_add_u32 s30, s30, s25\n    s_add_u32 s31, s30, 4096")
    for nb in range(5):
        if nb < 4: a(f"    buffer_load_dwordx4 {V(8+20*sl+4*nb)}, v1, {S(SWS)}, s30 offen offset:{nb*1024} sc1")
        else: a(f"    buffer_load_dwordx4 {V(8+20*sl+4*nb)}, v1, {S(SWS)}, s31 offen sc1")
    rot_next(27, 6)
def own_w(s0, s1, thr=0):
    for sl in range(s0, s1):
        if thr: a(f"    s_waitcnt vmcnt({thr})")
        own_slot(sl)
def x_init_load():
    mk_x()
    a(f"""    v_and_b32 v2, 15, v0
    v_lshlrev_b32 v2, 6, v2
    v_add_u32 v2, s{sT1}, v2
    v_mul_u32_u24 v2, 1280, v2
    v_lshrrev_b32 v3, 4, v0
    v_lshl_add_u32 v2, v3, 3, v2
    s_and_b32 s30, s49, 1
    s_mul_i32 s30, s30, {1024*1280}
    s_lshr_b32 s31, s49, 1
    s_mul_i32 s31, s31, {32*1280}
    s_add_u32 s30, s30, s31
    s_mul_i32 s31, s{sJ2}, 160
    s_add_u32 s30, s30, s31""")
    for nb in range(5):
        a(f"    buffer_load_dwordx2 {P2(160+2*nb)}, v2, {S(SX)}, s30 offen offset:{32*nb}")
def trig4(t, d_cos, d_sin, mask, scale, neg):
    for i in range(4): a(f"    v_and_b32 v{t+i}, {mask}, v{t+i}")
    for i in range(4): a(f"    v_cvt_f32_u32 v{t+i}, v{t+i}")
    for i in range(4): a(f"    v_mul_f32 v{t+i}, {f2u(scale):#x}, v{t+i}")
    for i in range(4): a(f"    v_cos_f32 v{t+4+i}, v{t+i}")
    for i in range(4): a(f"    v_sin_f32 v{t+i}, {'-' if neg else ''}v{t+i}")
    a(f"""    v_cvt_pk_bf16_f32 v{d_cos}, v{t+4}, v{t+5}
    v_cvt_pk_bf16_f32 v{d_cos+1}, v{t+6}, v{t+7}
    v_cvt_pk_bf16_f32 v{d_sin}, v{t}, v{t+1}
    v_cvt_pk_bf16_f32 v{d_sin+1}, v{t+2}, v{t+3}""")

def trig_rows(young):
    a(f"""    s_cmp_ge_u32 s{sJ2}, 4
    s_cselect_b32 s58, -1, 0
    s_and_b32 s57, s58, 1
    v_and_b32 v2, 15, v0
    v_lshlrev_b32 v144, 6, v2
    v_add_u32 v144, s{sT1}, v144
    v_lshrrev_b32 v3, 4, v0
    s_lshl_b32 s52, s49, 4
    v_lshl_add_u32 v145, v3, 2, s52""")
    for ts in range(4):
        a(f"""    v_add_u32 v146, {1024*(ts&1) + 32*(ts>>1)}, v144
    v_xor_b32 v146, s58, v146
    v_add_u32 v146, s57, v146
    v_and_b32 v146, 2047, v146
    v_mul_u32_u24 v148, v146, v145
    v_add_u32 v149, v148, v146
    v_add_u32 v150, v149, v146
    v_add_u32 v151, v150, v146""")
        trig4(148, 128 + 4 * ts, 130 + 4 * ts, 2047, 1 / 2048, True)
    for r in range(ACC2, 256): a(f"    v_mov_b32 v{r}, 0")
    u = uniq()
    a(f"    s_waitcnt vmcnt({young})")
    for ts in range(4):
        a(f"    s_cmp_lg_u32 s49, {ts}\n    s_cbranch_scc1 L_xi{u}_{ts}")
        for nb in range(5):
            d = ACC2 + 4 * (nb * 4 + ts); x = 160 + 2 * nb
            a(f"""    v_lshlrev_b32 v{d}, 16, v{x}
    v_and_b32 v{d+1}, 0xffff0000, v{x}
    v_lshlrev_b32 v{d+2}, 16, v{x+1}
    v_and_b32 v{d+3}, 0xffff0000, v{x+1}""")
        a(f"L_xi{u}_{ts}:")

def w_touch(j, two, va, vd, sa):
    a(f"""    v_lshrrev_b32 v{va}, 5, v0
    v_mul_u32_u24 v{va}, {1728 - 32}, v{va}
    v_add_u32 v{va}, v{va}, v0
    s_lshr_b32 s{sa}, s2, 2
    s_mul_i32 s{sa}, s{sa}, 27
    s_bfe_u32 s{sa+1}, s2, 0x10001
    s_mul_i32 s{sa+1}, s{sa+1}, {5*1728}
    s_add_u32 s{sa}, s{sa}, s{sa+1}
    s_add_u32 s{sa}, s{sa}, {j*1728}
    v_add_u32 v{va}, s{sa}, v{va}
    v_lshlrev_b32 v{va}, 7, v{va}
    s_bitcmp1_b32 s2, 0
    s_cselect_b32 s{sa}, s{P_WU}, s{P_WG}
    s_cselect_b32 s{sa+1}, s{P_WU+1}, s{P_WG+1}
    s_mov_b32 exec_lo, 0x07ffffff
    s_mov_b32 exec_hi, {'0x07ffffff' if two else '0'}
    global_load_dword v{vd}, v{va}, s[{sa}:{sa+1}]
    s_mov_b64 exec, -1""")
RMAP = f"""    s_sub_u32 s50, s36, 24
    s_lshl_b32 s50, s50, 2
    s_lshr_b32 s50, 0x72651043, s50
    s_and_b32 s50, s50, 15
    s_add_u32 s50, s50, 24
    s_cmp_ge_u32 s36, 24
    s_cselect_b32 s{sNT}, s50, s{sNT}
""" if opt["rmap"] else ""
MAP2 = f"""    s_mov_b32 s38, s{sJ2}
    s_lshl_b32 s{sT1}, s47, 3
    s_bfe_u32 s29, s2, 0x30003
    s_add_u32 s{sT1}, s{sT1}, s29
    s_lshr_b32 s39, s2, 6
    s_and_b32 s{sJ2}, s46, 1
    s_lshl_b32 s{sJ2}, s{sJ2}, 2
    s_add_u32 s{sJ2}, s{sJ2}, s39
    s_lshl_b32 s39, s39, 1""" if opt["map2"] else f"""    s_mov_b32 s38, s{sJ2}
    s_mov_b32 s39, s{sJ2}
    s_mov_b32 s29, s{sMI}
    s_lshl_b32 s{sT1}, s46, 2
    s_add_u32 s{sT1}, s{sT1}, s{sMI}"""
a(f"""    s_cmp_ge_u32 s2, 256
    s_cbranch_scc1 L_end
    s_load_dwordx16 s[64:79], s[0:1], 0
    s_load_dwordx8 s[80:87], s[0:1], 64""")
if PROF:
    a("    s_memtime s[100:101]" if PROF not in (4, 6, 8) else "    s_memrealtime s[100:101]")
    for k in range(10): a(f"    s_mov_b32 s{90+k}, 0")
if opt["cpf"] >= 2:
    NL = 1 if opt["cpf"] == 2 else 4
    a(f"""    s_getpc_b64 s[60:61]
L_pc:
    s_sub_u32 s60, s60, L_pc - {NAME}
    s_subb_u32 s61, s61, 0
    s_lshr_b32 s52, s2, 3
    s_and_b32 s52, s52, {32 // NL - 1}
    s_lshl_b32 s52, s52, {10 + (NL // 2)}
    v_and_b32 v2, 63, v0
    v_lshlrev_b32 v2, 7, v2
    v_lshrrev_b32 v1, 6, v0
    v_lshl_add_u32 v1, v1, {7 + (NL // 2)}, v2
    v_add_u32 v1, s52, v1
    v_min_u32 v1, L_end - {NAME}, v1
    s_mov_b64 exec, {(1 << NL) - 1}
    global_load_dword v127, v1, s[60:61]
    s_mov_b64 exec, -1""")
a(f"""    v_lshrrev_b32 v1, 6, v0
    v_and_b32 v0, 63, v0
    v_readfirstlane_b32 s{sW}, v1
    s_and_b32 s46, s2, 7
    s_lshr_b32 s47, s2, 3
    s_and_b32 s{sM}, s46, 1
    s_lshl_b32 s{sM}, s{sM}, 2
    s_and_b32 s{sMI}, s47, 3
    s_add_u32 s{sM}, s{sM}, s{sMI}
    s_lshr_b32 s{sJ2}, s47, 2
    s_lshl_b32 s{sNT}, s{sJ2}, 2
    s_lshr_b32 s47, s46, 1             ; n-group g
    s_add_u32 s{sNT}, s{sNT}, s47
    s_mov_b32 s36, s{sNT}              ; slot 4 j + g
{RMAP}{MAP2}
    s_cmp_ge_u32 s{sNT}, 27
    s_cselect_b32 s{sDFT}, 1, 0
    s_cmp_lt_u32 s{sW}, 4
    s_cbranch_scc1 L_cons
    s_setprio 3
    s_sub_u32 s49, s{sW}, 4
    s_cmp_eq_u32 s{sW}, 7
    s_cbranch_scc1 L_serv
    v_lshrrev_b32 v2, 3, v0
    v_and_b32 v3, 7, v0
    v_lshrrev_b32 v5, 1, v2
    s_lshl_b32 s63, s47, 2
    s_lshr_b32 s63, {[0, 0x3210, 0x8530][opt['xo']]:#x}, s63
    s_and_b32 s63, s63, 15
    s_and_b32 s62, s46, 1
    s_mul_i32 s62, s62, 5
    s_add_u32 s63, s63, s62
    s_cmp_ge_u32 s63, 10
    s_cselect_b32 s62, 10, 0
    s_sub_u32 s63, s63, s62
    s_cmp_eq_u32 s{sW}, 6
    s_cbranch_scc1 L_prodw
    v_mul_u32_u24 v4, 81920, v2
    v_xor_b32 v3, v3, v5
    v_lshl_add_u32 v8, v3, 4, v4
    v_xor_b32 v9, 64, v8
    s_lshl_b32 s50, s49, 5
    s_lshl_b32 s51, s{sM}, 2
    s_add_u32 s50, s50, s51
    s_mul_i32 s50, s50, 1280
    s_lshl_b32 s52, s63, 7
    s_add_u32 s50, s50, s52
    s_lshl_b32 s51, s49, 14
    s_lshl_b32 s57, s38, 1""")
if not opt["irot"]: a("    s_mov_b32 s57, 0")
a(f"""    s_lshl_b32 s53, s57, 10
    s_mov_b32 s54, 0x3fff
    s_mov_b32 s55, 0
    s_mov_b32 s56, 128
    s_mov_b32 s62, 1280
    s_waitcnt lgkmcnt(0)""")
st8(0)
srd(a, SWA, P_X, 2621440); srd(a, SWB, P_X, 2621440)
def dma(n, isw=0):
    a(f"""    s_add_u32 m0, s51, s53
    s_add_u32 s53, s53, 1024
    s_and_b32 s53, s53, s54""")
    if not opt["nodma"]: a(f"    buffer_load_dwordx4 v{128+n}, {S(SWA if n < 8 else SWB)}, s50 offen{' nt' if opt['nt'] >> isw & 1 else ''} lds")
for n in range(16):
    a(f"""    s_add_u32 s52, s57, {n}
    s_and_b32 s58, s52, 3
    s_mul_i32 s58, s58, {512*1280}
    s_bfe_u32 s52, s52, 0x20002
    s_mul_i32 s52, s52, 1280
    s_add_u32 s52, s52, s58
    v_add_u32 v{128+n}, s52, v{8 + (n & 1)}""")
    dma(n)
a(f"""    s_branch L_pfirst
L_prodw:
    s_mov_b32 s51, 32768
    s_lshl_b32 s57, s{sMI}, 1""")
if not opt["irot"]: a("    s_mov_b32 s57, 0")
a(f"""    s_lshl_b32 s53, s57, 10
    s_mov_b32 s54, 0x1fff
    s_mov_b32 s55, 8192
    s_cmp_eq_u32 s{sDFT}, 1
    s_cbranch_scc1 L_prodw_dft
    v_mul_u32_u24 v4, 3456, v2
    v_and_b32 v5, 1, v5
    v_lshlrev_b32 v5, 1, v5
    v_xor_b32 v3, v3, v5
    v_lshl_add_u32 v8, v3, 4, v4
    v_xor_b32 v9, 64, v8
    s_lshl_b32 s50, s{sNT}, 7
    s_mov_b32 s58, {8*3456}
    s_mov_b32 s56, {64*3456}
    s_waitcnt lgkmcnt(0)""")
st8(0)
srd(a, SWA, P_WG, 640 * 3456); srd(a, SWB, P_WU, 640 * 3456)
a(f"""    s_branch L_prodw_go
L_prodw_dft:
    v_mul_u32_u24 v4, 1280, v2
    v_xor_b32 v3, v3, v5
    v_lshl_add_u32 v8, v3, 4, v4
    v_xor_b32 v9, 64, v8
    s_sub_u32 s50, s{sNT}, 27
    s_lshl_b32 s50, s50, 6
    s_add_u32 s50, s50, 1
    s_mul_i32 s50, s50, 1280
    s_mov_b32 s58, {8*1280}
    s_mov_b32 s56, 128
    s_waitcnt lgkmcnt(0)""")
srd(a, SWA, P_HRE, 640 * 1280); srd(a, SWB, P_HIM, 640 * 1280)
a(f"""L_prodw_go:
    s_mul_i32 s52, s63, s56
    s_add_u32 s50, s50, s52
    s_mul_i32 s62, s56, 10""")
for n in range(8):
    a(f"""    s_add_u32 s52, s57, {n}
    s_and_b32 s52, s52, 7
    s_mul_i32 s52, s52, s58
    v_add_u32 v{128+n}, s52, v{8 + (n & 1)}
    v_add_u32 v{136+n}, s52, v{8 + (n & 1)}""")
    dma(n, 1)
a("    s_add_u32 s51, s51, s55")
for n in range(8, 16): dma(n, 1)
a.label("L_pfirst")
st8(1)
mk_ws()
k2_setup()
a(f"""    v_mov_b32 v144, {L_CNT}
    s_mov_b32 s60, 0
    s_branch L_pnext
L_ploop:""")
if opt["nt"] in (1, 2):
    a(f"    s_cmp_eq_u32 s{sW}, 6\n    s_cbranch_scc0 L_ploopx")
    for n in range(16):
        if n == 8: a("    s_add_u32 s51, s51, s55")
        dma(n, 1)
    a("    s_branch L_pnext\nL_ploopx:")
for n in range(16):
    if n == 8: a("    s_add_u32 s51, s51, s55")
    dma(n)
a(f"""L_pnext:
    s_sub_u32 s51, s51, s55
    s_add_u32 s50, s50, s56
    s_add_u32 s63, s63, 1
    s_cmp_eq_u32 s63, 10
    s_cselect_b32 s63, 0, s63
    s_cselect_b32 s52, s62, 0
    s_sub_u32 s50, s50, s52
    s_add_u32 s51, s51, {STG}
    s_cmp_ge_u32 s51, {3*STG}
    s_cselect_b32 s52, {3*STG}, 0
    s_sub_u32 s51, s51, s52
    s_add_u32 s60, s60, 1
    s_cmp_lt_u32 s60, 2
    s_cbranch_scc1 L_ploop
    s_waitcnt vmcnt(16)
    s_barrier
    s_cmp_lt_u32 s60, 10
    s_cbranch_scc1 L_ploop""")
stamp(0); st8(2)
def wpart(start, cnt, thr=0):
    a(f"""    s_mul_i32 s50, s49, {cnt*1024}
    s_add_u32 s50, s50, {start*1024}
    s_and_b32 s51, s29, 3
    s_lshl_b32 s51, s51, 12""")
    if not opt["wrot"]: a("    s_mov_b32 s51, 0")
    for g in range(4):
        if thr: a(f"    s_waitcnt vmcnt({thr})")
        a(f"""    s_add_u32 m0, s50, s51
    s_add_u32 s52, m0, s24
    s_add_u32 s51, s51, 4096
    s_and_b32 s51, s51, 0x3fff""")
        for i in range(4):
            a(f"    buffer_load_dwordx4 v1, {S(SWS)}, s52 offen offset:{i*1024} sc1 lds")
    if cnt > 16:
        a(f"    s_add_u32 m0, s50, 16384\n    s_add_u32 s52, m0, s24")
        for i in range(cnt - 16):
            a(f"    buffer_load_dwordx4 v1, {S(SWS)}, s52 offen offset:{i*1024} sc1 lds")
T = opt["thr"]
if opt["lnd"]:
    a(f"""    v_mov_b32 v144, {L_CNT}
{'' if opt['el'] else '    s_sleep %d' % opt['lnd']}
    ds_read_b32 v145, v144 offset:{O_WOK}
    s_waitcnt lgkmcnt(0)
    v_cmp_eq_u32 vcc, 0, v145
    s_cbranch_vccnz L_lnd0""")
    own_slot(0); own_slot(1)
    a("    s_waitcnt vmcnt(10)")
    lds_add(O_LAND, 144, 145)
    a("    s_branch L_lnd1\nL_lnd0:")
a("    s_waitcnt vmcnt(0)")
lds_add(O_LAND, 144, 145)
lds_spin("wok", O_WOK, 1, 144, 145)
if opt["lnd"]:
    own_slot(0); own_slot(1)
    a("L_lnd1:")
SCH = ["A o0 o1 r4 B X t o2 r8 o3 dr u C o4 o5 T",
       "A o0 o1 r4 B X o2 r8 t C o3 o4 o5 T",
       "A o0 o1 r4 B X r8 t C o2 dr u o3 o4 o5 T",
       "A o0 r4 B X o1 r8 t o2 C dr u o3 o4 o5 T",
       "A o0 o1 r4 B X r8 dr C o2 o3 o4 o5 T",
       "A o0 o1 r4 B X o2 r8 C o3 o4 o5 T",
       "A X o0 o1 r4 B r8 t C o2 o3 T dr u o4 o5",
       "A o0 o1 r4 B X t o2 r8 o3 pd u C o4 o5 T",
       "A o0 o1 r4 B X r8 pd C o2 o3 o4 o5 T",
       "A X o0 r8 pd B C o1 o2 o3 o4 o5 W25 T",
       "A X o0 o1 r8 pd B C o2 o3 o4 o5 W20 T",
       "A X r4 B r8 pd C o0 o1 o2 o3 o4 o5 W30 T",
       "A X o0 r8 T pd B C o1 o2 o3 o4 o5 W25",
       "A X r8 pd B C o0 o1 o2 o3 o4 o5 W30 T"][opt["sch"]]
def run_sched(sch, tag):
    thr = 0; young = None
    for tok in sch.split():
        n = 0
        if tok == "t": thr = T
        elif tok == "u": thr = 0
        elif tok == "A": wpart(48, 16, thr); n = 16
        elif tok == "B": a("    s_waitcnt vmcnt(40)"); wpart(96, 18, thr); n = 18
        elif tok == "C": a("    s_waitcnt vmcnt(40)"); wpart(0, 16, thr); n = 16
        elif tok == "X": x_init_load(); young = 0
        elif tok[0] == "o": own_w(int(tok[1]), int(tok[1]) + 1, thr); n = 5
        elif tok == "r4": lds_spin(tag + "r4", O_REL, 4, 144, 145)
        elif tok == "r8":
            lds_spin(tag + "r8", O_REL, 8, 144, 145); stamp(1); a("    s_setprio 0")
        elif tok == "dr": lds_spin(tag + "dr", O_CNT, 4, 144, 145)
        elif tok == "pd":
            a(f"    s_cmp_eq_u32 s{sDFT}, 1\n    s_cbranch_scc1 L_{tag}pdd")
            lds_spin(tag + "pd", O_CNT, 4, 144, 145)
        elif tok == "p0": a("    s_setprio 0")
        elif tok[0] == "W":
            a(f"    s_waitcnt vmcnt({tok[1:]})"); lds_add(O_WL, 144, 145)
        elif tok == "T": trig_rows(min(young, 63))
        if young is not None: young += n
if opt["lnd"]: SCH = SCH.replace("o0 ", "").replace("o1 ", "")
run_sched(SCH, "p")
a("    s_branch L_pown")

a.label("L_serv")
a(f"""    s_lshr_b32 s53, s2, 2
    s_and_b32 s54, s2, 3
    s_mul_i32 s51, s53, {32*1280}
    s_mul_i32 s52, s54, 320
    s_add_u32 s51, s51, s52
    s_cmp_ge_u32 s2, 216
    s_cselect_b32 s51, 0x40000000, s51
    s_mov_b32 s56, 3277""")
for q in range(10):
    a(f"""    v_add_u32 v6, {64*q}, v0
    v_mul_u32_u24 v7, s56, v6
    v_lshrrev_b32 v7, 16, v7
    v_mul_u32_u24 v8, 20, v7
    v_sub_u32 v6, v6, v8
    v_mul_u32_u24 v7, 1280, v7
    v_lshl_add_u32 v{88+q}, v6, 4, v7""")
a(f"""    ; column sums: k32-step (m & 1) of matrix (m >> 1) & 1 in the first five stages, on the matrix core
    v_mov_b32 v60, 0x3f803f80
    v_mov_b32 v61, v60
    v_mov_b32 v62, v60
    v_mov_b32 v63, v60
    v_lshrrev_b32 v3, 4, v0
    v_bfe_u32 v6, v0, 2, 2                ; rho
    v_and_b32 v7, 3, v0                   ; gamma
    v_lshl_add_u32 v15, v3, 2, v6
    v_mul_u32_u24 v15, 320, v15
    v_lshl_add_u32 v15, v7, 3, v15
    v_add_u32 v15, {L_SCR}, v15
    s_and_b32 s57, s{sMI}, 1
    s_lshr_b32 s58, s{sMI}, 1
    s_lshl_b32 s52, s58, 13
    s_add_u32 s52, s52, 32768
    s_cmp_eq_u32 s{sDFT}, 1
    s_cbranch_scc1 L_sa_d
    v_lshl_add_u32 v5, v3, 3, v6
    v_lshlrev_b32 v5, 7, v5
    v_lshl_add_u32 v5, v7, 3, v5
    v_lshrrev_b32 v6, 1, v6
    v_and_b32 v7, 1, v3
    v_lshl_add_u32 v6, v7, 1, v6
    v_lshl_add_u32 v5, v6, 5, v5
    s_lshl_b32 s57, s57, 12
    s_add_u32 s52, s52, s57
    v_add_u32 v16, s52, v5
    v_xor_b32 v17, 32, v16
    v_xor_b32 v18, 64, v16
    v_xor_b32 v19, 96, v16
    s_branch L_sa_e
L_sa_d:
    s_lshl_b32 s57, s57, 2
    v_add_u32 v7, s57, v3
    v_bfe_u32 v6, v0, 1, 3
    v_xor_b32 v7, v7, v6
    v_and_b32 v6, 15, v0
    v_lshlrev_b32 v5, 7, v6
    v_lshl_add_u32 v5, v7, 4, v5
    v_add_u32 v16, s52, v5
    v_add_u32 v17, 2048, v16
    v_add_u32 v18, 4096, v16
    v_add_u32 v19, 6144, v16
L_sa_e:
    v_lshlrev_b32 v1, 4, v0
    v_lshlrev_b32 v9, 2, v0
    v_add_u32 v9, {L_CNT}, v9
    v_mov_b32 v7, 0
    s_mov_b64 exec, 0xffff
    ds_write_b32 v9, v7
    s_mov_b64 exec, -1
    v_mov_b32 v10, {L_CNT}
    v_mov_b32 v11, 1""")
for r in range(144, 160): a(f"    v_mov_b32 v{r}, 0")
a("    s_waitcnt lgkmcnt(0)")
mk_ws()
a(f"""    s_mov_b32 s47, {WS_EPOCH}
    buffer_load_dword v137, v7, {S(SWS)}, s47 offen sc1""")
if opt["cpf"] == 1:
    a(f"""    s_getpc_b64 s[60:61]
L_pc:
    s_sub_u32 s60, s60, L_pc - {NAME}
    s_subb_u32 s61, s61, 0
    s_lshr_b32 s52, s2, 3
    s_lshl_b32 s52, s52, 10
    v_lshlrev_b32 v6, 7, v0
    v_add_u32 v6, s52, v6
    v_min_u32 v6, L_end - {NAME}, v6
    s_mov_b64 exec, 0xff
    global_load_dword v138, v6, s[60:61]
    s_mov_b64 exec, -1""")
if opt["tlb"]:
    mk_out()
    if opt["tlb"] == 1:
        a(f"""    v_lshlrev_b32 v6, 21, v0
    v_add_u32 v6, 0x1fff80, v6
    s_mov_b64 exec, 0xff
    buffer_load_dword v139, v6, {S(SWS)}, 0 offen sc1
    s_mov_b64 exec, 3
    v_lshlrev_b32 v6, 21, v0
    buffer_load_dword v140, v6, {S(SOUT)}, 0 offen
    s_mov_b64 exec, -1""")
    else:
        a(f"""    s_lshr_b32 s52, s2, 3
    s_lshl_b32 s52, s52, 3
    v_add_u32 v6, s52, v0
    v_lshlrev_b32 v6, 16, v6
    v_add_u32 v6, 0xff80, v6
    s_mov_b64 exec, 0xff
    buffer_load_dword v139, v6, {S(SWS)}, 0 offen sc1
    s_lshr_b32 s52, s2, 3
    s_lshl_b32 s52, s52, 1
    v_add_u32 v6, s52, v0
    v_lshlrev_b32 v6, 16, v6
    s_mov_b64 exec, 3
    buffer_load_dword v140, v6, {S(SOUT)}, 0 offen
    s_mov_b64 exec, -1""")
mk_wd()
def cs_pass(j):
    if opt["ex"] == 11: return
    a(f"    s_cmp_eq_u32 s{sDFT}, 1\n    s_cbranch_scc1 L_cs{j}_d")
    for i in range(4):
        a(f"    ds_read_b64_tr_b16 {P2(64+4*i)}, v{16+i}")
        a(f"    ds_read_b64_tr_b16 {P2(66+4*i)}, v{16+i} offset:512")
    a(f"    s_branch L_cs{j}_e\nL_cs{j}_d:")
    for i in range(4): a(f"    ds_read_b128 {V(64+4*i)}, v{16+i}")
    d = STG if j % 3 != 2 else -2 * STG
    a(f"L_cs{j}_e:\n    s_mov_b32 s52, {d}")
    for i in range(4): a(f"    v_add_u32 v{16+i}, s52, v{16+i}")
    a("    s_waitcnt lgkmcnt(0)")
    for i in range(4 if opt["ex"] != 10 else 0): a(mfma(144 + 4 * i, 64 + 4 * i, 60))
SST = opt["sst"]
def s_rows():
    a(f"""    v_lshrrev_b32 v2, 3, v0
    v_lshrrev_b32 v4, 2, v2
    v_lshlrev_b32 v4, 5, v4
    v_and_b32 v5, 3, v2
    v_add_u32 v4, v4, v5
    v_mul_u32_u24 v4, 1280, v4
    v_and_b32 v5, 7, v0
    v_lshl_add_u32 v4, v5, 4, v4
    s_lshl_b32 s60, s{sNT}, 6
    s_lshl_b32 s52, s{sM}, 2
    s_add_u32 s60, s60, s52
    s_mul_i32 s60, s60, 1280""")
    mk_x()
def s_load():
    for j in range(10): a(f"    buffer_load_dwordx4 {V(20+4*j)}, v4, {S(SX)}, s60 offen offset:{j*128}")
def s_init():
    a("""    v_lshlrev_b32 v136, 16, v20
    s_nop 1
    v_mov_b32_dpp v136, v136 quad_perm:[0,0,0,0] row_mask:0xf bank_mask:0xf
    s_nop 1
    v_mov_b32_dpp v136, v136 row_half_mirror row_mask:0xf bank_mask:0xa""")
    for r in range(80, 88): a(f"    v_mov_b32 v{r}, 0")
def s_chunk(i0, i1):
    for g in range(i0, i1, 2):
        for i in (g, g + 1): a(f"    v_lshlrev_b32 v{128+2*(i&1)}, 16, v{20+i}\n    v_and_b32 v{129+2*(i&1)}, 0xffff0000, v{20+i}")
        for t in range(4): a(f"    v_sub_f32 v{128+t}, v{128+t}, v136")
        for t in range(4): a(f"    v_add_f32 v{80+t}, v{80+t}, v{128+t}")
        for t in range(4): a(f"    v_fmac_f32 v{84+t}, v{128+t}, v{128+t}")
def s_fin():
    a("""    v_add_f32 v80, v80, v81
    v_add_f32 v84, v84, v85
    v_add_f32 v82, v82, v83
    v_add_f32 v86, v86, v87
    v_add_f32 v80, v80, v82
    v_add_f32 v84, v84, v86""")
    for mode in ("quad_perm:[1,0,3,2]", "quad_perm:[2,3,0,1]", "row_half_mirror"):
        a("    s_nop 1")
        for r in (80, 84): a(f"    v_add_f32_dpp v{r}, v{r}, v{r} {mode} row_mask:0xf bank_mask:0xf")
    a(f"""    v_mul_f32 v80, {f2u(1/640):#x}, v80
    v_mov_b32 v83, {f2u(1e-5):#x}
    v_fmac_f32 v83, {f2u(1/640):#x}, v84
    v_add_f32 v82, v80, v136
    v_fma_f32 v83, -v80, v80, v83
    v_max_f32 v83, {f2u(1e-5):#x}, v83
    s_lshl_b32 s60, s{sM}, 8
    s_add_u32 s60, s60, s{sNT}
    s_lshl_b32 s60, s60, 3
    v_lshlrev_b32 v2, 8, v2
    s_mov_b32 exec_lo, 0x01010101
    s_mov_b32 exec_hi, 0x01010101
    buffer_store_dwordx2 v[82:83], v2, {S(SWS)}, s60 offen sc1
    s_mov_b64 exec, -1""")
k2_setup()
if SST: s_rows()
if SST == 2: s_load()
bar("B_-1", 0)
j0 = 3 if opt["tch"] & 2 else 2
if opt["tch"] & 4: w_touch(j0, 1, 2, 4, 60)
cs_pass(0)
if SST == 1: s_load()
def wd_dma():
    for q in range(10):
        a(f"    s_mov_b32 m0, {L_SCR + q*1024}\n    s_nop 0\n    buffer_load_dwordx4 v{88+q}, {S(SWD)}, s51 offen{' nt' if opt['wdnt'] else ''} lds")
if opt["wdt"] == 0 and opt["ex"] not in (12, 13): wd_dma()
bar("B_0", 1)
if opt["tch"] & 4 and j0 == 2: w_touch(4, 0, 2, 4, 60)
cs_pass(1)
if opt["wdt"] == 1: wd_dma()
if SST:
    a(f"    s_waitcnt vmcnt({10 if opt['wdt'] == 1 else 0})")
    s_init(); s_chunk(0, 10)
bar("B_1", 2)
cs_pass(2)
if SST: s_chunk(10, 22)
def wf_read():
    a(f"""    s_waitcnt vmcnt(0)
    v_add_u32 v137, 1, v137
    ds_write_b32 v10, v137 offset:{O_TAG}
    v_readfirstlane_b32 s47, v137""")
    for jj in range(2):
        for nb in range(5):
            r = 88 + 4 * (5 * jj + nb); o = jj * 160 + nb * 32
            a(f"    ds_read_b64_tr_b16 v[{r}:{r+1}], v15 offset:{o}")
            a(f"    ds_read_b64_tr_b16 v[{r+2}:{r+3}], v15 offset:{o+5120}")
    a(f"""    s_mul_i32 s51, s54, {2*WFT}
    s_mul_i32 s52, s53, 5120
    s_add_u32 s51, s51, s52
    s_add_u32 s51, s51, {WS_WF}
    s_cmp_ge_u32 s2, 216
    s_cselect_b32 s51, 0x40000000, s51
    s_waitcnt lgkmcnt(0)""")
def wf_store(jj):
    if opt["ex"] in (12, 14): return
    for nb in range(5):
        r = 88 + 4 * (5 * jj + nb)
        if nb == 4:
            a(f"    s_add_u32 s52, s51, 4096\n    buffer_store_dwordx4 {V(r)}, v1, {S(SWS)}, s52 offen sc1")
        else:
            a(f"    buffer_store_dwordx4 {V(r)}, v1, {S(SWS)}, s51 offen offset:{nb*1024} sc1")
    if jj == 0: a(f"    s_add_u32 s51, s51, {WFT}")
if opt["wdt"] == 0: wf_read(); wf_store(0)
bar("B_2", 3)
cs_pass(3)
if opt["wdt"] == 1: wf_read(); wf_store(0)
wf_store(1)
if SST: s_chunk(22, 30)
F2L = """    v_bfe_u32 v171, v0, 1, 3
    v_and_b32 v170, 1, v0
    v_lshl_add_u32 v171, v171, 2, v170
    v_add_u32 v171, s50, v171""" if opt["es"] else "    v_add_u32 v171, s50, v0"
a(f"""    s_lshl_b32 s61, s54, 6
    s_add_u32 s61, s61, s53
    s_lshl_b32 s61, s61, 7
    s_add_u32 s61, s61, {WS_EF}
    s_lshl_b32 s53, s{sNT}, 3
    s_add_u32 s53, s53, s{sM}
    s_lshl_b32 s53, s53, 9
    s_lshl_b32 s58, s58, 8
    s_add_u32 s53, s53, s58
    s_add_u32 s53, s53, {WS_CSP}
    v_and_b32 v173, 48, v0
    ; F2 flags to wait for: lanes 0..31 (m, lane), lanes 32.. (lane & 7, nt)
    s_lshl_b32 s50, s{sM}, 5
{F2L}
    v_and_b32 v170, 7, v0
    v_lshlrev_b32 v170, 5, v170
    v_add_u32 v170, s36, v170
    v_cmp_gt_u32 vcc, 32, v0
    s_add_u32 s50, s50, s36
    s_lshl_b32 s50, s50, 7
    v_cndmask_b32 v171, v170, v171, vcc
    v_lshlrev_b32 v171, 7, v171
    v_min_u32 v170, 53, v0
    v_lshlrev_b32 v170, 7, v170
    s_add_u32 s50, s50, {WS_F2}
    s_lshr_b32 s51, s{sJ2}, 1
    s_lshl_b32 s51, s51, 13
    s_add_u32 s51, s51, {WS_EF}
    v_mov_b32 v172, s47
    v_mov_b32 v174, {L_CNT}
    v_mov_b32 v175, 1
    s_mov_b32 s59, 0""")
bar("B_3", 4)
cs_pass(4)
if SST: s_chunk(30, 40)
a(f"""    s_waitcnt vmcnt(0)
    s_mov_b64 exec, 1
    buffer_store_dword v172, v7, {S(SWS)}, s61 offen sc1
    s_mov_b32 exec_lo, 0x00010001
    s_mov_b32 exec_hi, 0x00010001
    s_nop 3""")
for i in range(4): a(f"    buffer_store_dwordx4 {V(144+4*i)}, v173, {S(SWS)}, s53 offen offset:{i*64} sc1")
a("    s_mov_b64 exec, -1")
if SST: s_fin()
bar("B_4", 5)
a(f"""    s_waitcnt vmcnt(0)
    s_mov_b64 exec, 1
    buffer_store_dword v172, v7, {S(SWS)}, s50 offen sc1     ; row statistics were drained before B_0
    s_mov_b64 exec, -1""")
if opt["el"]:
    def c_loads():
        a(f"""    v_lshlrev_b32 v6, 3, v0
    v_lshrrev_b32 v5, 5, v0
    v_lshl_add_u32 v5, v5, 10, v6
    s_lshl_b32 s53, s{sM}, 11
    s_lshl_b32 s52, s{sNT}, 12
    s_add_u32 s52, s52, {WS_CSP}""")
        for n in range(4):
            a(f"    buffer_load_dwordx2 v[{128+4*n}:{129+4*n}], v6, {S(SWS)}, s53 offen offset:{n*512} sc1")
        for n in range(4):
            a(f"    buffer_load_dwordx2 {P2(144+2*n)}, v5, {S(SWS)}, s52 offen offset:{(n>>1)*2048+(n&1)*512} sc1")
    bar("B_5", 6)
    a(f"""    s_mov_b32 s50, {WS_F2}
    buffer_load_dword v2, v170, {S(SWS)}, s51 offen sc1
    buffer_load_dword v3, v171, {S(SWS)}, s50 offen sc1""")
    bar("B_6", 7)
    a(f"""    s_waitcnt vmcnt(0)
    v_cmp_ne_u32 s[58:59], s47, v2
    v_cmp_ne_u32 s[60:61], s47, v3
    s_cmp_lg_u64 s[58:59], 0
    s_cbranch_scc1 L_l1
    ds_write_b32 v174, v175 offset:{O_WOK}
L_l1:
    s_cmp_lg_u64 s[60:61], 0
    s_cbranch_scc1 L_l2""")
    c_loads()
    a(f"""    s_branch L_l3
L_l2:
    buffer_load_dword v3, v171, {S(SWS)}, s50 offen sc1
L_l3:""")
    bar("B_7", 8)
    stamp(0)
    a(f"""    s_cmp_eq_u64 s[60:61], 0
    s_cbranch_scc1 L_l4
    s_waitcnt vmcnt(0)
    v_cmp_ne_u32 vcc, s47, v3
    s_cbranch_vccz L_p3d""")
    poll("p3", 171, "s50", 3, "s47", 3)
    c_loads()
    a(f"""L_l4:
    s_cmp_eq_u64 s[58:59], 0
    s_cbranch_scc1 L_l5""")
    poll("p1", 170, "s51", 2, "s47", 3)
    a(f"    ds_write_b32 v174, v175 offset:{O_WOK}\nL_l5:")
else:
    bar("B_5", 6)
    bar("B_6", 7)
    a(f"""    s_mov_b32 s50, {WS_F2}
    buffer_load_dword v5, v170, {S(SWS)}, s51 offen sc1
    buffer_load_dword v6, v171, {S(SWS)}, s50 offen sc1""")
    bar("B_7", 8)
    stamp(0)
    a(f"""    s_waitcnt vmcnt(0)
    v_cmp_ne_u32 s[58:59], s47, v5
    v_cmp_ne_u32 vcc, s47, v6
    s_cbranch_vccz L_p3d
    s_cmp_lg_u64 s[58:59], 0
    s_cbranch_scc1 L_p3w
    ds_write_b32 v174, v175 offset:{O_WOK}
L_p3w:""")
    poll("p3", 171, "s50", 6, "s47", 3)
    a(f"""    v_lshlrev_b32 v6, 3, v0
    v_lshrrev_b32 v5, 5, v0
    v_lshl_add_u32 v5, v5, 10, v6
    s_lshl_b32 s50, s{sM}, 11
    s_lshl_b32 s52, s{sNT}, 12
    s_add_u32 s52, s52, {WS_CSP}""")
    for n in range(4):
        a(f"    buffer_load_dwordx2 v[{128+4*n}:{129+4*n}], v6, {S(SWS)}, s50 offen offset:{n*512} sc1")
    for n in range(4):
        a(f"    buffer_load_dwordx2 {P2(144+2*n)}, v5, {S(SWS)}, s52 offen offset:{(n>>1)*2048+(n&1)*512} sc1")
    a(f"""    s_cmp_eq_u64 s[58:59], 0
    s_cbranch_scc1 L_p1d""")
    poll("p1", 170, "s51", 5, "s47", 3)
    a(f"    ds_write_b32 v174, v175 offset:{O_WOK}")
a(f"    s_waitcnt vmcnt(0)")
for n in range(4): a(f"    v_rsq_f32 v{152+n}, v{129+4*n}")
for n in range(1, 4): a(f"    v_add_f32 v144, v144, v{144+2*n}\n    v_add_f32 v145, v145, v{145+2*n}")
a(f"""    v_add_u32 v6, {L_CS}, v6
    ds_write_b64 v6, v[144:145]
    s_cmp_eq_u32 s{sDFT}, 1
    s_cbranch_scc1 L_serv_cdft
    v_add_u32 v6, {L_STAT}, v1""")
for n in range(4):
    b = 128 + 4 * n
    a(f"""    v_mov_b32 v{b+3}, v{b+1}
    v_mul_f32 v156, v{152+n}, v{152+n}
    v_xor_b32 v{b}, 0x80000000, v{b}
    v_mul_f32 v{b+1}, {f2u(-K1C):#x}, v{152+n}
    v_mul_f32 v156, v156, v{152+n}
    v_mul_f32 v{b+2}, {f2u(-K2C):#x}, v156
    ds_write_b128 v6, {V(b)} offset:{n*1024}""")
a(f"""    s_branch L_serv_cd
L_serv_cdft:
    v_lshlrev_b32 v6, 2, v0
    v_add_u32 v6, {L_STAT}, v6""")
for n in range(4):
    b = 128 + 4 * n
    a(f"""    v_mul_f32 v{b}, v{b}, v{152+n}
    v_xor_b32 v{b}, 0x80000000, v{b}
    ds_write_b32 v6, v{152+n} offset:{n*256}
    ds_write_b32 v6, v{b} offset:{1024+n*256}""")
a(f"""L_serv_cd:
    ds_write_b32 v174, v175 offset:{O_RDY}""")
stamp(1)
a("    s_waitcnt lgkmcnt(0)")
SSCH = ["X o0 o1 o2 o3 p0 t o4 o5 pd T", "X o0 o1 o2 o3 p0 T t o4 o5 pd", "X o0 o1 o2 o3 o4 o5 T p0 pd", "X o0 o1 T p0 t o2 o3 o4 o5 pd", "X o0 p0 T pd", "X o0 o1 p0 T pd", "X p0 T pd"][opt["ssch"]]
SREST = [sl for sl in range(6) if f"o{sl}" not in SSCH]
run_sched(SSCH, "s")

def item(vit, va, vg, t0):
    t1, t2 = t0 + 1, t0 + 2
    a(f"""    v_mul_u32_u24 v{t0}, s50, v{vit}
    v_lshrrev_b32 v{t0}, 16, v{t0}
    v_mul_u32_u24 v{t1}, 20, v{t0}
    v_sub_u32 v{t1}, v{vit}, v{t1}
    v_and_b32 v{vg}, 31, v{t0}
    v_lshlrev_b32 v{vg}, 6, v{vg}
    v_and_b32 v{t2}, 32, v{t0}
    v_add3_u32 v{vg}, v{vg}, v{t2}, s{sT1}
    v_mul_u32_u24 v{vg}, 1280, v{vg}
    v_lshl_add_u32 v{vg}, v{t1}, 3, v{vg}
    v_mul_u32_u24 v{va}, {PSTR}, v{t0}
    v_lshl_add_u32 v{va}, v{t1}, 3, v{va}""")
def fin_addr(tb):
    a(f"""    s_mov_b32 s50, 3277
    s_lshl_b32 s51, s{sW}, 7
    v_add_u32 v{tb}, s51, v0""")
    item(tb, 4, 6, tb + 1)
    a(f"    v_add_u32 v{tb}, 64, v{tb}")
    item(tb, 5, 7, tb + 1)
    a(f"    s_mul_i32 s59, s{sJ2}, 160")
    mk_out()
def x_loads(r):
    a(f"""    buffer_load_dwordx4 {V(r)}, v6, {S(SX)}, s59 offen
    s_mov_b64 exec, 0xffff
    buffer_load_dwordx4 {V(r+4)}, v7, {S(SX)}, s59 offen
    s_mov_b64 exec, -1""")
def part_addr(t0):
    a(f"""    v_and_b32 v{t0}, 15, v0
    v_lshrrev_b32 v{t0+1}, 4, v0
    v_mul_u32_u24 v{t0}, {PSTR}, v{t0}
    v_lshl_add_u32 v{t0}, v{t0+1}, 3, v{t0}""")
def capture(fn):
    n0 = len(a.lines); fn(); out = a.lines[n0:]; del a.lines[n0:]; return out
def k2_mfma(wbase, hbase, fill=(), start=0):
    fill = list(fill); k = 0
    for nb in range(5):
        for ts in range(4):
            a(mfma(ACC2 + 4 * (nb * 4 + ts), wbase + 4 * nb, hbase + 4 * ts))
            if k >= start and fill: a(fill.pop(0))
            k += 1
    for l in fill: a(l)
def h_load(hbase, cnt, n, oob=None, base=61):
    a(f"    s_lshl_b32 s52, s{cnt}, 17\n    s_add_u32 s52, s52, s{base}")
    if oob: a(oob)
    if opt["ex"] == 20: a("    s_mov_b32 s52, 0x40000000")
    for ts in range(4):
        a(f"    buffer_load_dwordx4 {V(hbase+4*ts)}, v1, {S(SWS)}, s52 offen offset:{ts*1024} sc1")
    rot_next(cnt, n)
def put(nb, ts, t, pr=None):
    d = ACC2 + 4 * (nb * 4 + ts)
    if pr is not None:
        a(f"""    v_lshlrev_b32 v{t}, 16, v{pr}
    v_and_b32 v{t+1}, 0xffff0000, v{pr}
    v_lshlrev_b32 v{t+2}, 16, v{pr+1}
    v_and_b32 v{t+3}, 0xffff0000, v{pr+1}""")
        for i in range(4): a(f"    v_add_f32 v{d+i}, v{d+i}, v{t+i}")
    a(f"""    v_cvt_pk_bf16_f32 v{d}, v{d}, v{d+1}
    v_cvt_pk_bf16_f32 v{d+1}, v{d+2}, v{d+3}
    ds_write_b64 v2, {P2(d)} offset:{ts*16*PSTR+nb*32}""")
def tail(steps, t, PR=None):
    for nb in range(5):
        i = 0
        if nb == 1 and PR: a("    s_waitcnt lgkmcnt(0)")
        for wb, hb in steps:
            for ts in range(4):
                a(mfma(ACC2 + 4 * (nb * 4 + ts), wb + 4 * nb, hb + 4 * ts))
                i += 1
                if nb and i >= 5: put(nb - 1, i - 5, t, PR(nb - 1, i - 5) if PR else None)
    stamp(5); st3(7)
    a("    s_nop 7")
    for ts in range(4): put(4, ts, t, PR(4, ts) if PR else None)

K2ON[0] = True
a.label("L_pown")
a(f"    v_mov_b32 v160, {L_CNT}\n    ds_read_b32 v161, v160 offset:{O_TAG}")
fin_addr(144)
a(f"""    s_mul_i32 s52, s{sJ2}, 80
    v_add_u32 v2, s52, v2             ; e (nb = 0)
    v_mul_u32_u24 v3, 5120, v3
    s_xor_b32 s56, s{sT1}, s58
    s_add_u32 s56, s56, s57
    s_and_b32 s56, s56, 31
    s_mul_i32 s56, s56, 81920
    s_mul_i32 s52, s49, {4*5120}
    s_add_u32 s56, s56, s52
    s_add_u32 s56, s56, {WS_G}
    s_cmp_ge_u32 s{sJ2}, 4
    s_cselect_b32 s57, 640, -1
    s_waitcnt lgkmcnt(0)
    v_readfirstlane_b32 s47, v161
    s_cmp_eq_u32 s{sW}, 7
    s_cbranch_scc1 L_sv2""")
if "W" not in SCH:
    a("    s_waitcnt vmcnt(0)")
    lds_add(O_WL, 144, 145)
stamp(4)
lds_spin("s1", O_S1, 1, 144, 145)
a(f"""    s_branch L_k2p
L_sv2:
"""[:-1])
a(f"""    s_lshr_b32 s50, s{sT1}, 2
    s_lshl_b32 s50, s50, 5
    v_min_u32 v144, 26, v0
    v_add_u32 v144, s50, v144
    v_lshlrev_b32 v144, 7, v144
    s_mov_b32 s50, {WS_FLAGS}""")
stamp(2)
if opt["slp"]: a(f"    s_sleep {opt['slp']}")
poll("p2", 144, "s50", 145, "s47", opt["pslp"])
stamp(4)
a(f"""    v_mov_b32 v145, 1
    ds_write_b32 v160, v145 offset:{O_S1}""")
for sl in SREST: own_slot(sl)
a("L_k2p:")
stamp(3); st3(0)
hl = [144, 160, 8, 144, 28, 160] if opt["il2"] else [144, 160, 144, 8, 160, 28]
a(f"    s_setprio {opt['pp']}")
def ph(i): h_load(hl[i], 28, 6, base=26)
def block_with_loads(wb, hb, i0, pre=()):
    if not opt["il2"]:
        k2_mfma(wb, hb)
        for l in pre: a(l)
        ph(i0); ph(i0 + 1)
        return
    A, B = capture(lambda: ph(i0)), capture(lambda: ph(i0 + 1))
    B = [l.replace("s52", "s53") for l in B]
    if opt["ex"] == 20: A = [A[0], A[2]] + A[3:]; B = [B[0], B[2]] + B[3:]
    slots = {0: A[0:1], 1: A[1:2], 2: list(pre), 4: A[2:3], 5: A[6:7], 6: A[7:8], 7: A[8:9], 8: A[3:4], 9: B[0:1], 10: B[1:2], 12: A[4:5],
             13: B[6:7], 14: B[7:8], 15: B[8:9], 16: A[5:6] + B[2:3], 17: B[3:4], 18: B[4:5], 19: B[5:6]}
    k = 0
    for nb in range(5):
        for ts in range(4):
            a(mfma(ACC2 + 4 * (nb * 4 + ts), wb + 4 * nb, hb + 4 * ts))
            for l in slots.get(k, []): a(l)
            k += 1
ph(0); ph(1)
a(f"""    s_sub_u32 s50, 7, s{sJ2}
    s_min_u32 s50, s50, s{sJ2}
    s_add_u32 s51, s50, 27
    s_mov_b32 s50, {WS_FLAGS}
    s_waitcnt vmcnt(4)""")
st3(1)
block_with_loads(8, hl[0], 2)
a(f"""    v_and_b32 v24, 7, v0
    v_lshlrev_b32 v24, 5, v24
    v_bfe_u32 v25, v0, 3, 1
    v_add3_u32 v24, v24, v25, s51
    v_lshlrev_b32 v24, 7, v24
    s_waitcnt vmcnt(8)""")
st3(2)
block_with_loads(28, hl[1], 4, [f"    buffer_load_dword v25, v24, {S(SWS)}, s50 offen sc1"])
a(f"    s_setprio {opt['pp2']}\n    s_waitcnt vmcnt(13)")
st3(3)
k2_mfma(48, hl[2])
a(f"""    s_waitcnt vmcnt(8)
    v_cmp_ne_u32 vcc, s47, v25
    s_cbranch_vccz L_pgd""")
GT = hl[2]
poll("pg", 24, "s50", 25, "s47", 2)
for nb in range(5):
    a(f"""    v_add_u32 v{GT}, {16*nb}, v2
    v_xor_b32 v{GT+1}, s58, v{GT}
    v_add_u32 v{GT+1}, s57, v{GT+1}
    v_lshl_add_u32 v{GT+1}, v{GT+1}, 4, v3""")
    if nb == 0:
        a(f"""    v_cmp_eq_u32 vcc, 0, v{GT}
    v_mov_b32 v{GT+2}, 0x40000000
    s_nop 0
    v_cndmask_b32 v{GT+1}, v{GT+1}, v{GT+2}, vcc""")
    a(f"    buffer_load_dwordx4 {V(48+4*nb)}, v{GT+1}, {S(SWS)}, s56 offen sc1")
st3(4)
k2_mfma(68, hl[3])
a("    s_waitcnt vmcnt(9)")
st3(5)
k2_mfma(88, hl[4])
part_addr(16)
a(f"""    s_mul_i32 s50, s49, 40960
    s_cmp_eq_u32 s49, 3
    s_cselect_b32 s50, {PBASE[3]}, s50
    s_add_u32 s50, s50, {64*PSTR}
    v_add_u32 v2, s50, v16
    s_lshl_b32 s50, s49, 2
    s_add_u32 s50, s50, {L_CNT + O_PF}""")
lds_spin("pf", "s50", 1, 16, 17)
a("    s_waitcnt vmcnt(0)")
st3(6)
tail(((108, hl[5]), (48, 128)), 16)
a("    s_branch L_final")

K2ON[0] = False
a.label("L_cons")
sNH, sSH = 47, 49
ESEL = f"""    s_bitcmp1_b32 s36, 1
    s_cbranch_scc1 L_ch3
    s_and_b32 s52, s36, 1
    s_add_u32 s53, s36, s52
    s_add_u32 s53, s53, s{sSH}           ; s1 = 4 j + 2 g + (w >> 1)
    s_mov_b32 s52, s{sNH}""" if opt["es"] else f"""    s_add_u32 s52, s{sW}, 1
    s_and_b32 s52, s52, 2
    s_cmp_eq_u32 s52, 0
    s_cbranch_scc1 L_ch3
    s_sub_u32 s52, s{sW}, 1
    s_mov_b32 s53, s36"""
a(f"""    s_and_b32 s{sNH}, s{sW}, 1
    s_lshr_b32 s{sSH}, s{sW}, 1
    v_and_b32 v2, 15, v0
    v_lshrrev_b32 v3, 4, v0
    v_bfe_u32 v6, v0, 1, 3
    s_lshl_b32 s50, s{sSH}, 14
    v_lshlrev_b32 v1, 7, v2
    v_add_u32 v1, s50, v1
    v_xor_b32 v7, v3, v6
    v_lshl_add_u32 v8, v7, 4, v1
    v_xor_b32 v9, 64, v8
{ESEL}
    v_mul_u32_u24 v6, 1280, v3
    v_lshl_add_u32 v6, v2, 4, v6
    s_lshl_b32 s50, s53, 6
    s_lshl_b32 s51, s52, 5
    s_add_u32 s50, s50, s51
    s_lshl_b32 s51, s{sM}, 2
    s_add_u32 s50, s50, s51
    s_mul_i32 s50, s50, 1280
    s_waitcnt lgkmcnt(0)""")
mk_x()
for j in range(5): a(f"    buffer_load_dwordx4 {V(16+4*j)}, v6, {S(SX)}, s50 offen offset:{j*256}")
mk_ws()
for r in range(128, 256): a(f"    v_mov_b32 v{r}, 0")
for r in range(40, 48): a(f"    v_mov_b32 v{r}, 0")
a(f"""    s_lshl_b32 s50, s{sM}, 11
    s_lshl_b32 s51, s52, 10
    s_add_u32 s50, s50, s51
    s_lshl_b32 s51, s53, 3
    s_add_u32 s50, s50, s51
    v_lshlrev_b32 v4, 8, v3
    s_waitcnt vmcnt(0)
    v_lshlrev_b32 v36, 16, v16
    s_nop 1
    v_mov_b32_dpp v36, v36 row_newbcast:0 row_mask:0xf bank_mask:0xf""")
for g in range(0, 20, 4):
    for i in range(g, g + 4): a(f"    v_lshlrev_b32 v{48+2*(i&3)}, 16, v{16+i}\n    v_and_b32 v{49+2*(i&3)}, 0xffff0000, v{16+i}")
    for i in range(g, g + 4): a(f"    v_pk_add_f32 {P2(48+2*(i&3))}, {P2(48+2*(i&3))}, v[36:37] op_sel_hi:[1,0] neg_lo:[0,1] neg_hi:[0,1]")
    for i in range(g, g + 4): a(f"    v_pk_add_f32 {P2(40+2*(i&1))}, {P2(40+2*(i&1))}, {P2(48+2*(i&3))}")
    for i in range(g, g + 4): a(f"    v_pk_fma_f32 {P2(44+2*(i&1))}, {P2(48+2*(i&3))}, {P2(48+2*(i&3))}, {P2(44+2*(i&1))}")
a("""    v_pk_add_f32 v[40:41], v[40:41], v[42:43]
    v_pk_add_f32 v[44:45], v[44:45], v[46:47]
    v_add_f32 v40, v40, v41
    v_add_f32 v44, v44, v45""")
for mode in ("quad_perm:[1,0,3,2]", "quad_perm:[2,3,0,1]", "row_half_mirror", "row_mirror"):
    a("    s_nop 1")
    for r in (40, 44): a(f"    v_add_f32_dpp v{r}, v{r}, v{r} {mode} row_mask:0xf bank_mask:0xf")
a(f"""    v_mul_f32 v40, {f2u(1/640):#x}, v40
    v_mov_b32 v39, {f2u(1e-5):#x}
    v_fmac_f32 v39, {f2u(1/640):#x}, v44
    v_add_f32 v38, v40, v36
    v_fma_f32 v39, -v40, v40, v39
    v_max_f32 v39, {f2u(1e-5):#x}, v39
    s_mov_b32 exec_lo, 0x00010001
    s_mov_b32 exec_hi, 0x00010001
    buffer_store_dwordx2 v[38:39], v4, {S(SWS)}, s50 offen sc1
    s_mov_b64 exec, -1
    s_branch L_chd
L_ch3:
    s_waitcnt lgkmcnt(0)""")
if opt["tch"] & 1:
    a(f"    s_cmp_lg_u32 s{sW}, 0\n    s_cbranch_scc1 L_nt")
    w_touch(1, opt["tch"] & 2, 6, 127, 50)
    a("L_nt:")
mk_ws()
for r in range(128, 256): a(f"    v_mov_b32 v{r}, 0")
a(f"""L_chd:
    s_mov_b32 s60, 10
    s_mov_b32 s61, 0
    v_mov_b32 v120, {L_CNT}
    v_mov_b32 v121, 1
    s_cmp_eq_u32 s{sDFT}, 1
    s_cbranch_scc1 L_cdft""")

XF = 16
WF = [48, 64]
def acc(i, st): return 128 + 16 * st + 4 * i
def xr(st, kk): return f"    ds_read_b128 {V(XF+4*st)}, v{8+kk} offset:{st*2048}"
def wr(dft, kk):
    b = WF[kk]
    if dft: return [[f"    ds_read_b128 {V(b+4*i)}, v{12+kk} offset:{(i>>1)*8192+(i&1)*2048}"] for i in range(4)]
    return [[f"    ds_read_b64_tr_b16 {P2(b+4*i)}, v{12+(i&1)} offset:{kk*4096+(i>>1)*8192}",
             f"    ds_read_b64_tr_b16 {P2(b+4*i+2)}, v{12+(i&1)} offset:{kk*4096+(i>>1)*8192+512}"] for i in range(4)]
def main_loop(dft, tag):
    nw = 1 if dft else 2
    stamp(8); st8(0)
    bar("B_-1")
    stamp(0); st8(1)
    W = wr(dft, 0)
    a(xr(0, 0)); a(xr(1, 0))
    for st in range(2, 8):
        a(xr(st, 0))
        if st < 6:
            for r in W[st - 2]: a(r)
    a(".p2align 3")
    a.label(f"L_{tag}_loop")
    for kk in range(2):
        W = wr(dft, 1 - kk)
        for st in range(8):
            if st == 0: a(f"    s_waitcnt lgkmcnt({2 if kk == 0 else 5})")
            if st == 4 and kk == 0: a(f"    s_waitcnt lgkmcnt({4 + 4*nw})")
            if kk == 1 and st == 2:
                a(f"""    s_cmp_le_u32 s60, 2
    s_cbranch_scc1 L_{tag}_rel
    s_waitcnt vmcnt(0) lgkmcnt(0)
    s_barrier
L_{tag}_reld:""")
                a(xr(0, 0)); a(xr(1, 0))
            ex = []
            if kk == 0: ex = [xr(st, 1)] + (W[st] if st < 4 else [])
            elif st >= 2: ex = [xr(st, 0)] + (W[st - 2] if st < 6 else [])
            for i in range(4):
                w, x = WF[kk] + 4 * i, XF + 4 * st
                i2, st2 = i, st
                if opt["ex"] == 6: i2, st2 = st & 3, (st & 4) + i
                if opt["ex"] == 7: i2, st2 = (i if st % 2 == 0 else 3 - i), st
                if opt["ex"] == 8: i2, st2 = (st >> 1), 4 * (st & 1) + i
                w, x = WF[kk] + 4 * i2, XF + 4 * st2
                if opt["ex"] == 9: a(mfma(acc(i2, st2), x, w))
                else: a(mfma(acc(i2, st2), x, w) if dft else mfma(acc(i2, st2), w, x))
                if i == 3: a(ex[0]) if ex else None
                elif i < len(ex) - 1: a(ex[1 + i])
            if kk == 0 and st == 7: a(f"    ds_read_b32 v122, v120 offset:{O_LAND}")
            if kk == 1 and st == 0:
                a(f"""    s_add_u32 s61, s61, 1
    s_cmp_eq_u32 s61, 3
    s_cselect_b32 s62, {-3*STG}, 0
    s_cselect_b32 s61, 0, s61
    s_add_u32 s62, s62, {STG}""")
            if kk == 1 and st == 1:
                for r in (8, 9, 12, 13): a(f"    v_add_u32 v{r}, s62, v{r}")
    a(f"""    s_sub_u32 s60, s60, 1
    s_cmp_lg_u32 s60, {1 if opt['fin'] and not dft else 0}
    s_cbranch_scc1 L_{tag}_loop
    s_branch L_{tag}_epi
L_{tag}_rel:
    s_mov_b32 s62, 0
    s_waitcnt lgkmcnt(0)
    s_mov_b64 exec, 1
    ds_add_u32 v120, v121 offset:{O_REL}
    s_mov_b64 exec, -1
L_{tag}_land:
    v_cmp_gt_u32 vcc, 3, v122
    s_cbranch_vccz L_{tag}_reld
    ds_read_b32 v122, v120 offset:{O_LAND}
    s_add_u32 s62, s62, 1
    s_waitcnt lgkmcnt(0)
    s_cmp_lt_u32 s62, 0x400000
    s_cbranch_scc1 L_{tag}_land
    s_branch L_{tag}_reld
L_{tag}_epi:""")
    stamp(1); st8(2)
    if opt["fin"] and not dft:
        for r in wr(False, 1):
            for q in r: a(q)
        a(f"    ds_read_b128 {V(80)}, v9 offset:0")
        a("    s_waitcnt lgkmcnt(11)")
        for i in range(4): a(mfma(acc(i, 0), WF[0] + 4 * i, XF))
    a("    s_setprio 3\n    s_mov_b32 s60, 0")
    a.label(f"L_{tag}_rdy")
    a(f"    ds_read_b32 v122, v120 offset:{O_RDY}\n    ds_read_b32 v123, v120 offset:{O_TAG}")
def rdy_check(tag, n):
    a(f"""    s_waitcnt lgkmcnt({n})
    v_cmp_eq_u32 vcc, 0, v122
    s_add_u32 s60, s60, 1
    s_cbranch_vccz L_{tag}_go
    s_cmp_lt_u32 s60, 0x400000
    s_cbranch_scc1 L_{tag}_rdy
L_{tag}_go:""")

a(f"""    v_bfe_u32 v6, v0, 2, 2            ; rho
    v_lshl_add_u32 v7, v3, 3, v6
    v_lshlrev_b32 v12, 7, v7
    v_and_b32 v7, 3, v0
    v_lshl_add_u32 v12, v7, 3, v12
    v_lshrrev_b32 v6, 1, v6
    v_and_b32 v7, 1, v3
    v_lshl_add_u32 v6, v7, 1, v6
    s_lshl_b32 s50, s{sNH}, 1
    v_xor_b32 v6, s50, v6
    v_lshl_add_u32 v12, v6, 5, v12
    v_add_u32 v12, 32768, v12
    v_xor_b32 v13, 32, v12
    s_lshl_b32 s50, s{sNH}, 7
    s_add_u32 s50, s50, {L_CS}
    v_lshl_add_u32 v4, v3, 4, s50
    s_lshl_b32 s51, s{sSH}, 11
    s_add_u32 s51, s51, {L_STAT}
    v_lshl_add_u32 v5, v2, 4, s51
    v_lshlrev_b32 v6, 4, v0
    s_lshl_b32 s50, s{sNT}, 1
    s_add_u32 s50, s50, s{sNH}
    s_lshl_b32 s50, s50, 17
    s_lshl_b32 s51, s{sM}, 14
    s_add_u32 s50, s50, s51
    s_lshl_b32 s51, s{sSH}, 11
    s_add_u32 s50, s50, s51
    s_add_u32 s50, s50, {WS_H}""")
main_loop(False, "cf")
if opt["fin"]:
    CG, RC, Z = 96, 112, 88
    for i in range(4): a(f"    ds_read_b128 {V(CG+4*i)}, v4 offset:{(i>>1)*256+(i&1)*64}")
    a(f"    ds_read_b128 {V(RC)}, v5")
    rdy_check("cf", 0)
    def mf(st, kk): return [mfma(acc(i, st), WF[kk] + 4 * i, (XF + 4 * st) if kk == 0 else 80 + 4 * (st & 1)) for i in range(4)]
    a(f"    ds_read_b128 {V(84)}, v9 offset:2048")
    for m_ in mf(0, 1): a(m_)
    for st in range(8):
        c0, c1 = P2(RC + 4 * (st & 1)), P2(RC + 2 + 4 * (st & 1))
        A = lambda i: P2(acc(0, st) + 2 * i)
        U = lambda i: P2(acc(2, st) + 2 * i)
        ZZ = lambda i: P2(Z + 2 * i)
        nx = st + 1
        a("    s_waitcnt lgkmcnt(0)")
        if nx < 8: a(f"    ds_read_b128 {V(RC+4*(nx&1))}, v5 offset:{nx*256}")
        if nx < 7: a(f"    ds_read_b128 {V(80+4*(st&1))}, v9 offset:{(nx+1)*2048}")
        if nx == 7:
            a(f"    s_mov_b64 exec, 1\n    ds_add_u32 v120, v121 offset:{O_REL}\n    s_mov_b64 exec, -1")
        if st == 0: a("    s_nop 4")
        for i in range(4): a(f"    v_pk_fma_f32 {A(i)}, {P2(CG+2*i)}, {c0}, {A(i)} op_sel_hi:[1,0,1]")
        for i in range(4): a(f"    v_pk_mul_f32 {ZZ(i)}, {A(i)}, {A(i)}")
        for i in range(4): a(f"    v_pk_fma_f32 {ZZ(i)}, {ZZ(i)}, {c1}, {c0} op_sel:[0,0,1] op_sel_hi:[1,0,1]")
        for i in range(4): a(f"    v_pk_mul_f32 {ZZ(i)}, {ZZ(i)}, {A(i)}")
        for i in range(4): a(f"    v_pk_fma_f32 {U(i)}, {P2(CG+8+2*i)}, {c0}, {U(i)} op_sel_hi:[1,0,1]")
        for i in range(4): a(f"    v_pk_mul_f32 {U(i)}, {U(i)}, {A(i)}")
        m0_ = mf(nx, 0) if nx < 8 else [None] * 4
        m1_ = mf(nx, 1) if nx < 8 else [None] * 4
        for i in range(4):
            if m0_[i]: a(m0_[i])
            a(f"    v_exp_f32 v{Z+2*i}, v{Z+2*i}\n    v_exp_f32 v{Z+2*i+1}, v{Z+2*i+1}")
        for i in range(8): a(f"    v_fma_f32 v{Z+i}, v{Z+i}, v{RC+3+4*(st&1)}, v{RC+3+4*(st&1)}")
        for i in range(4):
            if m1_[i]: a(m1_[i])
            a(f"    v_rcp_f32 v{Z+2*i}, v{Z+2*i}\n    v_rcp_f32 v{Z+2*i+1}, v{Z+2*i+1}")
        for i in range(4): a(f"    v_pk_mul_f32 {U(i)}, {U(i)}, {ZZ(i)}")
        for i in range(4): a(f"    v_cvt_pk_bf16_f32 v{acc(0,st)+i}, v{acc(2,st)+2*i}, v{acc(2,st)+2*i+1}")
        a(f"    buffer_store_dwordx4 {V(acc(0,st))}, v6, {S(SWS)}, s50 offen offset:{(st&1)*1024} sc1")
        if st & 1 and st < 7: a("    s_add_u32 s50, s50, 4096")
else:
    a(f"    ds_read_b128 {V(32)}, v5")
    for i in range(4): a(f"    ds_read_b128 {V(16+4*i)}, v4 offset:{(i>>1)*256+(i&1)*64}")
    for st in range(1, 8): a(f"    ds_read_b128 {V(32+4*st)}, v5 offset:{st*256}")
    rdy_check("cf", 7)
    for st in range(8):
        c0, c1 = P2(32 + 4 * st), P2(34 + 4 * st)
        if st == 1: a("    s_waitcnt lgkmcnt(0)")
        ob = 88 + 4 * (st & 1)
        TG = lambda i: 64 + 2 * i
        TU = lambda i: 72 + 2 * i
        Z = lambda i: 80 + 2 * i
        for i in range(4): a(f"    v_pk_fma_f32 {P2(TG(i))}, {P2(16+2*i)}, {c0}, {P2(acc(0,st)+2*i)} op_sel_hi:[1,0,1]")
        for i in range(4): a(f"    v_pk_mul_f32 {P2(Z(i))}, {P2(TG(i))}, {P2(TG(i))}")
        for i in range(4): a(f"    v_pk_fma_f32 {P2(Z(i))}, {P2(Z(i))}, {c1}, {c0} op_sel:[0,0,1] op_sel_hi:[1,0,1]")
        for i in range(4): a(f"    v_pk_mul_f32 {P2(Z(i))}, {P2(Z(i))}, {P2(TG(i))}")
        for i in range(4): a(f"    v_exp_f32 v{Z(i)}, v{Z(i)}\n    v_exp_f32 v{Z(i)+1}, v{Z(i)+1}")
        for i in range(4): a(f"    v_pk_fma_f32 {P2(TU(i))}, {P2(24+2*i)}, {c0}, {P2(acc(2,st)+2*i)} op_sel_hi:[1,0,1]")
        for i in range(4): a(f"    v_pk_fma_f32 {P2(Z(i))}, {P2(Z(i))}, {c1}, {c1} op_sel:[0,1,1] op_sel_hi:[1,1,1]")
        for i in range(4): a(f"    v_rcp_f32 v{Z(i)}, v{Z(i)}\n    v_rcp_f32 v{Z(i)+1}, v{Z(i)+1}")
        for i in range(4): a(f"    v_pk_mul_f32 {P2(TU(i))}, {P2(TU(i))}, {P2(TG(i))}")
        for i in range(4): a(f"    v_pk_mul_f32 {P2(TU(i))}, {P2(TU(i))}, {P2(Z(i))}")
        for i in range(4): a(f"    v_cvt_pk_bf16_f32 v{ob+i}, v{TU(i)}, v{TU(i)+1}")
        a(f"    buffer_store_dwordx4 {V(ob)}, v6, {S(SWS)}, s50 offen offset:{(st&1)*1024} sc1")
        if st & 1 and st < 7: a("    s_add_u32 s50, s50, 4096")
a("    s_branch L_cdone")

a.label("L_cdft")
a(f"""    s_lshl_b32 s50, s{sNH}, 12
    s_lshl_b32 s51, s{sSH}, 14
    s_sub_u32 s50, s50, s51
    s_add_u32 s50, s50, 32768
    v_add_u32 v12, s50, v8
    v_add_u32 v13, s50, v9
    s_lshl_b32 s51, s{sSH}, 9
    s_add_u32 s51, s51, {L_STAT}
    v_lshl_add_u32 v1, v3, 4, s51
    s_lshl_b32 s50, s{sNH}, 7
    s_add_u32 s50, s50, {L_CS}
    v_lshl_add_u32 v7, v2, 2, s50
    v_mul_u32_u24 v6, {4*81920}, v3
    v_lshl_add_u32 v6, v2, 4, v6
    s_lshl_b32 s50, s{sSH}, 3
    s_add_u32 s50, s50, s{sM}
    s_mul_i32 s50, s50, 5120
    s_sub_u32 s51, s{sNT}, 27
    s_lshl_b32 s51, s51, 1
    s_add_u32 s51, s51, s{sNH}
    s_lshl_b32 s51, s51, 9
    s_add_u32 s50, s50, s51
    s_add_u32 s50, s50, {WS_G}
    ; 32-point DFT fragments (row t1 = 16 th + (l & 15), s1 = 16 b + 4 (l >> 4) + 0..3): cos v80.., sin v88.., -cos v96..
    v_lshlrev_b32 v104, 2, v3""")
for th in range(2):
    a(f"    v_add_u32 v105, {16*th}, v2")
    for b in range(2):
        a(f"""    v_add_u32 v106, {16*b}, v104
    v_mul_u32_u24 v108, v106, v105
    v_add_u32 v109, v108, v105
    v_add_u32 v110, v109, v105
    v_add_u32 v111, v110, v105""")
        trig4(108, 80 + 4 * th + 2 * b, 88 + 4 * th + 2 * b, 31, 1 / 32, False)
for r in range(8): a(f"    v_xor_b32 v{96+r}, 0x80008000, v{80+r}")
main_loop(True, "cd")
for i in range(4): a(f"    ds_read_b32 v{8+i}, v7 offset:{(i>>1)*256+(i&1)*64}")
def rd_rows(st):
    a(f"    ds_read_b128 {V(16+4*st)}, v1 offset:{st*64}\n    ds_read_b128 {V(48+4*st)}, v1 offset:{1024+st*64}")
for st in range(4): rd_rows(st)
rdy_check("cd", 0)
for st in range(4, 8): rd_rows(st)
for et in range(2):
    for c in range(4):
        if et == 0 and c == 2: a("    s_waitcnt lgkmcnt(0)")
        for mat in range(2):
            i = 2 * mat + et
            cs = P2(8 + (i & ~1)); sel = "op_sel_hi:[1,0]" if (i & 1) == 0 else "op_sel:[0,1] op_sel_hi:[1,1]"
            q = [(st, p) for st in (2 * c, 2 * c + 1) for p in range(2)]
            for n, (st, p) in enumerate(q): a(f"    v_pk_mul_f32 {P2(104+2*n)}, {P2(48+4*st+2*p)}, {cs} {sel}")
            for n, (st, p) in enumerate(q): a(f"    v_pk_fma_f32 {P2(104+2*n)}, {P2(acc(i,st)+2*p)}, {P2(16+4*st+2*p)}, {P2(104+2*n)}")
            for n, (st, p) in enumerate(q): a(f"    v_cvt_pk_bf16_f32 v{acc(i,2*c)+n}, v{104+2*n}, v{105+2*n}")
def dreg(rnd, c, im): return acc(2 * im + (rnd & 1), 2 * c + 1)
def g_store(rnd, r):
    et, th = rnd >> 1, rnd & 1
    ob = 104 + 4 * (r & 1)
    return [f"    v_cvt_pk_bf16_f32 v{ob}, v{dreg(rnd,0,0)+r}, v{dreg(rnd,1,0)+r}",
            f"    v_cvt_pk_bf16_f32 v{ob+1}, v{dreg(rnd,2,0)+r}, v{dreg(rnd,3,0)+r}",
            f"    v_cvt_pk_bf16_f32 v{ob+2}, v{dreg(rnd,0,1)+r}, v{dreg(rnd,1,1)+r}",
            f"    v_cvt_pk_bf16_f32 v{ob+3}, v{dreg(rnd,2,1)+r}, v{dreg(rnd,3,1)+r}",
            f"    s_add_u32 s51, s50, {(16*th + r)*81920 + et*256}\n    buffer_store_dwordx4 {V(ob)}, v6, {S(SWS)}, s51 offen sc1"]
a("    s_nop 1")
for rnd in range(4):
    et, th = rnd >> 1, rnd & 1
    mf = []
    for c in range(4):
        mf.append(mfma(dreg(rnd, c, 0), 80 + 4 * th, acc(et, 2 * c), "0"))
        mf.append(mfma(dreg(rnd, c, 1), 88 + 4 * th, acc(et, 2 * c), "0"))
    for c in range(4):
        mf.append(mfma(dreg(rnd, c, 0), 88 + 4 * th, acc(2 + et, 2 * c)))
        mf.append(mfma(dreg(rnd, c, 1), 96 + 4 * th, acc(2 + et, 2 * c)))
    fill = sum((g_store(rnd - 1, r) for r in range(4)), []) if rnd else []
    for n, m_ in enumerate(mf):
        a(m_)
        if n >= 8 and fill:
            for o in fill[:3]: a(o)
            fill = fill[3:]
    for o in fill: a(o)
a("    s_nop 7")
for r in range(4):
    for o in g_store(3, r): a(o)

K2ON[0] = True
a.label("L_cdone")
stamp(2)
a(f"""    s_lshl_b32 s46, s{sM}, 5
    s_add_u32 s46, s46, s{sNT}
    s_lshl_b32 s46, s46, 7
    s_add_u32 s46, s46, {WS_FLAGS}
    v_mov_b32 v124, 0
    s_waitcnt vmcnt(0)
    s_mov_b64 exec, 1
    ds_add_rtn_u32 v122, v120, v121
    s_waitcnt lgkmcnt(0)
    v_cmp_eq_u32 vcc, 3, v122
    s_cbranch_vccz L_nofl
    buffer_store_dword v123, v124, {S(SWS)}, s46 offen sc1
L_nofl:
    s_mov_b64 exec, -1""")
stamp(3)
a(f"    s_setprio {opt['cp']}")
fin_addr(8)
for r in range(ACC2, 256): a(f"    v_mov_b32 v{r}, 0")
a(f"""    v_lshlrev_b32 v1, 4, v0
    s_lshl_b32 s50, s{sW}, 3
    s_cmp_eq_u32 s{sW}, 3
    s_cselect_b32 s50, 23, s50
    s_mul_i32 s55, s50, 5120
    v_add_u32 v3, s55, v1
    s_lshl_b32 s61, s50, 17
    s_lshl_b32 s62, s{sT1}, 12
    s_add_u32 s61, s61, s62
    s_add_u32 s61, s61, {WS_H}
    s_cmp_lt_u32 s{sW}, 2
    s_cselect_b32 s62, 8, 7
    s_cmp_ge_u32 s39, s62
    s_cselect_b32 s63, 0, s39""")
if not opt["rot2"]: a("    s_mov_b32 s63, 0")
lds_spin("cs1", O_S1, 1, 8, 9)
stamp(4); st3(0)
LA = opt['la']
def c_hload(st):
    h_load(48 + 16 * st, 63, "s62", oob=(f"    s_cmp_lt_u32 s{sW}, 2\n    s_cselect_b32 s52, s52, 0x40000000" if st == 7 else None))
a("    s_mov_b32 s58, s63")
for st in range(opt["h1st"] or LA): c_hload(st)
lds_spin("cwl", O_WL, 3, 8, 9)
def w_reads(st):
    b = 8 + 20 * (st & 1)
    a("    s_mul_i32 s52, s58, 5120\n    v_add_u32 v2, s52, v3")
    rot_next(58, "s62")
    for nb in range(5): a(f"    ds_read_b128 {V(b+4*nb)}, v2 offset:{nb*1024}")
w_reads(0)
for st in range(opt["h1st"] or LA, LA): c_hload(st)
if opt["il"]:
    for st in range(6):
        a(f"    s_waitcnt vmcnt({4 * min(LA - 1, 7 - st)}) lgkmcnt(0)")
        st3(1 + st)
        fill = capture(lambda: w_reads(st + 1))
        if st + LA < 8: fill += capture(lambda: c_hload(st + LA))
        k2_mfma(8 + 20 * (st & 1), 48 + 16 * st, fill)
else:
    for st in range(6):
        w_reads(st + 1)
        a(f"    s_waitcnt vmcnt({4 * min(LA - 1, 7 - st)}) lgkmcnt(5)")
        if PROF == 3: a("    s_waitcnt lgkmcnt(0)"); st3(1 + st)
        k2_mfma(8 + 20 * (st & 1), 48 + 16 * st)
        if st + LA < 8: c_hload(st + LA)
w_reads(7)
part_addr(56)
a(f"""    s_lshl_b32 s50, s{sW}, 2
    s_add_u32 s50, s50, {L_CNT + O_PF}
    v_mov_b32 v57, s50
    v_mov_b32 v58, 1
    s_waitcnt vmcnt(0) lgkmcnt(0)
    ds_write_b32 v57, v58
    v_add_u32 v2, s55, v56""")
tail(((8, 144), (28, 160)), 60)
st3(8)

a(f"""    s_mov_b32 s50, 3277
    s_lshl_b32 s51, s{sW}, 6
    s_add_u32 s51, s51, 1024
    v_add_u32 v64, s51, v0""")
item(64, 8, 9, 65)
a.label("L_final")
a(f"""    v_add_u32 v16, 81920, v4
    v_add_u32 v17, 81920, v5
    v_add_u32 v18, 81920, v8
    s_waitcnt lgkmcnt(0)""")
bar("R2")
stamp(6)
OST = ["", " sc1", " nt"][opt["ost"]]
def rd_item(va, vb, dst):
    for w in range(8):
        b = PBASE[w & 3] + (w >> 2) * 64 * PSTR
        r, o = (va, b) if b < 65536 else (vb, b - 81920)
        a(f"    ds_read_b64 {P2(dst+2*w)}, v{r} offset:{o}")
def sum_item(dst, t, vg):
    for w in range(0, 8, 2):
        for k in range(2):
            u = t + 4 * k if w == 0 else 20 + 4 * k
            for i in range(2): a(f"    v_lshlrev_b32 v{u+2*i}, 16, v{dst+2*(w+k)+i}\n    v_and_b32 v{u+1+2*i}, 0xffff0000, v{dst+2*(w+k)+i}")
        for k in range(4 if w else 0): a(f"    v_pk_add_f32 {P2(t+2*k)}, {P2(t+2*k)}, {P2(20+2*k)}")
    a(f"    v_pk_add_f32 {P2(t)}, {P2(t)}, {P2(t+4)}\n    v_pk_add_f32 {P2(t+2)}, {P2(t+2)}, {P2(t+6)}")
    a(f"    v_cvt_pk_bf16_f32 v{t+8}, v{t}, v{t+1}\n    v_cvt_pk_bf16_f32 v{t+9}, v{t+2}, v{t+3}")
    a(f"    buffer_store_dwordx2 {P2(t+8)}, v{vg}, {S(SOUT)}, s59 offen{OST}")
rd_item(4, 16, 64)
rd_item(5, 17, 80)
a(f"""    s_cmp_ge_u32 s{sW}, 4
    s_cbranch_scc1 L_fin2
    s_waitcnt lgkmcnt(8)""")
rd_item(8, 18, 96)
sum_item(64, 32, 6)
a("    s_waitcnt lgkmcnt(8)")
sum_item(80, 44, 7)
a("    s_waitcnt lgkmcnt(0)")
sum_item(96, 32, 9)
a("    s_branch L_fin3\nL_fin2:\n    s_waitcnt lgkmcnt(8)")
sum_item(64, 32, 6)
a("    s_waitcnt lgkmcnt(0)")
sum_item(80, 44, 7)
a("L_fin3:")
stamp(7)
a(f"""    s_cmp_lg_u32 s2, 0
    s_cbranch_scc1 L_noep
    s_cmp_lg_u32 s{sW}, 7
    s_cbranch_scc1 L_noep
    s_mov_b64 exec, -1
    v_lshlrev_b32 v8, 9, v0
    s_mov_b32 s50, {WS_EF}
    s_mov_b32 s60, 0
L_ep:
    buffer_load_dword v12, v8, {S(SWS)}, s50 offen sc1
    buffer_load_dword v13, v8, {S(SWS)}, s50 offen offset:128 sc1
    buffer_load_dword v14, v8, {S(SWS)}, s50 offen offset:256 sc1
    buffer_load_dword v15, v8, {S(SWS)}, s50 offen offset:384 sc1
    s_add_u32 s60, s60, 1
    s_waitcnt vmcnt(0)
    v_xor_b32 v12, s47, v12
    v_xor_b32 v13, s47, v13
    v_xor_b32 v14, s47, v14
    v_xor_b32 v15, s47, v15
    v_or3_b32 v12, v12, v13, v14
    v_or_b32 v12, v12, v15
    v_cmp_ne_u32 vcc, 0, v12
    s_cbranch_vccz L_epd
    s_sleep 4
    s_cmp_lt_u32 s60, 0x40000
    s_cbranch_scc1 L_ep
L_epd:
    v_mov_b32 v12, s47
    v_mov_b32 v13, 0
    s_mov_b32 s50, {WS_EPOCH}
    s_mov_b64 exec, 1
    buffer_store_dword v12, v13, {S(SWS)}, s50 offen sc1
L_noep:""")
if PROF == 8:
    mk_dbg()
    a(f"""    s_cmp_lg_u32 s2, 77
    s_cbranch_scc1 L_end
    s_memrealtime s[88:89]
    s_waitcnt lgkmcnt(0)
    s_sub_u32 s93, s88, s100
    s_lshr_b32 s50, s{sW}, 1
    s_lshl_b32 s50, s50, 4
    s_bitcmp1_b32 s{sW}, 0
    s_cbranch_scc1 L_end
    v_mov_b32 v7, 0
    s_mov_b64 exec, 1""")
    for k in range(4):
        a(f"    v_mov_b32 v6, s{90+k}\n    buffer_store_dword v6, v7, {S(SDBG)}, s50 offen offset:{4*k}")
elif PROF:
    mk_ws()
    a(f"""    s_memrealtime s[88:89]
    s_waitcnt lgkmcnt(0)
    s_mov_b32 s99, s88
    s_lshl_b32 s50, s2, 3
    s_add_u32 s50, s50, s{sW}
    s_lshl_b32 s50, s50, 6
    s_add_u32 s50, s50, {WS_PROF}
    v_mov_b32 v7, 0
    s_mov_b64 exec, 1""")
    for k in range(10):
        a(f"    v_mov_b32 v6, s{90+k}\n    buffer_store_dword v6, v7, {S(SWS)}, s50 offen offset:{4*k}")
a.label("L_end")
a("    s_endpgm")
a('.section .rodata,"a"')
a(kd(NAME, 256, 102, 256))
open(sys.argv[1], "w").write(a.text())
```

```python
import sys, math, struct
from asmlib import *

NAME = "parallel_sum__spectral_fnet__geglu_ffn__prompt_kernel"
opt = dict(prof=0, xo=2, irot=1, rot2=1, la=3, nodma=0, wrot=1, thr=4, pslp=3, touch=0, pp=0, cp=0, slp=0, nt=0, ost=0, sch=17, ssch=7, pp2=0, h1st=0, ex=0, fin=1, map2=0, cpf=1, tlb=0, mgm=1, dfl=0, sf=1, eb=0, es2=0, lnd=3, el=0, il=1, il2=1, rmap=0, es=0, wdnt=1, wdt=1, tch=0, sst=0)
for a_ in sys.argv[2:]:
    k, v = a_.split("="); assert k in opt, k; opt[k] = int(v)
PROF = opt["prof"]

WS_STATS, WS_FLAGS, WS_WF, WS_CSP, WS_H, WS_G = 0, 0x8000, 0x10000, 0x300000, 0x400000, 0xC00000
WS_EF, WS_F2, WS_SF, WS_EPOCH = 0x340000, 0x348000, 0x350000, 0x4800
WS_SIZE = 0x1000000
WS_PROF = 0xF80000
WFT = 54 * 5120
STG = 49152
L_SCR, L_STAT, L_CS, L_CNT = 147456, 157696, 161792, 162304
O_CNT, O_REL, O_RDY, O_LAND, O_WOK, O_TAG, O_S1, O_WL, O_PF = 0, 4, 8, 12, 16, 20, 24, 28, 32
PSTR = 176
K1C = 2.0 * math.sqrt(2.0 / math.pi) * math.log2(math.e)
K2C = K1C * 0.044715
def f2u(x): return struct.unpack("<I", struct.pack("<f", x))[0]

a = Asm()
HDR = open("parallel_sum__spectral_fnet__geglu_ffn__prompt.s.ref").read().split("; Override launch")[0]
a(HDR.rstrip())
a("; @launch grid=(256,1,1) block=(512,1,1) lds=163840")
a('.amdgcn_target "amdgcn-amd-amdhsa--gfx950"\n.text')
kernel_head(a, NAME)

SX, SWA, SWB, SWS, SWD, SOUT, SDBG = 4, 8, 12, 16, 20, 32, 36
sM, sNT, sW, sDFT, sT1, sJ2, sMI = 40, 41, 42, 43, 44, 45, 48
P_X, P_HRE, P_HIM, P_WG, P_WU, P_WD, P_OUT, P_DBG, P_WS = 64, 70, 72, 76, 78, 80, 82, 84, 86
def S(b): return f"s[{b}:{b+3}]"
def V(b, n=4): return f"v[{b}:{b+n-1}]"
def P2(r): return f"v[{r}:{r+1}]"
def mk_x(): srd(a, SX, P_X, 2621440)
def mk_ws(): srd(a, SWS, P_WS, WS_SIZE)
def mk_wd(): srd(a, SWD, P_WD, 1728 * 1280)
def mk_out(): srd(a, SOUT, P_OUT, 2621440)
def mk_dbg(): srd(a, SDBG, P_DBG, 256)
def st_txt(k): return f"    s_memtime s[88:89]\n    s_waitcnt lgkmcnt(0)\n    s_sub_u32 s{90+k}, s88, s100"
def stamp(k):
    if PROF == 1: a(st_txt(k))
    if PROF == 4 or (PROF == 6 and k == 7): a(f"    s_memrealtime s[88:89]\n    s_waitcnt lgkmcnt(0)\n    s_sub_u32 s{90+k}, s88, s100")
def st8(k):
    if PROF == 8: a(f"    s_memrealtime s[88:89]\n    s_waitcnt lgkmcnt(0)\n    s_sub_u32 s{90+k}, s88, s100")
def st9(k):
    if PROF == 9: a(st_txt(k))
def st3(k):
    if PROF == 3: a(st_txt(k))
def bar(name, k=None):
    a(f"    s_barrier            ; {name}")
    if PROF == 2 and k is not None: a(st_txt(k))
def mfma(d, x, y, c=None):
    if opt["ex"] == 21 and d >= 176 and K2ON[0]: return "    s_nop 0"
    return f"    v_mfma_f32_16x16x32_bf16 {V(d)}, {V(x)}, {V(y)}, {V(d) if c is None else c}"
ACC2 = 176
K2ON = [False]
_u = [0]
def uniq():
    _u[0] += 1
    return _u[0]
PBASE = [0, 40960, 81920, 117760]
def lds_spin(tag, off, target, va, vd):
    if isinstance(off, int): a(f"    v_mov_b32 v{va}, {L_CNT + off}")
    else: a(f"    v_mov_b32 v{va}, {off}")
    a(f"""    s_mov_b32 s60, 0
L_{tag}:
    ds_read_b32 v{vd}, v{va}
    s_add_u32 s60, s60, 1
    s_waitcnt lgkmcnt(0)
    v_cmp_gt_u32 vcc, {target}, v{vd}
    s_cbranch_vccz L_{tag}d
    s_sleep 1
    s_cmp_lt_u32 s60, 0x400000
    s_cbranch_scc1 L_{tag}
L_{tag}d:""")
def lds_add(off, va, vd):
    a(f"""    v_mov_b32 v{va}, {L_CNT + off}
    v_mov_b32 v{vd}, 1
    s_mov_b64 exec, 1
    ds_add_u32 v{va}, v{vd}
    s_mov_b64 exec, -1""")
def poll(tag, vaddr, soff, vd, cmp, slp):
    a(f"""    s_mov_b32 s60, 0
L_{tag}:
    buffer_load_dword v{vd}, v{vaddr}, {S(SWS)}, {soff} offen sc1
    s_add_u32 s60, s60, 1
    s_waitcnt vmcnt(0)
    v_cmp_ne_u32 vcc, {cmp}, v{vd}
    s_cbranch_vccz L_{tag}d
    s_sleep {slp}
    s_cmp_lt_u32 s60, 0x40000
    s_cbranch_scc1 L_{tag}
L_{tag}d:""")
def rot_next(c, n):
    a(f"    s_add_u32 s{c}, s{c}, 1\n    s_cmp_eq_u32 s{c}, {n}\n    s_cselect_b32 s{c}, 0, s{c}")
def k2_setup():
    a(f"""    v_lshlrev_b32 v1, 4, v0
    s_mul_i32 s24, s{sJ2}, {WFT}
    s_add_u32 s24, s24, {WS_WF}
    s_mul_i32 s28, s39, {3 if opt['map2'] else 4}
    s_lshr_b32 s28, s28, 2
    s_add_u32 s28, s28, s29
    s_cmp_ge_u32 s28, 6
    s_cselect_b32 s30, 6, 0
    s_sub_u32 s28, s28, s30""")
    if not opt["rot2"]: a("    s_mov_b32 s28, 0")
    a(f"""    s_mul_i32 s26, s49, 6
    s_add_u32 s26, s26, 30
    s_mul_i32 s25, s26, 5120
    s_add_u32 s25, s25, s24
    s_lshl_b32 s26, s26, 17
    s_lshl_b32 s27, s{sT1}, 12
    s_add_u32 s26, s26, s27
    s_add_u32 s26, s26, {WS_H}
    s_mov_b32 s27, s28""")
def own_slot(sl):
    a("    s_mul_i32 s30, s27, 5120\n    s_add_u32 s30, s30, s25\n    s_add_u32 s31, s30, 4096")
    for nb in range(5):
        if nb < 4: a(f"    buffer_load_dwordx4 {V(8+20*sl+4*nb)}, v1, {S(SWS)}, s30 offen offset:{nb*1024} sc1")
        else: a(f"    buffer_load_dwordx4 {V(8+20*sl+4*nb)}, v1, {S(SWS)}, s31 offen sc1")
    rot_next(27, 6)
def own_w(s0, s1, thr=0):
    for sl in range(s0, s1):
        if thr: a(f"    s_waitcnt vmcnt({thr})")
        own_slot(sl)
def x_init_load():
    mk_x()
    a(f"""    v_and_b32 v2, 15, v0
    v_lshlrev_b32 v2, 6, v2
    v_add_u32 v2, s{sT1}, v2
    v_mul_u32_u24 v2, 1280, v2
    v_lshrrev_b32 v3, 4, v0
    v_lshl_add_u32 v2, v3, 3, v2
    s_and_b32 s30, s49, 1
    s_mul_i32 s30, s30, {1024*1280}
    s_lshr_b32 s31, s49, 1
    s_mul_i32 s31, s31, {32*1280}
    s_add_u32 s30, s30, s31
    s_mul_i32 s31, s{sJ2}, 160
    s_add_u32 s30, s30, s31""")
    for nb in range(5):
        a(f"    buffer_load_dwordx2 {P2(160+2*nb)}, v2, {S(SX)}, s30 offen offset:{32*nb}")
def trig4(t, d_cos, d_sin, mask, scale, neg):
    for i in range(4): a(f"    v_and_b32 v{t+i}, {mask}, v{t+i}")
    for i in range(4): a(f"    v_cvt_f32_u32 v{t+i}, v{t+i}")
    for i in range(4): a(f"    v_mul_f32 v{t+i}, {f2u(scale):#x}, v{t+i}")
    for i in range(4): a(f"    v_cos_f32 v{t+4+i}, v{t+i}")
    for i in range(4): a(f"    v_sin_f32 v{t+i}, {'-' if neg else ''}v{t+i}")
    a(f"""    v_cvt_pk_bf16_f32 v{d_cos}, v{t+4}, v{t+5}
    v_cvt_pk_bf16_f32 v{d_cos+1}, v{t+6}, v{t+7}
    v_cvt_pk_bf16_f32 v{d_sin}, v{t}, v{t+1}
    v_cvt_pk_bf16_f32 v{d_sin+1}, v{t+2}, v{t+3}""")

def trig_rows(young):
    a(f"""    s_cmp_ge_u32 s{sJ2}, 4
    s_cselect_b32 s58, -1, 0
    s_and_b32 s57, s58, 1
    v_and_b32 v2, 15, v0
    v_lshlrev_b32 v144, 6, v2
    v_add_u32 v144, s{sT1}, v144
    v_lshrrev_b32 v3, 4, v0
    s_lshl_b32 s52, s49, 4
    v_lshl_add_u32 v145, v3, 2, s52""")
    for ts in range(4):
        a(f"""    v_add_u32 v146, {1024*(ts&1) + 32*(ts>>1)}, v144
    v_xor_b32 v146, s58, v146
    v_add_u32 v146, s57, v146
    v_and_b32 v146, 2047, v146
    v_mul_u32_u24 v148, v146, v145
    v_add_u32 v149, v148, v146
    v_add_u32 v150, v149, v146
    v_add_u32 v151, v150, v146""")
        trig4(148, 128 + 4 * ts, 130 + 4 * ts, 2047, 1 / 2048, True)
    for r in range(ACC2, 256): a(f"    v_mov_b32 v{r}, 0")
    u = uniq()
    a(f"    s_waitcnt vmcnt({young})")
    for ts in range(4):
        a(f"    s_cmp_lg_u32 s49, {ts}\n    s_cbranch_scc1 L_xi{u}_{ts}")
        for nb in range(5):
            d = ACC2 + 4 * (nb * 4 + ts); x = 160 + 2 * nb
            a(f"""    v_lshlrev_b32 v{d}, 16, v{x}
    v_and_b32 v{d+1}, 0xffff0000, v{x}
    v_lshlrev_b32 v{d+2}, 16, v{x+1}
    v_and_b32 v{d+3}, 0xffff0000, v{x+1}""")
        a(f"L_xi{u}_{ts}:")

def w_touch(j, two, va, vd, sa):
    a(f"""    v_lshrrev_b32 v{va}, 5, v0
    v_mul_u32_u24 v{va}, {1728 - 32}, v{va}
    v_add_u32 v{va}, v{va}, v0
    s_lshr_b32 s{sa}, s2, 2
    s_mul_i32 s{sa}, s{sa}, 27
    s_bfe_u32 s{sa+1}, s2, 0x10001
    s_mul_i32 s{sa+1}, s{sa+1}, {5*1728}
    s_add_u32 s{sa}, s{sa}, s{sa+1}
    s_add_u32 s{sa}, s{sa}, {j*1728}
    v_add_u32 v{va}, s{sa}, v{va}
    v_lshlrev_b32 v{va}, 7, v{va}
    s_bitcmp1_b32 s2, 0
    s_cselect_b32 s{sa}, s{P_WU}, s{P_WG}
    s_cselect_b32 s{sa+1}, s{P_WU+1}, s{P_WG+1}
    s_mov_b32 exec_lo, 0x07ffffff
    s_mov_b32 exec_hi, {'0x07ffffff' if two else '0'}
    global_load_dword v{vd}, v{va}, s[{sa}:{sa+1}]
    s_mov_b64 exec, -1""")
RMAP = f"""    s_sub_u32 s50, s36, 24
    s_lshl_b32 s50, s50, 2
    s_lshr_b32 s50, 0x72651043, s50
    s_and_b32 s50, s50, 15
    s_add_u32 s50, s50, 24
    s_cmp_ge_u32 s36, 24
    s_cselect_b32 s{sNT}, s50, s{sNT}
""" if opt["rmap"] else ""
MAP2 = f"""    s_mov_b32 s38, s{sJ2}
    s_lshl_b32 s{sT1}, s47, 3
    s_bfe_u32 s29, s2, 0x30003
    s_add_u32 s{sT1}, s{sT1}, s29
    s_lshr_b32 s39, s2, 6
    s_and_b32 s{sJ2}, s46, 1
    s_lshl_b32 s{sJ2}, s{sJ2}, 2
    s_add_u32 s{sJ2}, s{sJ2}, s39
    s_lshl_b32 s39, s39, 1""" if opt["map2"] else f"""    s_mov_b32 s38, s{sJ2}
    s_mov_b32 s39, s{sJ2}
    s_mov_b32 s29, s{sMI}
    s_lshl_b32 s{sT1}, s46, 2
    s_add_u32 s{sT1}, s{sT1}, s{sMI}"""
a(f"""    s_cmp_ge_u32 s2, 256
    s_cbranch_scc1 L_end
    s_load_dwordx16 s[64:79], s[0:1], 0
    s_load_dwordx8 s[80:87], s[0:1], 64""")
if PROF:
    a("    s_memtime s[100:101]" if PROF not in (4, 6, 8) else "    s_memrealtime s[100:101]")
    for k in range(10): a(f"    s_mov_b32 s{90+k}, 0")
if opt["cpf"] >= 2:
    NL = 1 if opt["cpf"] == 2 else 4
    a(f"""    s_getpc_b64 s[60:61]
L_pc:
    s_sub_u32 s60, s60, L_pc - {NAME}
    s_subb_u32 s61, s61, 0
    s_lshr_b32 s52, s2, 3
    s_and_b32 s52, s52, {32 // NL - 1}
    s_lshl_b32 s52, s52, {10 + (NL // 2)}
    v_and_b32 v2, 63, v0
    v_lshlrev_b32 v2, 7, v2
    v_lshrrev_b32 v1, 6, v0
    v_lshl_add_u32 v1, v1, {7 + (NL // 2)}, v2
    v_add_u32 v1, s52, v1
    v_min_u32 v1, L_end - {NAME}, v1
    s_mov_b64 exec, {(1 << NL) - 1}
    global_load_dword v127, v1, s[60:61]
    s_mov_b64 exec, -1""")
a(f"""    v_lshrrev_b32 v1, 6, v0
    v_and_b32 v0, 63, v0
    v_readfirstlane_b32 s{sW}, v1
    s_and_b32 s46, s2, 7
    s_lshr_b32 s47, s2, 3
    {'s_lshr_b32 s%d, s46, 2' % sM if opt['mgm'] else 's_and_b32 s%d, s46, 1' % sM}
    s_lshl_b32 s{sM}, s{sM}, 2
    s_and_b32 s{sMI}, s47, 3
    s_add_u32 s{sM}, s{sM}, s{sMI}
    s_lshr_b32 s{sJ2}, s47, 2
    s_lshl_b32 s{sNT}, s{sJ2}, 2
    {'s_and_b32 s47, s46, 3' if opt['mgm'] else 's_lshr_b32 s47, s46, 1'}             ; n-group g
    s_add_u32 s{sNT}, s{sNT}, s47
    s_mov_b32 s36, s{sNT}              ; slot 4 j + g
{RMAP}{MAP2}
    s_cmp_ge_u32 s{sNT}, 27
    s_cselect_b32 s{sDFT}, 1, 0
    s_cmp_lt_u32 s{sW}, 4
    s_cbranch_scc1 L_cons
    s_setprio 3
    s_sub_u32 s49, s{sW}, 4
    s_cmp_eq_u32 s{sW}, 7
    s_cbranch_scc1 L_serv
    v_lshrrev_b32 v2, 3, v0
    v_and_b32 v3, 7, v0
    v_lshrrev_b32 v5, 1, v2
    s_lshl_b32 s63, s47, 2
    s_lshr_b32 s63, {[0, 0x3210, 0x8530][opt['xo']]:#x}, s63
    s_and_b32 s63, s63, 15
    s_lshr_b32 s62, s{sM}, 2
    s_mul_i32 s62, s62, 5
    s_add_u32 s63, s63, s62
    s_cmp_ge_u32 s63, 10
    s_cselect_b32 s62, 10, 0
    s_sub_u32 s63, s63, s62
    s_cmp_eq_u32 s{sW}, 6
    s_cbranch_scc1 L_prodw
    v_mul_u32_u24 v4, 81920, v2
    v_xor_b32 v3, v3, v5
    v_lshl_add_u32 v8, v3, 4, v4
    v_xor_b32 v9, 64, v8
    s_lshl_b32 s50, s49, 5
    s_lshl_b32 s51, s{sM}, 2
    s_add_u32 s50, s50, s51
    s_mul_i32 s50, s50, 1280
    s_lshl_b32 s52, s63, 7
    s_add_u32 s50, s50, s52
    s_lshl_b32 s51, s49, 14
    s_lshl_b32 s57, s38, 1""")
if not opt["irot"]: a("    s_mov_b32 s57, 0")
a(f"""    s_lshl_b32 s53, s57, 10
    s_mov_b32 s54, 0x3fff
    s_mov_b32 s55, 0
    s_mov_b32 s56, 128
    s_mov_b32 s62, 1280
    s_waitcnt lgkmcnt(0)""")
st8(0)
srd(a, SWA, P_X, 2621440); srd(a, SWB, P_X, 2621440)
def dma(n, isw=0):
    a(f"""    s_add_u32 m0, s51, s53
    s_add_u32 s53, s53, 1024
    s_and_b32 s53, s53, s54""")
    if not opt["nodma"]: a(f"    buffer_load_dwordx4 v{128+n}, {S(SWA if n < 8 else SWB)}, s50 offen{' nt' if opt['nt'] >> isw & 1 else ''} lds")
for n in range(16):
    a(f"""    s_add_u32 s52, s57, {n}
    s_and_b32 s58, s52, 3
    s_mul_i32 s58, s58, {512*1280}
    s_bfe_u32 s52, s52, 0x20002
    s_mul_i32 s52, s52, 1280
    s_add_u32 s52, s52, s58
    v_add_u32 v{128+n}, s52, v{8 + (n & 1)}""")
    dma(n)
a(f"""    s_branch L_pfirst
L_prodw:
    s_mov_b32 s51, 32768
    s_lshl_b32 s57, s{sMI}, 1""")
if not opt["irot"]: a("    s_mov_b32 s57, 0")
a(f"""    s_lshl_b32 s53, s57, 10
    s_mov_b32 s54, 0x1fff
    s_mov_b32 s55, 8192
    s_cmp_eq_u32 s{sDFT}, 1
    s_cbranch_scc1 L_prodw_dft
    v_mul_u32_u24 v4, 3456, v2
    v_and_b32 v5, 1, v5
    v_lshlrev_b32 v5, 1, v5
    v_xor_b32 v3, v3, v5
    v_lshl_add_u32 v8, v3, 4, v4
    v_xor_b32 v9, 64, v8
    s_lshl_b32 s50, s{sNT}, 7
    s_mov_b32 s58, {8*3456}
    s_mov_b32 s56, {64*3456}
    s_waitcnt lgkmcnt(0)""")
st8(0)
srd(a, SWA, P_WG, 640 * 3456); srd(a, SWB, P_WU, 640 * 3456)
a(f"""    s_branch L_prodw_go
L_prodw_dft:
    v_mul_u32_u24 v4, 1280, v2
    v_xor_b32 v3, v3, v5
    v_lshl_add_u32 v8, v3, 4, v4
    v_xor_b32 v9, 64, v8
    s_sub_u32 s50, s{sNT}, 27
    s_lshl_b32 s50, s50, 6
    s_add_u32 s50, s50, 1
    s_mul_i32 s50, s50, 1280
    s_mov_b32 s58, {8*1280}
    s_mov_b32 s56, 128
    s_waitcnt lgkmcnt(0)""")
srd(a, SWA, P_HRE, 640 * 1280); srd(a, SWB, P_HIM, 640 * 1280)
a(f"""L_prodw_go:
    s_mul_i32 s52, s63, s56
    s_add_u32 s50, s50, s52
    s_mul_i32 s62, s56, 10""")
for n in range(8):
    a(f"""    s_add_u32 s52, s57, {n}
    s_and_b32 s52, s52, 7
    s_mul_i32 s52, s52, s58
    v_add_u32 v{128+n}, s52, v{8 + (n & 1)}
    v_add_u32 v{136+n}, s52, v{8 + (n & 1)}""")
    dma(n, 1)
a("    s_add_u32 s51, s51, s55")
for n in range(8, 16): dma(n, 1)
a.label("L_pfirst")
st8(1)
mk_ws()
k2_setup()
a(f"""    v_mov_b32 v144, {L_CNT}
    s_mov_b32 s60, 0
    s_branch L_pnext
L_ploop:""")
if opt["nt"] in (1, 2):
    a(f"    s_cmp_eq_u32 s{sW}, 6\n    s_cbranch_scc0 L_ploopx")
    for n in range(16):
        if n == 8: a("    s_add_u32 s51, s51, s55")
        dma(n, 1)
    a("    s_branch L_pnext\nL_ploopx:")
for n in range(16):
    if n == 8: a("    s_add_u32 s51, s51, s55")
    if opt["eb"] and n == opt["eb"]:
        a(f"""    s_cmp_lg_u32 s60, 1
    s_cbranch_scc1 L_peb
    s_waitcnt vmcnt({n})
    s_barrier            ; B_-1
L_peb:""")
    dma(n)
a(f"""L_pnext:
    s_sub_u32 s51, s51, s55
    s_add_u32 s50, s50, s56
    s_add_u32 s63, s63, 1
    s_cmp_eq_u32 s63, 10
    s_cselect_b32 s63, 0, s63
    s_cselect_b32 s52, s62, 0
    s_sub_u32 s50, s50, s52
    s_add_u32 s51, s51, {STG}
    s_cmp_ge_u32 s51, {3*STG}
    s_cselect_b32 s52, {3*STG}, 0
    s_sub_u32 s51, s51, s52
    s_add_u32 s60, s60, 1
    s_cmp_lt_u32 s60, {3 if opt['eb'] else 2}
    s_cbranch_scc1 L_ploop
    s_waitcnt vmcnt(16)
    s_barrier
    s_cmp_lt_u32 s60, 10
    s_cbranch_scc1 L_ploop""")
stamp(0); st8(2)
def wpart(start, cnt, thr=0):
    a(f"""    s_mul_i32 s50, s49, {cnt*1024}
    s_add_u32 s50, s50, {start*1024}
    s_and_b32 s51, s29, 3
    s_lshl_b32 s51, s51, 12""")
    if not opt["wrot"]: a("    s_mov_b32 s51, 0")
    for g in range(4):
        if thr: a(f"    s_waitcnt vmcnt({thr})")
        a(f"""    s_add_u32 m0, s50, s51
    s_add_u32 s52, m0, s24
    s_add_u32 s51, s51, 4096
    s_and_b32 s51, s51, 0x3fff""")
        for i in range(4):
            a(f"    buffer_load_dwordx4 v1, {S(SWS)}, s52 offen offset:{i*1024} sc1 lds")
    if cnt > 16:
        a(f"    s_add_u32 m0, s50, 16384\n    s_add_u32 s52, m0, s24")
        for i in range(cnt - 16):
            a(f"    buffer_load_dwordx4 v1, {S(SWS)}, s52 offen offset:{i*1024} sc1 lds")
T = opt["thr"]
if opt["lnd"]:
    a(f"""    v_mov_b32 v144, {L_CNT}
{'' if opt['el'] else '    s_sleep %d' % opt['lnd']}
    ds_read_b32 v145, v144 offset:{O_WOK}
    s_waitcnt lgkmcnt(0)
    v_cmp_eq_u32 vcc, 0, v145
    s_cbranch_vccnz L_lnd0""")
    own_slot(0); own_slot(1)
    a("    s_waitcnt vmcnt(10)")
    lds_add(O_LAND, 144, 145)
    a("    s_branch L_lnd1\nL_lnd0:")
a("    s_waitcnt vmcnt(0)")
lds_add(O_LAND, 144, 145)
lds_spin("wok", O_WOK, 1, 144, 145)
if opt["lnd"]:
    own_slot(0); own_slot(1)
    a("L_lnd1:")
SCH = ["A o0 o1 r4 B X t o2 r8 o3 dr u C o4 o5 T",
       "A o0 o1 r4 B X o2 r8 t C o3 o4 o5 T",
       "A o0 o1 r4 B X r8 t C o2 dr u o3 o4 o5 T",
       "A o0 r4 B X o1 r8 t o2 C dr u o3 o4 o5 T",
       "A o0 o1 r4 B X r8 dr C o2 o3 o4 o5 T",
       "A o0 o1 r4 B X o2 r8 C o3 o4 o5 T",
       "A X o0 o1 r4 B r8 t C o2 o3 T dr u o4 o5",
       "A o0 o1 r4 B X t o2 r8 o3 pd u C o4 o5 T",
       "A o0 o1 r4 B X r8 pd C o2 o3 o4 o5 T",
       "A X o0 r8 pd B C o1 o2 o3 o4 o5 W25 T",
       "A X o0 o1 r8 pd B C o2 o3 o4 o5 W20 T",
       "A X r4 B r8 pd C o0 o1 o2 o3 o4 o5 W30 T",
       "A X o0 r8 T pd B C o1 o2 o3 o4 o5 W25",
       "A X r8 pd B C o0 o1 o2 o3 o4 o5 W30 T",
       "A o0 o1 r4 t B X r8 pd u C o2 o3 o4 o5 T",
       "A o0 o1 X o2 r4 t B r8 pd u C o3 o4 o5 T",
       "A o0 o1 X o2 o3 r4 t B r8 C pd u o4 o5 T",
       "A o0 o1 X r4 t B r8 o2 pd u C o3 o4 o5 W15 T"][opt["sch"]]
def run_sched(sch, tag):
    thr = 0; young = None
    for tok in sch.split():
        n = 0
        if tok == "t": thr = T
        elif tok == "u": thr = 0
        elif tok == "A": wpart(48, 16, thr); n = 16
        elif tok == "B": a("    s_waitcnt vmcnt(40)"); wpart(96, 18, thr); n = 18
        elif tok == "C": a("    s_waitcnt vmcnt(40)"); wpart(0, 16, thr); n = 16
        elif tok == "X": x_init_load(); young = 0
        elif tok[0] == "o": own_w(int(tok[1]), int(tok[1]) + 1, thr); n = 5
        elif tok == "r4": lds_spin(tag + "r4", O_REL, 4, 144, 145)
        elif tok == "r8":
            lds_spin(tag + "r8", O_REL, 8, 144, 145); stamp(1); a("    s_setprio 0")
        elif tok == "dr": lds_spin(tag + "dr", O_CNT, 4, 144, 145)
        elif tok == "pd":
            a(f"    s_cmp_eq_u32 s{sDFT}, 1\n    s_cbranch_scc1 L_{tag}pdd")
            lds_spin(tag + "pd", O_CNT, 4, 144, 145)
        elif tok == "p0": a("    s_setprio 0")
        elif tok[0] == "W":
            a(f"    s_waitcnt vmcnt({tok[1:]})"); lds_add(O_WL, 144, 145)
        elif tok == "T": trig_rows(min(young, 63))
        if young is not None: young += n
if opt["lnd"]: SCH = SCH.replace("o0 ", "").replace("o1 ", "")
run_sched(SCH, "p")
a("    s_branch L_pown")

a.label("L_serv")
a(f"""    s_lshr_b32 s53, s2, 2
    s_and_b32 s54, s2, 3
    s_mul_i32 s51, s53, {32*1280}
    s_mul_i32 s52, s54, 320
    s_add_u32 s51, s51, s52
    s_cmp_ge_u32 s2, 216
    s_cselect_b32 s51, 0x40000000, s51
    s_mov_b32 s56, 3277""")
for q in range(10):
    a(f"""    v_add_u32 v6, {64*q}, v0
    v_mul_u32_u24 v7, s56, v6
    v_lshrrev_b32 v7, 16, v7
    v_mul_u32_u24 v8, 20, v7
    v_sub_u32 v6, v6, v8
    v_mul_u32_u24 v7, 1280, v7
    v_lshl_add_u32 v{88+q}, v6, 4, v7""")
a(f"""    ; column sums: k32-step (m & 1) of matrix (m >> 1) & 1 in the first five stages, on the matrix core
    v_mov_b32 v60, 0x3f803f80
    v_mov_b32 v61, v60
    v_mov_b32 v62, v60
    v_mov_b32 v63, v60
    v_lshrrev_b32 v3, 4, v0
    v_bfe_u32 v6, v0, 2, 2                ; rho
    v_and_b32 v7, 3, v0                   ; gamma
    v_lshl_add_u32 v15, v3, 2, v6
    v_mul_u32_u24 v15, 320, v15
    v_lshl_add_u32 v15, v7, 3, v15
    v_add_u32 v15, {L_SCR}, v15
    s_and_b32 s57, s{sMI}, 1
    s_lshr_b32 s58, s{sMI}, 1
    s_lshl_b32 s52, s58, 13
    s_add_u32 s52, s52, 32768
    s_cmp_eq_u32 s{sDFT}, 1
    s_cbranch_scc1 L_sa_d
    v_lshl_add_u32 v5, v3, 3, v6
    v_lshlrev_b32 v5, 7, v5
    v_lshl_add_u32 v5, v7, 3, v5
    v_lshrrev_b32 v6, 1, v6
    v_and_b32 v7, 1, v3
    v_lshl_add_u32 v6, v7, 1, v6
    v_lshl_add_u32 v5, v6, 5, v5
    s_lshl_b32 s57, s57, 12
    s_add_u32 s52, s52, s57
    v_add_u32 v16, s52, v5
    v_xor_b32 v17, 32, v16
    v_xor_b32 v18, 64, v16
    v_xor_b32 v19, 96, v16
    s_branch L_sa_e
L_sa_d:
    s_lshl_b32 s57, s57, 2
    v_add_u32 v7, s57, v3
    v_bfe_u32 v6, v0, 1, 3
    v_xor_b32 v7, v7, v6
    v_and_b32 v6, 15, v0
    v_lshlrev_b32 v5, 7, v6
    v_lshl_add_u32 v5, v7, 4, v5
    v_add_u32 v16, s52, v5
    v_add_u32 v17, 2048, v16
    v_add_u32 v18, 4096, v16
    v_add_u32 v19, 6144, v16
L_sa_e:
    v_lshlrev_b32 v1, 4, v0
    v_lshlrev_b32 v9, 2, v0
    v_add_u32 v9, {L_CNT}, v9
    v_mov_b32 v7, 0
    s_mov_b64 exec, 0xffff
    ds_write_b32 v9, v7
    s_mov_b64 exec, -1
    v_mov_b32 v10, {L_CNT}
    v_mov_b32 v11, 1""")
for r in range(144, 160): a(f"    v_mov_b32 v{r}, 0")
a("    s_waitcnt lgkmcnt(0)")
mk_ws()
a(f"""    s_mov_b32 s47, {WS_EPOCH}
    buffer_load_dword v137, v7, {S(SWS)}, s47 offen sc1""")
if opt["cpf"] == 1:
    a(f"""    s_getpc_b64 s[60:61]
L_pc:
    s_sub_u32 s60, s60, L_pc - {NAME}
    s_subb_u32 s61, s61, 0
    s_lshr_b32 s52, s2, 3
    s_lshl_b32 s52, s52, 10
    v_lshlrev_b32 v6, 7, v0
    v_add_u32 v6, s52, v6
    v_min_u32 v6, L_end - {NAME}, v6
    s_mov_b64 exec, 0xff
    global_load_dword v138, v6, s[60:61]
    s_mov_b64 exec, -1""")
if opt["tlb"]:
    mk_out()
    if opt["tlb"] == 1:
        a(f"""    v_lshlrev_b32 v6, 21, v0
    v_add_u32 v6, 0x1fff80, v6
    s_mov_b64 exec, 0xff
    buffer_load_dword v139, v6, {S(SWS)}, 0 offen sc1
    s_mov_b64 exec, 3
    v_lshlrev_b32 v6, 21, v0
    buffer_load_dword v140, v6, {S(SOUT)}, 0 offen
    s_mov_b64 exec, -1""")
    else:
        a(f"""    s_lshr_b32 s52, s2, 3
    s_lshl_b32 s52, s52, 3
    v_add_u32 v6, s52, v0
    v_lshlrev_b32 v6, 16, v6
    v_add_u32 v6, 0xff80, v6
    s_mov_b64 exec, 0xff
    buffer_load_dword v139, v6, {S(SWS)}, 0 offen sc1
    s_lshr_b32 s52, s2, 3
    s_lshl_b32 s52, s52, 1
    v_add_u32 v6, s52, v0
    v_lshlrev_b32 v6, 16, v6
    s_mov_b64 exec, 3
    buffer_load_dword v140, v6, {S(SOUT)}, 0 offen
    s_mov_b64 exec, -1""")
mk_wd()
def cs_pass(j):
    if opt["ex"] == 11: return
    a(f"    s_cmp_eq_u32 s{sDFT}, 1\n    s_cbranch_scc1 L_cs{j}_d")
    for i in range(4):
        a(f"    ds_read_b64_tr_b16 {P2(64+4*i)}, v{16+i}")
        a(f"    ds_read_b64_tr_b16 {P2(66+4*i)}, v{16+i} offset:512")
    a(f"    s_branch L_cs{j}_e\nL_cs{j}_d:")
    for i in range(4): a(f"    ds_read_b128 {V(64+4*i)}, v{16+i}")
    d = STG if j % 3 != 2 else -2 * STG
    a(f"L_cs{j}_e:\n    s_mov_b32 s52, {d}")
    for i in range(4): a(f"    v_add_u32 v{16+i}, s52, v{16+i}")
    a("    s_waitcnt lgkmcnt(0)")
    for i in range(4 if opt["ex"] != 10 else 0): a(mfma(144 + 4 * i, 64 + 4 * i, 60))
k2_setup()
a(f"""    s_lshl_b32 s8, s54, 6
    s_add_u32 s8, s8, s53
    s_lshl_b32 s8, s8, 7
    s_add_u32 s8, s8, {WS_EF}
    s_lshl_b32 s11, s{sNT}, 3
    s_add_u32 s11, s11, s{sM}
    s_lshl_b32 s11, s11, 9
    s_lshl_b32 s58, s58, 8
    s_add_u32 s11, s11, s58
    s_add_u32 s11, s11, {WS_CSP}
    v_and_b32 v173, 48, v0
    s_lshl_b32 s9, s{sM}, 5
    s_and_b32 s52, s9, {0x60 if opt['es2'] else 0xe0}
    v_add_u32 v171, s52, v0
    v_add_u32 v171, {(WS_SF - WS_F2) // 128 if opt['sf'] else 0}, v171
    v_and_b32 v170, 7, v0
    v_lshlrev_b32 v170, 5, v170
    v_add_u32 v170, s{sNT}, v170
    v_cmp_gt_u32 vcc, 32, v0
    s_add_u32 s9, s9, s{sNT}
    s_lshl_b32 s9, s9, 7
    v_cndmask_b32 v171, v170, v171, vcc
    v_lshlrev_b32 v171, 7, v171
    v_min_u32 v170, 53, v0
    v_lshlrev_b32 v170, 7, v170
    s_add_u32 s13, s9, {WS_SF}
    s_add_u32 s9, s9, {WS_F2}
    s_lshr_b32 s10, s{sJ2}, 1
    s_lshl_b32 s10, s10, 13
    s_add_u32 s10, s10, {WS_EF}
    s_mul_i32 s12, s54, {2*WFT}
    s_mul_i32 s52, s53, 5120
    s_add_u32 s12, s12, s52
    s_add_u32 s12, s12, {WS_WF}
    s_cmp_ge_u32 s2, 216
    s_cselect_b32 s12, 0x40000000, s12
    v_mov_b32 v174, {L_CNT}
    v_mov_b32 v175, 1""")
def wd_dma(q0=0, q1=10):
    for q in range(q0, q1):
        a(f"    s_mov_b32 m0, {L_SCR + q*1024}\n    s_nop 0\n    buffer_load_dwordx4 v{88+q}, {S(SWD)}, s51 offen{' nt' if opt['wdnt'] else ''} lds")
def tag_up():
    a(f"""    s_waitcnt vmcnt(0)
    v_add_u32 v172, 1, v137
    ds_write_b32 v174, v172 offset:{O_TAG}
    v_readfirstlane_b32 s47, v172""")
def wf_read():
    a("    s_waitcnt vmcnt(0)")
    for jj in range(2):
        for nb in range(5):
            r = 88 + 4 * (5 * jj + nb); o = jj * 160 + nb * 32
            a(f"    ds_read_b64_tr_b16 v[{r}:{r+1}], v15 offset:{o}")
            a(f"    ds_read_b64_tr_b16 v[{r+2}:{r+3}], v15 offset:{o+5120}")
    a("    s_waitcnt lgkmcnt(0)")
def wf_store(i0, i1):
    for i in range(i0, i1):
        jj, nb = divmod(i, 5)
        a(f"    s_add_u32 s52, s12, {jj*WFT + (nb & 4)*1024}\n    buffer_store_dwordx4 {V(88+4*i)}, v1, {S(SWS)}, s52 offen offset:{(nb & 3)*1024} sc1")
def flag(sr):
    a(f"""    s_waitcnt vmcnt(0)
    s_mov_b64 exec, 1
    buffer_store_dword v172, v7, {S(SWS)}, s{sr} offen sc1
    s_mov_b64 exec, -1""")
def cs_store():
    a("    s_nop 7\n    s_mov_b32 exec_lo, 0x00010001\n    s_mov_b32 exec_hi, 0x00010001")
    for i in range(4): a(f"    buffer_store_dwordx4 {V(144+4*i)}, v173, {S(SWS)}, s11 offen offset:{i*64} sc1")
    a("    s_mov_b64 exec, -1")
PLAN = ["cD|c|cRa|cb|cES|F|", "Tc|XcD|c|cRab|cES|F|", "Tc|c|cD|c|cSRa|bF|E", "Tc|c|c|cD|cS|FRab|E", "cd|ce|c|cRa|cSb|EF|",
        "Tc|cD|c|cRa|cSb|EF|", "Tc|c|cd|ce|cS|FRab|E"][opt["wdt"]].split("|")
did_tag = False
for j, tasks in enumerate(PLAN):
    bar(f"B_{j-1}", j)
    for t in tasks:
        if t == "c": cs_pass(j)
        elif t == "T": tag_up(); did_tag = True
        elif t == "D": wd_dma()
        elif t == "d": wd_dma(0, 5)
        elif t == "e": wd_dma(5, 10)
        elif t == "R":
            if not did_tag: tag_up(); did_tag = True
            wf_read()
        elif t == "a": wf_store(0, 5)
        elif t == "b": wf_store(5, 10)
        elif t == "E": flag(8)
        elif t == "F": flag(9)
        elif t == "X" and opt["sf"]: flag(13)
        elif t == "S": cs_store()
a("    s_mov_b32 s51, s10")
bar("B_6", 7)
a(f"""    s_mov_b32 s50, {WS_F2}
    buffer_load_dword v5, v170, {S(SWS)}, s51 offen sc1
    buffer_load_dword v6, v171, {S(SWS)}, s50 offen sc1""")
bar("B_7", 8)
stamp(0)
a(f"""    s_waitcnt vmcnt(0)
    v_cmp_ne_u32 s[58:59], s47, v5
    v_cmp_ne_u32 vcc, s47, v6
    s_cbranch_vccz L_p3d
    s_cmp_lg_u64 s[58:59], 0
    s_cbranch_scc1 L_p3w
    ds_write_b32 v174, v175 offset:{O_WOK}
L_p3w:""")
poll("p3", 171, "s50", 6, "s47", 3)
a(f"""    v_lshlrev_b32 v6, 3, v0
    v_lshrrev_b32 v5, 5, v0
    v_lshl_add_u32 v5, v5, 10, v6
    s_lshl_b32 s50, s{sM}, 11
    s_lshl_b32 s52, s{sNT}, 12
    s_add_u32 s52, s52, {WS_CSP}""")
for n in range(4):
    a(f"    buffer_load_dwordx2 v[{128+4*n}:{129+4*n}], v6, {S(SWS)}, s50 offen offset:{n*512} sc1")
for n in range(4):
    a(f"    buffer_load_dwordx2 {P2(144+2*n)}, v5, {S(SWS)}, s52 offen offset:{(n>>1)*2048+(n&1)*512} sc1")
a(f"""    s_cmp_eq_u64 s[58:59], 0
    s_cbranch_scc1 L_p1d""")
poll("p1", 170, "s51", 5, "s47", 3)
a(f"    ds_write_b32 v174, v175 offset:{O_WOK}")
a(f"    s_waitcnt vmcnt(0)")
for n in range(4): a(f"    v_rsq_f32 v{152+n}, v{129+4*n}")
for n in range(1, 4): a(f"    v_add_f32 v144, v144, v{144+2*n}\n    v_add_f32 v145, v145, v{145+2*n}")
a(f"""    v_add_u32 v6, {L_CS}, v6
    ds_write_b64 v6, v[144:145]
    s_cmp_eq_u32 s{sDFT}, 1
    s_cbranch_scc1 L_serv_cdft
    v_add_u32 v6, {L_STAT}, v1""")
for n in range(4):
    b = 128 + 4 * n
    a(f"""    v_mov_b32 v{b+3}, v{b+1}
    v_mul_f32 v156, v{152+n}, v{152+n}
    v_xor_b32 v{b}, 0x80000000, v{b}
    v_mul_f32 v{b+1}, {f2u(-K1C):#x}, v{152+n}
    v_mul_f32 v156, v156, v{152+n}
    v_mul_f32 v{b+2}, {f2u(-K2C):#x}, v156
    ds_write_b128 v6, {V(b)} offset:{n*1024}""")
a(f"""    s_branch L_serv_cd
L_serv_cdft:
    v_lshlrev_b32 v6, 2, v0
    v_add_u32 v6, {L_STAT}, v6""")
for n in range(4):
    b = 128 + 4 * n
    a(f"""    v_mul_f32 v{b}, v{b}, v{152+n}
    v_xor_b32 v{b}, 0x80000000, v{b}
    ds_write_b32 v6, v{152+n} offset:{n*256}
    ds_write_b32 v6, v{b} offset:{1024+n*256}""")
a(f"""L_serv_cd:
    ds_write_b32 v174, v175 offset:{O_RDY}""")
stamp(1)
a("    s_waitcnt lgkmcnt(0)")
SSCH = ["X o0 o1 o2 o3 p0 t o4 o5 pd T", "X o0 o1 o2 o3 p0 T t o4 o5 pd", "X o0 o1 o2 o3 o4 o5 T p0 pd", "X o0 o1 T p0 t o2 o3 o4 o5 pd", "X o0 p0 T pd", "X o0 o1 p0 T pd", "X p0 T pd", "X o0 o1 p0 T t o2 o3 pd"][opt["ssch"]]
SREST = [sl for sl in range(6) if f"o{sl}" not in SSCH]
run_sched(SSCH, "s")

def item(vit, va, vg, t0):
    t1, t2 = t0 + 1, t0 + 2
    a(f"""    v_mul_u32_u24 v{t0}, s50, v{vit}
    v_lshrrev_b32 v{t0}, 16, v{t0}
    v_mul_u32_u24 v{t1}, 20, v{t0}
    v_sub_u32 v{t1}, v{vit}, v{t1}
    v_and_b32 v{vg}, 31, v{t0}
    v_lshlrev_b32 v{vg}, 6, v{vg}
    v_and_b32 v{t2}, 32, v{t0}
    v_add3_u32 v{vg}, v{vg}, v{t2}, s{sT1}
    v_mul_u32_u24 v{vg}, 1280, v{vg}
    v_lshl_add_u32 v{vg}, v{t1}, 3, v{vg}
    v_mul_u32_u24 v{va}, {PSTR}, v{t0}
    v_lshl_add_u32 v{va}, v{t1}, 3, v{va}""")
def fin_addr(tb):
    a(f"""    s_mov_b32 s50, 3277
    s_lshl_b32 s51, s{sW}, 7
    v_add_u32 v{tb}, s51, v0""")
    item(tb, 4, 6, tb + 1)
    a(f"    v_add_u32 v{tb}, 64, v{tb}")
    item(tb, 5, 7, tb + 1)
    a(f"    s_mul_i32 s59, s{sJ2}, 160")
    mk_out()
def x_loads(r):
    a(f"""    buffer_load_dwordx4 {V(r)}, v6, {S(SX)}, s59 offen
    s_mov_b64 exec, 0xffff
    buffer_load_dwordx4 {V(r+4)}, v7, {S(SX)}, s59 offen
    s_mov_b64 exec, -1""")
def part_addr(t0):
    a(f"""    v_and_b32 v{t0}, 15, v0
    v_lshrrev_b32 v{t0+1}, 4, v0
    v_mul_u32_u24 v{t0}, {PSTR}, v{t0}
    v_lshl_add_u32 v{t0}, v{t0+1}, 3, v{t0}""")
def capture(fn):
    n0 = len(a.lines); fn(); out = a.lines[n0:]; del a.lines[n0:]; return out
def k2_mfma(wbase, hbase, fill=(), start=0):
    fill = list(fill); k = 0
    for nb in range(5):
        for ts in range(4):
            a(mfma(ACC2 + 4 * (nb * 4 + ts), wbase + 4 * nb, hbase + 4 * ts))
            if k >= start and fill: a(fill.pop(0))
            k += 1
    for l in fill: a(l)
def h_load(hbase, cnt, n, oob=None, base=61):
    a(f"    s_lshl_b32 s52, s{cnt}, 17\n    s_add_u32 s52, s52, s{base}")
    if oob: a(oob)
    if opt["ex"] == 20: a("    s_mov_b32 s52, 0x40000000")
    for ts in range(4):
        a(f"    buffer_load_dwordx4 {V(hbase+4*ts)}, v1, {S(SWS)}, s52 offen offset:{ts*1024} sc1")
    rot_next(cnt, n)
def put(nb, ts, t, pr=None):
    d = ACC2 + 4 * (nb * 4 + ts)
    if pr is not None:
        a(f"""    v_lshlrev_b32 v{t}, 16, v{pr}
    v_and_b32 v{t+1}, 0xffff0000, v{pr}
    v_lshlrev_b32 v{t+2}, 16, v{pr+1}
    v_and_b32 v{t+3}, 0xffff0000, v{pr+1}""")
        for i in range(4): a(f"    v_add_f32 v{d+i}, v{d+i}, v{t+i}")
    a(f"""    v_cvt_pk_bf16_f32 v{d}, v{d}, v{d+1}
    v_cvt_pk_bf16_f32 v{d+1}, v{d+2}, v{d+3}
    ds_write_b64 v2, {P2(d)} offset:{ts*16*PSTR+nb*32}""")
def tail(steps, t, PR=None):
    for nb in range(5):
        i = 0
        if nb == 1 and PR: a("    s_waitcnt lgkmcnt(0)")
        for wb, hb in steps:
            for ts in range(4):
                a(mfma(ACC2 + 4 * (nb * 4 + ts), wb + 4 * nb, hb + 4 * ts))
                i += 1
                if nb and i >= 5: put(nb - 1, i - 5, t, PR(nb - 1, i - 5) if PR else None)
    stamp(5); st3(7)
    a("    s_nop 7")
    for ts in range(4): put(4, ts, t, PR(4, ts) if PR else None)

K2ON[0] = True
a.label("L_pown")
a(f"    v_mov_b32 v160, {L_CNT}\n    ds_read_b32 v161, v160 offset:{O_TAG}")
fin_addr(144)
a(f"""    s_mul_i32 s52, s{sJ2}, 80
    v_add_u32 v2, s52, v2             ; e (nb = 0)
    v_mul_u32_u24 v3, 5120, v3
    s_xor_b32 s56, s{sT1}, s58
    s_add_u32 s56, s56, s57
    s_and_b32 s56, s56, 31
    s_mul_i32 s56, s56, 81920
    s_mul_i32 s52, s49, {4*5120}
    s_add_u32 s56, s56, s52
    s_add_u32 s56, s56, {WS_G}
    s_cmp_ge_u32 s{sJ2}, 4
    s_cselect_b32 s57, 640, -1
    s_waitcnt lgkmcnt(0)
    v_readfirstlane_b32 s47, v161
    s_cmp_eq_u32 s{sW}, 7
    s_cbranch_scc1 L_sv2""")
if "W" not in SCH:
    a("    s_waitcnt vmcnt(0)")
    lds_add(O_WL, 144, 145)
stamp(4)
lds_spin("s1", O_S1, 1, 144, 145)
a(f"""    s_branch L_k2p
L_sv2:
"""[:-1])
a(f"""    s_lshr_b32 s50, s{sT1}, 2
    s_lshl_b32 s50, s50, 5
    v_min_u32 v144, 26, v0
    v_add_u32 v144, s50, v144
    v_lshlrev_b32 v144, 7, v144
    s_mov_b32 s50, {WS_FLAGS}""")
stamp(2)
if opt["slp"]: a(f"    s_sleep {opt['slp']}")
poll("p2", 144, "s50", 145, "s47", opt["pslp"])
stamp(4)
a(f"""    v_mov_b32 v145, 1
    ds_write_b32 v160, v145 offset:{O_S1}""")
for sl in SREST: own_slot(sl)
a("L_k2p:")
stamp(3); st3(0)
hl = [144, 160, 8, 144, 28, 160] if opt["il2"] else [144, 160, 144, 8, 160, 28]
a(f"    s_setprio {opt['pp']}")
def ph(i): h_load(hl[i], 28, 6, base=26)
def block_with_loads(wb, hb, i0, pre=()):
    if not opt["il2"]:
        k2_mfma(wb, hb)
        for l in pre: a(l)
        ph(i0); ph(i0 + 1)
        return
    A, B = capture(lambda: ph(i0)), capture(lambda: ph(i0 + 1))
    B = [l.replace("s52", "s53") for l in B]
    if opt["ex"] == 20: A = [A[0], A[2]] + A[3:]; B = [B[0], B[2]] + B[3:]
    slots = {0: A[0:1], 1: A[1:2], 2: list(pre), 4: A[2:3], 5: A[6:7], 6: A[7:8], 7: A[8:9], 8: A[3:4], 9: B[0:1], 10: B[1:2], 12: A[4:5],
             13: B[6:7], 14: B[7:8], 15: B[8:9], 16: A[5:6] + B[2:3], 17: B[3:4], 18: B[4:5], 19: B[5:6]}
    k = 0
    for nb in range(5):
        for ts in range(4):
            a(mfma(ACC2 + 4 * (nb * 4 + ts), wb + 4 * nb, hb + 4 * ts))
            for l in slots.get(k, []): a(l)
            k += 1
ph(0); ph(1)
a(f"""    s_sub_u32 s50, 7, s{sJ2}
    s_min_u32 s50, s50, s{sJ2}
    s_add_u32 s51, s50, 27
    s_mov_b32 s50, {WS_FLAGS}
    s_waitcnt vmcnt(4)""")
st3(1)
block_with_loads(8, hl[0], 2)
a(f"""    v_and_b32 v24, 7, v0
    v_lshlrev_b32 v24, 5, v24
    v_bfe_u32 v25, v0, 3, 1
    v_add3_u32 v24, v24, v25, s51
    v_lshlrev_b32 v24, 7, v24
    s_waitcnt vmcnt(8)""")
st3(2)
block_with_loads(28, hl[1], 4, [f"    buffer_load_dword v25, v24, {S(SWS)}, s50 offen sc1"])
a(f"    s_setprio {opt['pp2']}\n    s_waitcnt vmcnt(13)")
st3(3)
k2_mfma(48, hl[2])
a(f"""    s_waitcnt vmcnt(8)
    v_cmp_ne_u32 vcc, s47, v25
    s_cbranch_vccz L_pgd""")
GT = hl[2]
poll("pg", 24, "s50", 25, "s47", 2)
for nb in range(5):
    a(f"""    v_add_u32 v{GT}, {16*nb}, v2
    v_xor_b32 v{GT+1}, s58, v{GT}
    v_add_u32 v{GT+1}, s57, v{GT+1}
    v_lshl_add_u32 v{GT+1}, v{GT+1}, 4, v3""")
    if nb == 0:
        a(f"""    v_cmp_eq_u32 vcc, 0, v{GT}
    v_mov_b32 v{GT+2}, 0x40000000
    s_nop 0
    v_cndmask_b32 v{GT+1}, v{GT+1}, v{GT+2}, vcc""")
    a(f"    buffer_load_dwordx4 {V(48+4*nb)}, v{GT+1}, {S(SWS)}, s56 offen sc1")
st3(4)
k2_mfma(68, hl[3])
a("    s_waitcnt vmcnt(9)")
st3(5)
k2_mfma(88, hl[4])
part_addr(16)
a(f"""    s_mul_i32 s50, s49, 40960
    s_cmp_eq_u32 s49, 3
    s_cselect_b32 s50, {PBASE[3]}, s50
    s_add_u32 s50, s50, {64*PSTR}
    v_add_u32 v2, s50, v16
    s_lshl_b32 s50, s49, 2
    s_add_u32 s50, s50, {L_CNT + O_PF}""")
lds_spin("pf", "s50", 1, 16, 17)
a("    s_waitcnt vmcnt(0)")
st3(6)
tail(((108, hl[5]), (48, 128)), 16)
a("    s_branch L_final")

K2ON[0] = False
a.label("L_cons")
sNH, sSH = 47, 49
ESEL2 = f"""    s_cmp_ge_u32 s{sM}, 4
    s_cbranch_scc1 L_ch3
    s_mov_b32 s53, s36
    s_mov_b32 s52, s{sNH}
    s_lshl_b32 s54, s{sSH}, 2
    s_add_u32 s54, s54, s{sM}"""
ESEL = f"""    s_bitcmp1_b32 s36, 1
    s_cbranch_scc1 L_ch3
    s_and_b32 s52, s36, 1
    s_add_u32 s53, s36, s52
    s_add_u32 s53, s53, s{sSH}           ; s1 = 4 j + 2 g + (w >> 1)
    s_mov_b32 s52, s{sNH}""" if opt["es"] else f"""    s_add_u32 s52, s{sW}, 1
    s_and_b32 s52, s52, 2
    s_cmp_eq_u32 s52, 0
    s_cbranch_scc1 L_ch3
    s_sub_u32 s52, s{sW}, 1
    s_mov_b32 s53, s36"""
a(f"""    s_and_b32 s{sNH}, s{sW}, 1
    s_lshr_b32 s{sSH}, s{sW}, 1
    v_and_b32 v2, 15, v0
    v_lshrrev_b32 v3, 4, v0
    v_bfe_u32 v6, v0, 1, 3
    s_lshl_b32 s50, s{sSH}, 14
    v_lshlrev_b32 v1, 7, v2
    v_add_u32 v1, s50, v1
    v_xor_b32 v7, v3, v6
    v_lshl_add_u32 v8, v7, 4, v1
    v_xor_b32 v9, 64, v8
{ESEL2 if opt['es2'] else ESEL}
{'' if opt['es2'] else '    s_mov_b32 s54, s%d' % sM}
    v_mul_u32_u24 v6, 1280, v3
    v_lshl_add_u32 v6, v2, 4, v6
    s_lshl_b32 s50, s53, 6
    s_lshl_b32 s51, s52, 5
    s_add_u32 s50, s50, s51
    s_lshl_b32 s51, s54, 2
    s_add_u32 s50, s50, s51
    s_mul_i32 s50, s50, 1280
    s_waitcnt lgkmcnt(0)""")
mk_x()
for j in range(5): a(f"    buffer_load_dwordx4 {V(16+4*j)}, v6, {S(SX)}, s50 offen offset:{j*256}")
mk_ws()
for r in range(128, 256): a(f"    v_mov_b32 v{r}, 0")
for r in range(40, 48): a(f"    v_mov_b32 v{r}, 0")
a(f"""    s_lshl_b32 s50, s54, 11
    s_lshl_b32 s51, s52, 10
    s_add_u32 s50, s50, s51
    s_lshl_b32 s51, s53, 3
    s_add_u32 s50, s50, s51
    v_lshlrev_b32 v4, 8, v3
    s_waitcnt vmcnt(0)
    v_lshlrev_b32 v36, 16, v16
    s_nop 1
    v_mov_b32_dpp v36, v36 row_newbcast:0 row_mask:0xf bank_mask:0xf""")
for g in range(0, 20, 4):
    for i in range(g, g + 4): a(f"    v_lshlrev_b32 v{48+2*(i&3)}, 16, v{16+i}\n    v_and_b32 v{49+2*(i&3)}, 0xffff0000, v{16+i}")
    for i in range(g, g + 4): a(f"    v_pk_add_f32 {P2(48+2*(i&3))}, {P2(48+2*(i&3))}, v[36:37] op_sel_hi:[1,0] neg_lo:[0,1] neg_hi:[0,1]")
    for i in range(g, g + 4): a(f"    v_pk_add_f32 {P2(40+2*(i&1))}, {P2(40+2*(i&1))}, {P2(48+2*(i&3))}")
    for i in range(g, g + 4): a(f"    v_pk_fma_f32 {P2(44+2*(i&1))}, {P2(48+2*(i&3))}, {P2(48+2*(i&3))}, {P2(44+2*(i&1))}")
a("""    v_pk_add_f32 v[40:41], v[40:41], v[42:43]
    v_pk_add_f32 v[44:45], v[44:45], v[46:47]
    v_add_f32 v40, v40, v41
    v_add_f32 v44, v44, v45""")
for mode in ("quad_perm:[1,0,3,2]", "quad_perm:[2,3,0,1]", "row_half_mirror", "row_mirror"):
    a("    s_nop 1")
    for r in (40, 44): a(f"    v_add_f32_dpp v{r}, v{r}, v{r} {mode} row_mask:0xf bank_mask:0xf")
a(f"""    v_mul_f32 v40, {f2u(1/640):#x}, v40
    v_mov_b32 v39, {f2u(1e-5):#x}
    v_fmac_f32 v39, {f2u(1/640):#x}, v44
    v_add_f32 v38, v40, v36
    v_fma_f32 v39, -v40, v40, v39
    v_max_f32 v39, {f2u(1e-5):#x}, v39
    s_mov_b32 exec_lo, 0x00010001
    s_mov_b32 exec_hi, 0x00010001
    buffer_store_dwordx2 v[38:39], v4, {S(SWS)}, s50 offen sc1
    s_mov_b64 exec, -1
    s_branch L_chd
L_ch3:
    s_waitcnt lgkmcnt(0)""")
if opt["tch"] & 1:
    a(f"    s_cmp_lg_u32 s{sW}, 0\n    s_cbranch_scc1 L_nt")
    w_touch(1, opt["tch"] & 2, 6, 127, 50)
    a("L_nt:")
mk_ws()
for r in range(128, 256): a(f"    v_mov_b32 v{r}, 0")
a(f"""L_chd:
    s_mov_b32 s60, 10
    s_mov_b32 s61, 0
    v_mov_b32 v120, {L_CNT}
    v_mov_b32 v121, 1
    s_cmp_eq_u32 s{sDFT}, 1
    s_cbranch_scc1 L_cdft""")

XF = 16
WF = [48, 64]
def acc(i, st): return 128 + 16 * st + 4 * i
def xr(st, kk): return f"    ds_read_b128 {V(XF+4*st)}, v{8+kk} offset:{st*2048}"
def wr(dft, kk):
    b = WF[kk]
    if dft: return [[f"    ds_read_b128 {V(b+4*i)}, v{12+kk} offset:{(i>>1)*8192+(i&1)*2048}"] for i in range(4)]
    return [[f"    ds_read_b64_tr_b16 {P2(b+4*i)}, v{12+(i&1)} offset:{kk*4096+(i>>1)*8192}",
             f"    ds_read_b64_tr_b16 {P2(b+4*i+2)}, v{12+(i&1)} offset:{kk*4096+(i>>1)*8192+512}"] for i in range(4)]
def main_loop(dft, tag):
    nw = 1 if dft else 2
    stamp(8); st8(0)
    bar("B_-1")
    stamp(0); st8(1)
    W = wr(dft, 0)
    a(xr(0, 0)); a(xr(1, 0))
    for st in range(2, 8):
        a(xr(st, 0))
        if st < 6:
            for r in W[st - 2]: a(r)
    a(".p2align 3")
    a.label(f"L_{tag}_loop")
    for kk in range(2):
        W = wr(dft, 1 - kk)
        for st in range(8):
            if st == 0: a(f"    s_waitcnt lgkmcnt({2 if kk == 0 else 5})")
            if st == 4 and kk == 0: a(f"    s_waitcnt lgkmcnt({4 + 4*nw})")
            if kk == 1 and st == 2:
                a(f"""    s_cmp_le_u32 s60, 2
    s_cbranch_scc1 L_{tag}_rel
    s_waitcnt vmcnt(0) lgkmcnt(0)
    s_barrier
L_{tag}_reld:""")
                a(xr(0, 0)); a(xr(1, 0))
            ex = []
            if kk == 0: ex = [xr(st, 1)] + (W[st] if st < 4 else [])
            elif st >= 2: ex = [xr(st, 0)] + (W[st - 2] if st < 6 else [])
            for i in range(4):
                w, x = WF[kk] + 4 * i, XF + 4 * st
                i2, st2 = i, st
                if opt["ex"] == 6: i2, st2 = st & 3, (st & 4) + i
                if opt["ex"] == 7: i2, st2 = (i if st % 2 == 0 else 3 - i), st
                if opt["ex"] == 8: i2, st2 = (st >> 1), 4 * (st & 1) + i
                w, x = WF[kk] + 4 * i2, XF + 4 * st2
                if opt["ex"] == 9: a(mfma(acc(i2, st2), x, w))
                else: a(mfma(acc(i2, st2), x, w) if dft else mfma(acc(i2, st2), w, x))
                if i == 3: a(ex[0]) if ex else None
                elif i < len(ex) - 1: a(ex[1 + i])
            if kk == 0 and st == 7: a(f"    ds_read_b32 v122, v120 offset:{O_LAND}")
            if kk == 1 and st == 0:
                a(f"""    s_add_u32 s61, s61, 1
    s_cmp_eq_u32 s61, 3
    s_cselect_b32 s62, {-3*STG}, 0
    s_cselect_b32 s61, 0, s61
    s_add_u32 s62, s62, {STG}""")
            if kk == 1 and st == 1:
                for r in (8, 9, 12, 13): a(f"    v_add_u32 v{r}, s62, v{r}")
    a(f"""    s_sub_u32 s60, s60, 1
    s_cmp_lg_u32 s60, {1 if opt['fin'] and not dft else 0}
    s_cbranch_scc1 L_{tag}_loop
    s_branch L_{tag}_epi
L_{tag}_rel:
    s_mov_b32 s62, 0
    s_waitcnt lgkmcnt(0)
    s_mov_b64 exec, 1
    ds_add_u32 v120, v121 offset:{O_REL}
    s_mov_b64 exec, -1
L_{tag}_land:
    v_cmp_gt_u32 vcc, 3, v122
    s_cbranch_vccz L_{tag}_reld
    ds_read_b32 v122, v120 offset:{O_LAND}
    s_add_u32 s62, s62, 1
    s_waitcnt lgkmcnt(0)
    s_cmp_lt_u32 s62, 0x400000
    s_cbranch_scc1 L_{tag}_land
    s_branch L_{tag}_reld
L_{tag}_epi:""")
    stamp(1); st8(2); st9(0)
    if opt["fin"] and not dft:
        for r in wr(False, 1):
            for q in r: a(q)
        a(f"    ds_read_b128 {V(80)}, v9 offset:0")
        a("    s_waitcnt lgkmcnt(11)")
        for i in range(4): a(mfma(acc(i, 0), WF[0] + 4 * i, XF))
    a("    s_setprio 3\n    s_mov_b32 s60, 0")
    a.label(f"L_{tag}_rdy")
    a(f"    ds_read_b32 v122, v120 offset:{O_RDY}\n    ds_read_b32 v123, v120 offset:{O_TAG}")
def rdy_check(tag, n):
    a(f"""    s_waitcnt lgkmcnt({n})
    v_cmp_eq_u32 vcc, 0, v122
    s_add_u32 s60, s60, 1
    s_cbranch_vccz L_{tag}_go
    s_cmp_lt_u32 s60, 0x400000
    s_cbranch_scc1 L_{tag}_rdy
L_{tag}_go:""")

a(f"""    v_bfe_u32 v6, v0, 2, 2            ; rho
    v_lshl_add_u32 v7, v3, 3, v6
    v_lshlrev_b32 v12, 7, v7
    v_and_b32 v7, 3, v0
    v_lshl_add_u32 v12, v7, 3, v12
    v_lshrrev_b32 v6, 1, v6
    v_and_b32 v7, 1, v3
    v_lshl_add_u32 v6, v7, 1, v6
    s_lshl_b32 s50, s{sNH}, 1
    v_xor_b32 v6, s50, v6
    v_lshl_add_u32 v12, v6, 5, v12
    v_add_u32 v12, 32768, v12
    v_xor_b32 v13, 32, v12
    s_lshl_b32 s50, s{sNH}, 7
    s_add_u32 s50, s50, {L_CS}
    v_lshl_add_u32 v4, v3, 4, s50
    s_lshl_b32 s51, s{sSH}, 11
    s_add_u32 s51, s51, {L_STAT}
    v_lshl_add_u32 v5, v2, 4, s51
    v_lshlrev_b32 v6, 4, v0
    s_lshl_b32 s50, s{sNT}, 1
    s_add_u32 s50, s50, s{sNH}
    s_lshl_b32 s50, s50, 17
    s_lshl_b32 s51, s{sM}, 14
    s_add_u32 s50, s50, s51
    s_lshl_b32 s51, s{sSH}, 11
    s_add_u32 s50, s50, s51
    s_add_u32 s50, s50, {WS_H}""")
main_loop(False, "cf")
if opt["fin"]:
    CG, RC, Z = 96, 112, 88
    for i in range(4): a(f"    ds_read_b128 {V(CG+4*i)}, v4 offset:{(i>>1)*256+(i&1)*64}")
    a(f"    ds_read_b128 {V(RC)}, v5")
    rdy_check("cf", 0)
    st9(1)
    def mf(st, kk): return [mfma(acc(i, st), WF[kk] + 4 * i, (XF + 4 * st) if kk == 0 else 80 + 4 * (st & 1)) for i in range(4)]
    a(f"    ds_read_b128 {V(84)}, v9 offset:2048")
    for m_ in mf(0, 1): a(m_)
    for st in range(8):
        c0, c1 = P2(RC + 4 * (st & 1)), P2(RC + 2 + 4 * (st & 1))
        A = lambda i: P2(acc(0, st) + 2 * i)
        U = lambda i: P2(acc(2, st) + 2 * i)
        ZZ = lambda i: P2(Z + 2 * i)
        nx = st + 1
        a("    s_waitcnt lgkmcnt(0)")
        if nx < 8: a(f"    ds_read_b128 {V(RC+4*(nx&1))}, v5 offset:{nx*256}")
        if nx < 7: a(f"    ds_read_b128 {V(80+4*(st&1))}, v9 offset:{(nx+1)*2048}")
        if nx == 7:
            a(f"    s_mov_b64 exec, 1\n    ds_add_u32 v120, v121 offset:{O_REL}\n    s_mov_b64 exec, -1")
        if st == 0: a("    s_nop 4")
        for i in range(4): a(f"    v_pk_fma_f32 {A(i)}, {P2(CG+2*i)}, {c0}, {A(i)} op_sel_hi:[1,0,1]")
        for i in range(4): a(f"    v_pk_mul_f32 {ZZ(i)}, {A(i)}, {A(i)}")
        for i in range(4): a(f"    v_pk_fma_f32 {ZZ(i)}, {ZZ(i)}, {c1}, {c0} op_sel:[0,0,1] op_sel_hi:[1,0,1]")
        for i in range(4): a(f"    v_pk_mul_f32 {ZZ(i)}, {ZZ(i)}, {A(i)}")
        for i in range(4): a(f"    v_pk_fma_f32 {U(i)}, {P2(CG+8+2*i)}, {c0}, {U(i)} op_sel_hi:[1,0,1]")
        for i in range(4): a(f"    v_pk_mul_f32 {U(i)}, {U(i)}, {A(i)}")
        m0_ = mf(nx, 0) if nx < 8 else [None] * 4
        m1_ = mf(nx, 1) if nx < 8 else [None] * 4
        for i in range(4):
            if m0_[i]: a(m0_[i])
            a(f"    v_exp_f32 v{Z+2*i}, v{Z+2*i}\n    v_exp_f32 v{Z+2*i+1}, v{Z+2*i+1}")
        for i in range(8): a(f"    v_fma_f32 v{Z+i}, v{Z+i}, v{RC+3+4*(st&1)}, v{RC+3+4*(st&1)}")
        for i in range(4):
            if m1_[i]: a(m1_[i])
            a(f"    v_rcp_f32 v{Z+2*i}, v{Z+2*i}\n    v_rcp_f32 v{Z+2*i+1}, v{Z+2*i+1}")
        for i in range(4): a(f"    v_pk_mul_f32 {U(i)}, {U(i)}, {ZZ(i)}")
        for i in range(4): a(f"    v_cvt_pk_bf16_f32 v{acc(0,st)+i}, v{acc(2,st)+2*i}, v{acc(2,st)+2*i+1}")
        a(f"    buffer_store_dwordx4 {V(acc(0,st))}, v6, {S(SWS)}, s50 offen offset:{(st&1)*1024} sc1")
        if st & 1 and st < 7: a("    s_add_u32 s50, s50, 4096")
        if st in (0, 1, 2, 3, 5, 7): st9({0: 2, 1: 3, 2: 4, 3: 5, 5: 6, 7: 7}[st])
else:
    a(f"    ds_read_b128 {V(32)}, v5")
    for i in range(4): a(f"    ds_read_b128 {V(16+4*i)}, v4 offset:{(i>>1)*256+(i&1)*64}")
    for st in range(1, 8): a(f"    ds_read_b128 {V(32+4*st)}, v5 offset:{st*256}")
    rdy_check("cf", 7)
    for st in range(8):
        c0, c1 = P2(32 + 4 * st), P2(34 + 4 * st)
        if st == 1: a("    s_waitcnt lgkmcnt(0)")
        ob = 88 + 4 * (st & 1)
        TG = lambda i: 64 + 2 * i
        TU = lambda i: 72 + 2 * i
        Z = lambda i: 80 + 2 * i
        for i in range(4): a(f"    v_pk_fma_f32 {P2(TG(i))}, {P2(16+2*i)}, {c0}, {P2(acc(0,st)+2*i)} op_sel_hi:[1,0,1]")
        for i in range(4): a(f"    v_pk_mul_f32 {P2(Z(i))}, {P2(TG(i))}, {P2(TG(i))}")
        for i in range(4): a(f"    v_pk_fma_f32 {P2(Z(i))}, {P2(Z(i))}, {c1}, {c0} op_sel:[0,0,1] op_sel_hi:[1,0,1]")
        for i in range(4): a(f"    v_pk_mul_f32 {P2(Z(i))}, {P2(Z(i))}, {P2(TG(i))}")
        for i in range(4): a(f"    v_exp_f32 v{Z(i)}, v{Z(i)}\n    v_exp_f32 v{Z(i)+1}, v{Z(i)+1}")
        for i in range(4): a(f"    v_pk_fma_f32 {P2(TU(i))}, {P2(24+2*i)}, {c0}, {P2(acc(2,st)+2*i)} op_sel_hi:[1,0,1]")
        for i in range(4): a(f"    v_pk_fma_f32 {P2(Z(i))}, {P2(Z(i))}, {c1}, {c1} op_sel:[0,1,1] op_sel_hi:[1,1,1]")
        for i in range(4): a(f"    v_rcp_f32 v{Z(i)}, v{Z(i)}\n    v_rcp_f32 v{Z(i)+1}, v{Z(i)+1}")
        for i in range(4): a(f"    v_pk_mul_f32 {P2(TU(i))}, {P2(TU(i))}, {P2(TG(i))}")
        for i in range(4): a(f"    v_pk_mul_f32 {P2(TU(i))}, {P2(TU(i))}, {P2(Z(i))}")
        for i in range(4): a(f"    v_cvt_pk_bf16_f32 v{ob+i}, v{TU(i)}, v{TU(i)+1}")
        a(f"    buffer_store_dwordx4 {V(ob)}, v6, {S(SWS)}, s50 offen offset:{(st&1)*1024} sc1")
        if st & 1 and st < 7: a("    s_add_u32 s50, s50, 4096")
a("    s_branch L_cdone")

a.label("L_cdft")
a(f"""    s_lshl_b32 s50, s{sNH}, 12
    s_lshl_b32 s51, s{sSH}, 14
    s_sub_u32 s50, s50, s51
    s_add_u32 s50, s50, 32768
    v_add_u32 v12, s50, v8
    v_add_u32 v13, s50, v9
    s_lshl_b32 s51, s{sSH}, 9
    s_add_u32 s51, s51, {L_STAT}
    v_lshl_add_u32 v1, v3, 4, s51
    s_lshl_b32 s50, s{sNH}, 7
    s_add_u32 s50, s50, {L_CS}
    v_lshl_add_u32 v7, v2, 2, s50
    v_mul_u32_u24 v6, {4*81920}, v3
    v_lshl_add_u32 v6, v2, 4, v6
    s_lshl_b32 s50, s{sSH}, 3
    s_add_u32 s50, s50, s{sM}
    s_mul_i32 s50, s50, 5120
    s_sub_u32 s51, s{sNT}, 27
    s_lshl_b32 s51, s51, 1
    s_add_u32 s51, s51, s{sNH}
    s_lshl_b32 s51, s51, 9
    s_add_u32 s50, s50, s51
    s_add_u32 s50, s50, {WS_G}
    ; 32-point DFT fragments (row t1 = 16 th + (l & 15), s1 = 16 b + 4 (l >> 4) + 0..3): cos v80.., sin v88.., -cos v96..
    v_lshlrev_b32 v104, 2, v3""")
for th in range(2):
    a(f"    v_add_u32 v105, {16*th}, v2")
    for b in range(2):
        a(f"""    v_add_u32 v106, {16*b}, v104
    v_mul_u32_u24 v108, v106, v105
    v_add_u32 v109, v108, v105
    v_add_u32 v110, v109, v105
    v_add_u32 v111, v110, v105""")
        trig4(108, 80 + 4 * th + 2 * b, 88 + 4 * th + 2 * b, 31, 1 / 32, False)
for r in range(8): a(f"    v_xor_b32 v{96+r}, 0x80008000, v{80+r}")
main_loop(True, "cd")
for i in range(4): a(f"    ds_read_b32 v{8+i}, v7 offset:{(i>>1)*256+(i&1)*64}")
def rd_rows(st):
    a(f"    ds_read_b128 {V(16+4*st)}, v1 offset:{st*64}\n    ds_read_b128 {V(48+4*st)}, v1 offset:{1024+st*64}")
for st in range(4): rd_rows(st)
rdy_check("cd", 0)
for st in range(4, 8): rd_rows(st)
for et in range(2):
    for c in range(4):
        if et == 0 and c == 2: a("    s_waitcnt lgkmcnt(0)")
        for mat in range(2):
            i = 2 * mat + et
            cs = P2(8 + (i & ~1)); sel = "op_sel_hi:[1,0]" if (i & 1) == 0 else "op_sel:[0,1] op_sel_hi:[1,1]"
            q = [(st, p) for st in (2 * c, 2 * c + 1) for p in range(2)]
            for n, (st, p) in enumerate(q): a(f"    v_pk_mul_f32 {P2(104+2*n)}, {P2(48+4*st+2*p)}, {cs} {sel}")
            for n, (st, p) in enumerate(q): a(f"    v_pk_fma_f32 {P2(104+2*n)}, {P2(acc(i,st)+2*p)}, {P2(16+4*st+2*p)}, {P2(104+2*n)}")
            for n, (st, p) in enumerate(q): a(f"    v_cvt_pk_bf16_f32 v{acc(i,2*c)+n}, v{104+2*n}, v{105+2*n}")
def dreg(rnd, c, im): return acc(2 * im + (rnd & 1), 2 * c + 1)
def g_store(rnd, r):
    et, th = rnd >> 1, rnd & 1
    ob = 104 + 4 * (r & 1)
    return [f"    v_cvt_pk_bf16_f32 v{ob}, v{dreg(rnd,0,0)+r}, v{dreg(rnd,1,0)+r}",
            f"    v_cvt_pk_bf16_f32 v{ob+1}, v{dreg(rnd,2,0)+r}, v{dreg(rnd,3,0)+r}",
            f"    v_cvt_pk_bf16_f32 v{ob+2}, v{dreg(rnd,0,1)+r}, v{dreg(rnd,1,1)+r}",
            f"    v_cvt_pk_bf16_f32 v{ob+3}, v{dreg(rnd,2,1)+r}, v{dreg(rnd,3,1)+r}",
            f"    s_add_u32 s51, s50, {(16*th + r)*81920 + et*256}\n    buffer_store_dwordx4 {V(ob)}, v6, {S(SWS)}, s51 offen sc1"]
a("    s_nop 1")
for rnd in range(4):
    et, th = rnd >> 1, rnd & 1
    mf = []
    for c in range(4):
        mf.append(mfma(dreg(rnd, c, 0), 80 + 4 * th, acc(et, 2 * c), "0"))
        mf.append(mfma(dreg(rnd, c, 1), 88 + 4 * th, acc(et, 2 * c), "0"))
    for c in range(4):
        mf.append(mfma(dreg(rnd, c, 0), 88 + 4 * th, acc(2 + et, 2 * c)))
        mf.append(mfma(dreg(rnd, c, 1), 96 + 4 * th, acc(2 + et, 2 * c)))
    fill = sum((g_store(rnd - 1, r) for r in range(4)), []) if rnd else []
    for n, m_ in enumerate(mf):
        a(m_)
        if n >= 8 and fill:
            for o in fill[:3]: a(o)
            fill = fill[3:]
    for o in fill: a(o)
a("    s_nop 7")
for r in range(4):
    for o in g_store(3, r): a(o)

K2ON[0] = True
a.label("L_cdone")
stamp(2)
a(f"""    s_lshl_b32 s46, s{sM}, 5
    s_add_u32 s46, s46, s{sNT}
    s_lshl_b32 s46, s46, 7
    s_add_u32 s46, s46, {WS_FLAGS}
    v_mov_b32 v124, 0""")
def publish(tag):
    a(f"""    s_mov_b64 exec, 1
    ds_add_rtn_u32 v122, v120, v121
    s_waitcnt lgkmcnt(0)
    v_cmp_eq_u32 vcc, 3, v122
    s_cbranch_vccz L_{tag}
    buffer_store_dword v123, v124, {S(SWS)}, s46 offen sc1
L_{tag}:
    s_mov_b64 exec, -1""")
if opt["dfl"]: a(f"    s_cmp_eq_u32 s{sDFT}, 1\n    s_cbranch_scc1 L_late")
a("    s_waitcnt vmcnt(0)")
st9(8)
publish("nofl")
if opt["dfl"]: a("L_late:")
stamp(3)
a(f"    s_setprio {opt['cp']}")
fin_addr(8)
for r in range(ACC2, 256): a(f"    v_mov_b32 v{r}, 0")
a(f"""    v_lshlrev_b32 v1, 4, v0
    s_lshl_b32 s50, s{sW}, 3
    s_cmp_eq_u32 s{sW}, 3
    s_cselect_b32 s50, 23, s50
    s_mul_i32 s55, s50, 5120
    v_add_u32 v3, s55, v1
    s_lshl_b32 s61, s50, 17
    s_lshl_b32 s62, s{sT1}, 12
    s_add_u32 s61, s61, s62
    s_add_u32 s61, s61, {WS_H}
    s_cmp_lt_u32 s{sW}, 2
    s_cselect_b32 s62, 8, 7
    s_cmp_ge_u32 s39, s62
    s_cselect_b32 s63, 0, s39""")
if not opt["rot2"]: a("    s_mov_b32 s63, 0")
lds_spin("cs1", O_S1, 1, 8, 9)
stamp(4); st3(0)
LA = opt['la']
def c_hload(st):
    h_load(48 + 16 * st, 63, "s62", oob=(f"    s_cmp_lt_u32 s{sW}, 2\n    s_cselect_b32 s52, s52, 0x40000000" if st == 7 else None))
a("    s_mov_b32 s58, s63")
for st in range(opt["h1st"] or LA): c_hload(st)
if opt["dfl"]:
    a(f"    s_cmp_eq_u32 s{sDFT}, 1\n    s_cbranch_scc0 L_late2\n    s_waitcnt vmcnt({4*(opt['h1st'] or LA)})")
    publish("nofl2")
    a("    s_waitcnt vmcnt(0)\nL_late2:")
lds_spin("cwl", O_WL, 3, 8, 9)
def w_reads(st):
    b = 8 + 20 * (st & 1)
    a("    s_mul_i32 s52, s58, 5120\n    v_add_u32 v2, s52, v3")
    rot_next(58, "s62")
    for nb in range(5): a(f"    ds_read_b128 {V(b+4*nb)}, v2 offset:{nb*1024}")
w_reads(0)
for st in range(opt["h1st"] or LA, LA): c_hload(st)
if opt["il"]:
    for st in range(6):
        a(f"    s_waitcnt vmcnt({4 * min(LA - 1, 7 - st)}) lgkmcnt(0)")
        st3(1 + st)
        fill = capture(lambda: w_reads(st + 1))
        if st + LA < 8: fill += capture(lambda: c_hload(st + LA))
        k2_mfma(8 + 20 * (st & 1), 48 + 16 * st, fill)
else:
    for st in range(6):
        w_reads(st + 1)
        a(f"    s_waitcnt vmcnt({4 * min(LA - 1, 7 - st)}) lgkmcnt(5)")
        if PROF == 3: a("    s_waitcnt lgkmcnt(0)"); st3(1 + st)
        k2_mfma(8 + 20 * (st & 1), 48 + 16 * st)
        if st + LA < 8: c_hload(st + LA)
w_reads(7)
part_addr(56)
a(f"""    s_lshl_b32 s50, s{sW}, 2
    s_add_u32 s50, s50, {L_CNT + O_PF}
    v_mov_b32 v57, s50
    v_mov_b32 v58, 1
    s_waitcnt vmcnt(0) lgkmcnt(0)
    ds_write_b32 v57, v58
    v_add_u32 v2, s55, v56""")
tail(((8, 144), (28, 160)), 60)
st3(8)

a(f"""    s_mov_b32 s50, 3277
    s_lshl_b32 s51, s{sW}, 6
    s_add_u32 s51, s51, 1024
    v_add_u32 v64, s51, v0""")
item(64, 8, 9, 65)
a.label("L_final")
a(f"""    v_add_u32 v16, 81920, v4
    v_add_u32 v17, 81920, v5
    v_add_u32 v18, 81920, v8
    s_waitcnt lgkmcnt(0)""")
bar("R2")
stamp(6)
OST = ["", " sc1", " nt"][opt["ost"]]
def rd_item(va, vb, dst):
    for w in range(8):
        b = PBASE[w & 3] + (w >> 2) * 64 * PSTR
        r, o = (va, b) if b < 65536 else (vb, b - 81920)
        a(f"    ds_read_b64 {P2(dst+2*w)}, v{r} offset:{o}")
def sum_item(dst, t, vg):
    for w in range(0, 8, 2):
        for k in range(2):
            u = t + 4 * k if w == 0 else 20 + 4 * k
            for i in range(2): a(f"    v_lshlrev_b32 v{u+2*i}, 16, v{dst+2*(w+k)+i}\n    v_and_b32 v{u+1+2*i}, 0xffff0000, v{dst+2*(w+k)+i}")
        for k in range(4 if w else 0): a(f"    v_pk_add_f32 {P2(t+2*k)}, {P2(t+2*k)}, {P2(20+2*k)}")
    a(f"    v_pk_add_f32 {P2(t)}, {P2(t)}, {P2(t+4)}\n    v_pk_add_f32 {P2(t+2)}, {P2(t+2)}, {P2(t+6)}")
    a(f"    v_cvt_pk_bf16_f32 v{t+8}, v{t}, v{t+1}\n    v_cvt_pk_bf16_f32 v{t+9}, v{t+2}, v{t+3}")
    a(f"    buffer_store_dwordx2 {P2(t+8)}, v{vg}, {S(SOUT)}, s59 offen{OST}")
rd_item(4, 16, 64)
rd_item(5, 17, 80)
a(f"""    s_cmp_ge_u32 s{sW}, 4
    s_cbranch_scc1 L_fin2
    s_waitcnt lgkmcnt(8)""")
rd_item(8, 18, 96)
sum_item(64, 32, 6)
a("    s_waitcnt lgkmcnt(8)")
sum_item(80, 44, 7)
a("    s_waitcnt lgkmcnt(0)")
sum_item(96, 32, 9)
a("    s_branch L_fin3\nL_fin2:\n    s_waitcnt lgkmcnt(8)")
sum_item(64, 32, 6)
a("    s_waitcnt lgkmcnt(0)")
sum_item(80, 44, 7)
a("L_fin3:")
stamp(7)
a(f"""    s_cmp_lg_u32 s2, 0
    s_cbranch_scc1 L_noep
    s_cmp_lg_u32 s{sW}, 7
    s_cbranch_scc1 L_noep
    s_mov_b64 exec, -1
    v_lshlrev_b32 v8, 9, v0
    s_mov_b32 s50, {WS_EF}
    s_mov_b32 s60, 0
L_ep:
    buffer_load_dword v12, v8, {S(SWS)}, s50 offen sc1
    buffer_load_dword v13, v8, {S(SWS)}, s50 offen offset:128 sc1
    buffer_load_dword v14, v8, {S(SWS)}, s50 offen offset:256 sc1
    buffer_load_dword v15, v8, {S(SWS)}, s50 offen offset:384 sc1
    s_add_u32 s60, s60, 1
    s_waitcnt vmcnt(0)
    v_xor_b32 v12, s47, v12
    v_xor_b32 v13, s47, v13
    v_xor_b32 v14, s47, v14
    v_xor_b32 v15, s47, v15
    v_or3_b32 v12, v12, v13, v14
    v_or_b32 v12, v12, v15
    v_cmp_ne_u32 vcc, 0, v12
    s_cbranch_vccz L_epd
    s_sleep 4
    s_cmp_lt_u32 s60, 0x40000
    s_cbranch_scc1 L_ep
L_epd:
    v_mov_b32 v12, s47
    v_mov_b32 v13, 0
    s_mov_b32 s50, {WS_EPOCH}
    s_mov_b64 exec, 1
    buffer_store_dword v12, v13, {S(SWS)}, s50 offen sc1
L_noep:""")
if PROF == 88:
    mk_dbg()
    a(f"""    s_cmp_lg_u32 s2, 77
    s_cbranch_scc1 L_end
    s_memrealtime s[88:89]
    s_waitcnt lgkmcnt(0)
    s_sub_u32 s93, s88, s100
    s_lshr_b32 s50, s{sW}, 1
    s_lshl_b32 s50, s50, 4
    s_bitcmp1_b32 s{sW}, 0
    s_cbranch_scc1 L_end
    v_mov_b32 v7, 0
    s_mov_b64 exec, 1""")
    for k in range(4):
        a(f"    v_mov_b32 v6, s{90+k}\n    buffer_store_dword v6, v7, {S(SDBG)}, s50 offen offset:{4*k}")
elif PROF:
    mk_ws()
    a(f"""    s_memrealtime s[88:89]
    s_waitcnt lgkmcnt(0)
    s_mov_b32 s99, s88
    s_lshl_b32 s50, s2, 3
    s_add_u32 s50, s50, s{sW}
    s_lshl_b32 s50, s50, 6
    s_add_u32 s50, s50, {WS_PROF}
    v_mov_b32 v7, 0
    s_mov_b64 exec, 1""")
    for k in range(10):
        a(f"    v_mov_b32 v6, s{90+k}\n    buffer_store_dword v6, v7, {S(SWS)}, s50 offen offset:{4*k}")
a.label("L_end")
a("    s_endpgm")
a('.section .rodata,"a"')
a(kd(NAME, 256, 102, 256))
open(sys.argv[1], "w").write(a.text())
```

```python
import sys, math, struct
from asmlib import *

NAME = "parallel_sum__spectral_fnet__geglu_ffn__prompt_kernel"
opt = dict(prof=0, xo=2, irot=1, rot2=1, la=3, nodma=0, wrot=1, thr=4, pslp=3, touch=0, pp=0, cp=0, slp=0, nt=0, ost=1, pkd=0, sch=17, ssch=7, pp2=0, h1st=0, ex=0, fin=1, map2=0, cpf=1, tlb=0, mgm=1, dfl=0, sf=1, eb=0, es2=0, lnd=3, el=0, il=1, il2=1, rmap=0, es=0, wdnt=1, wdt=1, tch=0, sst=0)
for a_ in sys.argv[2:]:
    k, v = a_.split("="); assert k in opt, k; opt[k] = int(v)
PROF = opt["prof"]

WS_STATS, WS_FLAGS, WS_WF, WS_CSP, WS_H, WS_G = 0, 0x8000, 0x10000, 0x300000, 0x400000, 0xC00000
WS_EF, WS_F2, WS_SF, WS_EPOCH = 0x340000, 0x348000, 0x350000, 0x4800
WS_SIZE = 0x1000000
WS_PROF = 0xF80000
WFT = 54 * 5120
STG = 49152
L_SCR, L_STAT, L_CS, L_CNT = 147456, 157696, 161792, 162304
O_CNT, O_REL, O_RDY, O_LAND, O_WOK, O_TAG, O_S1, O_WL, O_PF = 0, 4, 8, 12, 16, 20, 24, 28, 32
PSTR = 176
K1C = 2.0 * math.sqrt(2.0 / math.pi) * math.log2(math.e)
K2C = K1C * 0.044715
def f2u(x): return struct.unpack("<I", struct.pack("<f", x))[0]

a = Asm()
HDR = open("parallel_sum__spectral_fnet__geglu_ffn__prompt.s.ref").read().split("; Override launch")[0]
a(HDR.rstrip())
a("; @launch grid=(256,1,1) block=(512,1,1) lds=163840")
a('.amdgcn_target "amdgcn-amd-amdhsa--gfx950"\n.text')
kernel_head(a, NAME)

SX, SWA, SWB, SWS, SWD, SOUT, SDBG = 4, 8, 12, 16, 20, 32, 36
sM, sNT, sW, sDFT, sT1, sJ2, sMI = 40, 41, 42, 43, 44, 45, 48
P_X, P_HRE, P_HIM, P_WG, P_WU, P_WD, P_OUT, P_DBG, P_WS = 64, 70, 72, 76, 78, 80, 82, 84, 86
def S(b): return f"s[{b}:{b+3}]"
def V(b, n=4): return f"v[{b}:{b+n-1}]"
def P2(r): return f"v[{r}:{r+1}]"
def mk_x(): srd(a, SX, P_X, 2621440)
def mk_ws(): srd(a, SWS, P_WS, WS_SIZE)
def mk_wd(): srd(a, SWD, P_WD, 1728 * 1280)
def mk_out(): srd(a, SOUT, P_OUT, 2621440)
def mk_dbg(): srd(a, SDBG, P_DBG, 256)
def st_txt(k): return f"    s_memtime s[88:89]\n    s_waitcnt lgkmcnt(0)\n    s_sub_u32 s{90+k}, s88, s100"
def stamp(k):
    if PROF == 1: a(st_txt(k))
    if PROF == 4 or (PROF == 6 and k == 7): a(f"    s_memrealtime s[88:89]\n    s_waitcnt lgkmcnt(0)\n    s_sub_u32 s{90+k}, s88, s100")
def st8(k):
    if PROF == 8: a(f"    s_memrealtime s[88:89]\n    s_waitcnt lgkmcnt(0)\n    s_sub_u32 s{90+k}, s88, s100")
def st9(k):
    if PROF == 9: a(st_txt(k))
def st3(k):
    if PROF == 3: a(st_txt(k))
def bar(name, k=None):
    a(f"    s_barrier            ; {name}")
    if PROF == 2 and k is not None: a(st_txt(k))
def mfma(d, x, y, c=None):
    if opt["ex"] == 21 and d >= 176 and K2ON[0]: return "    s_nop 0"
    return f"    v_mfma_f32_16x16x32_bf16 {V(d)}, {V(x)}, {V(y)}, {V(d) if c is None else c}"
ACC2 = 176
K2ON = [False]
_u = [0]
def uniq():
    _u[0] += 1
    return _u[0]
PBASE = [0, 40960, 81920, 117760]
def lds_spin(tag, off, target, va, vd):
    if isinstance(off, int): a(f"    v_mov_b32 v{va}, {L_CNT + off}")
    else: a(f"    v_mov_b32 v{va}, {off}")
    a(f"""    s_mov_b32 s60, 0
L_{tag}:
    ds_read_b32 v{vd}, v{va}
    s_add_u32 s60, s60, 1
    s_waitcnt lgkmcnt(0)
    v_cmp_gt_u32 vcc, {target}, v{vd}
    s_cbranch_vccz L_{tag}d
    s_sleep 1
    s_cmp_lt_u32 s60, 0x400000
    s_cbranch_scc1 L_{tag}
L_{tag}d:""")
def lds_add(off, va, vd):
    a(f"""    v_mov_b32 v{va}, {L_CNT + off}
    v_mov_b32 v{vd}, 1
    s_mov_b64 exec, 1
    ds_add_u32 v{va}, v{vd}
    s_mov_b64 exec, -1""")
def poll(tag, vaddr, soff, vd, cmp, slp):
    a(f"""    s_mov_b32 s60, 0
L_{tag}:
    buffer_load_dword v{vd}, v{vaddr}, {S(SWS)}, {soff} offen sc1
    s_add_u32 s60, s60, 1
    s_waitcnt vmcnt(0)
    v_cmp_ne_u32 vcc, {cmp}, v{vd}
    s_cbranch_vccz L_{tag}d
    s_sleep {slp}
    s_cmp_lt_u32 s60, 0x40000
    s_cbranch_scc1 L_{tag}
L_{tag}d:""")
def rot_next(c, n):
    a(f"    s_add_u32 s{c}, s{c}, 1\n    s_cmp_eq_u32 s{c}, {n}\n    s_cselect_b32 s{c}, 0, s{c}")
def k2_setup():
    a(f"""    v_lshlrev_b32 v1, 4, v0
    s_mul_i32 s24, s{sJ2}, {WFT}
    s_add_u32 s24, s24, {WS_WF}
    s_mul_i32 s28, s39, {3 if opt['map2'] else 4}
    s_lshr_b32 s28, s28, 2
    s_add_u32 s28, s28, s29
    s_cmp_ge_u32 s28, 6
    s_cselect_b32 s30, 6, 0
    s_sub_u32 s28, s28, s30""")
    if not opt["rot2"]: a("    s_mov_b32 s28, 0")
    a(f"""    s_mul_i32 s26, s49, 6
    s_add_u32 s26, s26, 30
    s_mul_i32 s25, s26, 5120
    s_add_u32 s25, s25, s24
    s_lshl_b32 s26, s26, 17
    s_lshl_b32 s27, s{sT1}, 12
    s_add_u32 s26, s26, s27
    s_add_u32 s26, s26, {WS_H}
    s_mov_b32 s27, s28""")
def own_slot(sl):
    a("    s_mul_i32 s30, s27, 5120\n    s_add_u32 s30, s30, s25\n    s_add_u32 s31, s30, 4096")
    for nb in range(5):
        if nb < 4: a(f"    buffer_load_dwordx4 {V(8+20*sl+4*nb)}, v1, {S(SWS)}, s30 offen offset:{nb*1024} sc1")
        else: a(f"    buffer_load_dwordx4 {V(8+20*sl+4*nb)}, v1, {S(SWS)}, s31 offen sc1")
    rot_next(27, 6)
def own_w(s0, s1, thr=0):
    for sl in range(s0, s1):
        if thr: a(f"    s_waitcnt vmcnt({thr})")
        own_slot(sl)
def x_init_load():
    mk_x()
    a(f"""    v_and_b32 v2, 15, v0
    v_lshlrev_b32 v2, 6, v2
    v_add_u32 v2, s{sT1}, v2
    v_mul_u32_u24 v2, 1280, v2
    v_lshrrev_b32 v3, 4, v0
    v_lshl_add_u32 v2, v3, 3, v2
    s_and_b32 s30, s49, 1
    s_mul_i32 s30, s30, {1024*1280}
    s_lshr_b32 s31, s49, 1
    s_mul_i32 s31, s31, {32*1280}
    s_add_u32 s30, s30, s31
    s_mul_i32 s31, s{sJ2}, 160
    s_add_u32 s30, s30, s31""")
    for nb in range(5):
        a(f"    buffer_load_dwordx2 {P2(160+2*nb)}, v2, {S(SX)}, s30 offen offset:{32*nb}")
def trig4(t, d_cos, d_sin, mask, scale, neg):
    for i in range(4): a(f"    v_and_b32 v{t+i}, {mask}, v{t+i}")
    for i in range(4): a(f"    v_cvt_f32_u32 v{t+i}, v{t+i}")
    for i in range(4): a(f"    v_mul_f32 v{t+i}, {f2u(scale):#x}, v{t+i}")
    for i in range(4): a(f"    v_cos_f32 v{t+4+i}, v{t+i}")
    for i in range(4): a(f"    v_sin_f32 v{t+i}, {'-' if neg else ''}v{t+i}")
    a(f"""    v_cvt_pk_bf16_f32 v{d_cos}, v{t+4}, v{t+5}
    v_cvt_pk_bf16_f32 v{d_cos+1}, v{t+6}, v{t+7}
    v_cvt_pk_bf16_f32 v{d_sin}, v{t}, v{t+1}
    v_cvt_pk_bf16_f32 v{d_sin+1}, v{t+2}, v{t+3}""")

def trig_rows(young):
    a(f"""    s_cmp_ge_u32 s{sJ2}, 4
    s_cselect_b32 s58, -1, 0
    s_and_b32 s57, s58, 1
    v_and_b32 v2, 15, v0
    v_lshlrev_b32 v144, 6, v2
    v_add_u32 v144, s{sT1}, v144
    v_lshrrev_b32 v3, 4, v0
    s_lshl_b32 s52, s49, 4
    v_lshl_add_u32 v145, v3, 2, s52""")
    for ts in range(4):
        a(f"""    v_add_u32 v146, {1024*(ts&1) + 32*(ts>>1)}, v144
    v_xor_b32 v146, s58, v146
    v_add_u32 v146, s57, v146
    v_and_b32 v146, 2047, v146
    v_mul_u32_u24 v148, v146, v145
    v_add_u32 v149, v148, v146
    v_add_u32 v150, v149, v146
    v_add_u32 v151, v150, v146""")
        trig4(148, 128 + 4 * ts, 130 + 4 * ts, 2047, 1 / 2048, True)
    for r in range(ACC2, 256): a(f"    v_mov_b32 v{r}, 0")
    u = uniq()
    a(f"    s_waitcnt vmcnt({young})")
    for ts in range(4):
        a(f"    s_cmp_lg_u32 s49, {ts}\n    s_cbranch_scc1 L_xi{u}_{ts}")
        for nb in range(5):
            d = ACC2 + 4 * (nb * 4 + ts); x = 160 + 2 * nb
            a(f"""    v_lshlrev_b32 v{d}, 16, v{x}
    v_and_b32 v{d+1}, 0xffff0000, v{x}
    v_lshlrev_b32 v{d+2}, 16, v{x+1}
    v_and_b32 v{d+3}, 0xffff0000, v{x+1}""")
        a(f"L_xi{u}_{ts}:")

def w_touch(j, two, va, vd, sa):
    a(f"""    v_lshrrev_b32 v{va}, 5, v0
    v_mul_u32_u24 v{va}, {1728 - 32}, v{va}
    v_add_u32 v{va}, v{va}, v0
    s_lshr_b32 s{sa}, s2, 2
    s_mul_i32 s{sa}, s{sa}, 27
    s_bfe_u32 s{sa+1}, s2, 0x10001
    s_mul_i32 s{sa+1}, s{sa+1}, {5*1728}
    s_add_u32 s{sa}, s{sa}, s{sa+1}
    s_add_u32 s{sa}, s{sa}, {j*1728}
    v_add_u32 v{va}, s{sa}, v{va}
    v_lshlrev_b32 v{va}, 7, v{va}
    s_bitcmp1_b32 s2, 0
    s_cselect_b32 s{sa}, s{P_WU}, s{P_WG}
    s_cselect_b32 s{sa+1}, s{P_WU+1}, s{P_WG+1}
    s_mov_b32 exec_lo, 0x07ffffff
    s_mov_b32 exec_hi, {'0x07ffffff' if two else '0'}
    global_load_dword v{vd}, v{va}, s[{sa}:{sa+1}]
    s_mov_b64 exec, -1""")
RMAP = f"""    s_sub_u32 s50, s36, 24
    s_lshl_b32 s50, s50, 2
    s_lshr_b32 s50, 0x72651043, s50
    s_and_b32 s50, s50, 15
    s_add_u32 s50, s50, 24
    s_cmp_ge_u32 s36, 24
    s_cselect_b32 s{sNT}, s50, s{sNT}
""" if opt["rmap"] else ""
MAP2 = f"""    s_mov_b32 s38, s{sJ2}
    s_lshl_b32 s{sT1}, s47, 3
    s_bfe_u32 s29, s2, 0x30003
    s_add_u32 s{sT1}, s{sT1}, s29
    s_lshr_b32 s39, s2, 6
    s_and_b32 s{sJ2}, s46, 1
    s_lshl_b32 s{sJ2}, s{sJ2}, 2
    s_add_u32 s{sJ2}, s{sJ2}, s39
    s_lshl_b32 s39, s39, 1""" if opt["map2"] else f"""    s_mov_b32 s38, s{sJ2}
    s_mov_b32 s39, s{sJ2}
    s_mov_b32 s29, s{sMI}
    s_lshl_b32 s{sT1}, s46, 2
    s_add_u32 s{sT1}, s{sT1}, s{sMI}"""
a(f"""    s_cmp_ge_u32 s2, 256
    s_cbranch_scc1 L_end
    s_load_dwordx16 s[64:79], s[0:1], 0
    s_load_dwordx8 s[80:87], s[0:1], 64""")
if PROF:
    a("    s_memtime s[100:101]" if PROF not in (4, 6, 8) else "    s_memrealtime s[100:101]")
    for k in range(10): a(f"    s_mov_b32 s{90+k}, 0")
if opt["cpf"] >= 2:
    NL = 1 if opt["cpf"] == 2 else 4
    a(f"""    s_getpc_b64 s[60:61]
L_pc:
    s_sub_u32 s60, s60, L_pc - {NAME}
    s_subb_u32 s61, s61, 0
    s_lshr_b32 s52, s2, 3
    s_and_b32 s52, s52, {32 // NL - 1}
    s_lshl_b32 s52, s52, {10 + (NL // 2)}
    v_and_b32 v2, 63, v0
    v_lshlrev_b32 v2, 7, v2
    v_lshrrev_b32 v1, 6, v0
    v_lshl_add_u32 v1, v1, {7 + (NL // 2)}, v2
    v_add_u32 v1, s52, v1
    v_min_u32 v1, L_end - {NAME}, v1
    s_mov_b64 exec, {(1 << NL) - 1}
    global_load_dword v127, v1, s[60:61]
    s_mov_b64 exec, -1""")
a(f"""    v_lshrrev_b32 v1, 6, v0
    v_and_b32 v0, 63, v0
    v_readfirstlane_b32 s{sW}, v1
    s_and_b32 s46, s2, 7
    s_lshr_b32 s47, s2, 3
    {'s_lshr_b32 s%d, s46, 2' % sM if opt['mgm'] else 's_and_b32 s%d, s46, 1' % sM}
    s_lshl_b32 s{sM}, s{sM}, 2
    s_and_b32 s{sMI}, s47, 3
    s_add_u32 s{sM}, s{sM}, s{sMI}
    s_lshr_b32 s{sJ2}, s47, 2
    s_lshl_b32 s{sNT}, s{sJ2}, 2
    {'s_and_b32 s47, s46, 3' if opt['mgm'] else 's_lshr_b32 s47, s46, 1'}             ; n-group g
    s_add_u32 s{sNT}, s{sNT}, s47
    s_mov_b32 s36, s{sNT}              ; slot 4 j + g
{RMAP}{MAP2}
    s_cmp_ge_u32 s{sNT}, 27
    s_cselect_b32 s{sDFT}, 1, 0
    s_cmp_lt_u32 s{sW}, 4
    s_cbranch_scc1 L_cons
    s_setprio 3
    s_sub_u32 s49, s{sW}, 4
    s_cmp_eq_u32 s{sW}, 7
    s_cbranch_scc1 L_serv
    v_lshrrev_b32 v2, 3, v0
    v_and_b32 v3, 7, v0
    v_lshrrev_b32 v5, 1, v2
    s_lshl_b32 s63, s47, 2
    s_lshr_b32 s63, {[0, 0x3210, 0x8530][opt['xo']]:#x}, s63
    s_and_b32 s63, s63, 15
    s_lshr_b32 s62, s{sM}, 2
    s_mul_i32 s62, s62, 5
    s_add_u32 s63, s63, s62
    s_cmp_ge_u32 s63, 10
    s_cselect_b32 s62, 10, 0
    s_sub_u32 s63, s63, s62
    s_cmp_eq_u32 s{sW}, 6
    s_cbranch_scc1 L_prodw
    v_mul_u32_u24 v4, 81920, v2
    v_xor_b32 v3, v3, v5
    v_lshl_add_u32 v8, v3, 4, v4
    v_xor_b32 v9, 64, v8
    s_lshl_b32 s50, s49, 5
    s_lshl_b32 s51, s{sM}, 2
    s_add_u32 s50, s50, s51
    s_mul_i32 s50, s50, 1280
    s_lshl_b32 s52, s63, 7
    s_add_u32 s50, s50, s52
    s_lshl_b32 s51, s49, 14
    s_lshl_b32 s57, s38, 1""")
if not opt["irot"]: a("    s_mov_b32 s57, 0")
a(f"""    s_lshl_b32 s53, s57, 10
    s_mov_b32 s54, 0x3fff
    s_mov_b32 s55, 0
    s_mov_b32 s56, 128
    s_mov_b32 s62, 1280
    s_waitcnt lgkmcnt(0)""")
st8(0)
srd(a, SWA, P_X, 2621440); srd(a, SWB, P_X, 2621440)
def dma(n, isw=0):
    a(f"""    s_add_u32 m0, s51, s53
    s_add_u32 s53, s53, 1024
    s_and_b32 s53, s53, s54""")
    if not opt["nodma"]: a(f"    buffer_load_dwordx4 v{128+n}, {S(SWA if n < 8 else SWB)}, s50 offen{' nt' if opt['nt'] >> isw & 1 else ''} lds")
for n in range(16):
    a(f"""    s_add_u32 s52, s57, {n}
    s_and_b32 s58, s52, 3
    s_mul_i32 s58, s58, {512*1280}
    s_bfe_u32 s52, s52, 0x20002
    s_mul_i32 s52, s52, 1280
    s_add_u32 s52, s52, s58
    v_add_u32 v{128+n}, s52, v{8 + (n & 1)}""")
    dma(n)
a(f"""    s_branch L_pfirst
L_prodw:
    s_mov_b32 s51, 32768
    s_lshl_b32 s57, s{sMI}, 1""")
if not opt["irot"]: a("    s_mov_b32 s57, 0")
a(f"""    s_lshl_b32 s53, s57, 10
    s_mov_b32 s54, 0x1fff
    s_mov_b32 s55, 8192
    s_cmp_eq_u32 s{sDFT}, 1
    s_cbranch_scc1 L_prodw_dft
    v_mul_u32_u24 v4, 3456, v2
    v_and_b32 v5, 1, v5
    v_lshlrev_b32 v5, 1, v5
    v_xor_b32 v3, v3, v5
    v_lshl_add_u32 v8, v3, 4, v4
    v_xor_b32 v9, 64, v8
    s_lshl_b32 s50, s{sNT}, 7
    s_mov_b32 s58, {8*3456}
    s_mov_b32 s56, {64*3456}
    s_waitcnt lgkmcnt(0)""")
st8(0)
srd(a, SWA, P_WG, 640 * 3456); srd(a, SWB, P_WU, 640 * 3456)
a(f"""    s_branch L_prodw_go
L_prodw_dft:
    v_mul_u32_u24 v4, 1280, v2
    v_xor_b32 v3, v3, v5
    v_lshl_add_u32 v8, v3, 4, v4
    v_xor_b32 v9, 64, v8
    s_sub_u32 s50, s{sNT}, 27
    s_lshl_b32 s50, s50, 6
    s_add_u32 s50, s50, 1
    s_mul_i32 s50, s50, 1280
    s_mov_b32 s58, {8*1280}
    s_mov_b32 s56, 128
    s_waitcnt lgkmcnt(0)""")
srd(a, SWA, P_HRE, 640 * 1280); srd(a, SWB, P_HIM, 640 * 1280)
a(f"""L_prodw_go:
    s_mul_i32 s52, s63, s56
    s_add_u32 s50, s50, s52
    s_mul_i32 s62, s56, 10""")
for n in range(8):
    a(f"""    s_add_u32 s52, s57, {n}
    s_and_b32 s52, s52, 7
    s_mul_i32 s52, s52, s58
    v_add_u32 v{128+n}, s52, v{8 + (n & 1)}
    v_add_u32 v{136+n}, s52, v{8 + (n & 1)}""")
    dma(n, 1)
a("    s_add_u32 s51, s51, s55")
for n in range(8, 16): dma(n, 1)
a.label("L_pfirst")
st8(1)
mk_ws()
k2_setup()
a(f"""    v_mov_b32 v144, {L_CNT}
    s_mov_b32 s60, 0
    s_branch L_pnext
L_ploop:""")
if opt["nt"] in (1, 2):
    a(f"    s_cmp_eq_u32 s{sW}, 6\n    s_cbranch_scc0 L_ploopx")
    for n in range(16):
        if n == 8: a("    s_add_u32 s51, s51, s55")
        dma(n, 1)
    a("    s_branch L_pnext\nL_ploopx:")
for n in range(16):
    if n == 8: a("    s_add_u32 s51, s51, s55")
    if opt["eb"] and n == opt["eb"]:
        a(f"""    s_cmp_lg_u32 s60, 1
    s_cbranch_scc1 L_peb
    s_waitcnt vmcnt({n})
    s_barrier            ; B_-1
L_peb:""")
    dma(n)
a(f"""L_pnext:
    s_sub_u32 s51, s51, s55
    s_add_u32 s50, s50, s56
    s_add_u32 s63, s63, 1
    s_cmp_eq_u32 s63, 10
    s_cselect_b32 s63, 0, s63
    s_cselect_b32 s52, s62, 0
    s_sub_u32 s50, s50, s52
    s_add_u32 s51, s51, {STG}
    s_cmp_ge_u32 s51, {3*STG}
    s_cselect_b32 s52, {3*STG}, 0
    s_sub_u32 s51, s51, s52
    s_add_u32 s60, s60, 1
    s_cmp_lt_u32 s60, {3 if opt['eb'] else 2}
    s_cbranch_scc1 L_ploop
    s_waitcnt vmcnt(16)
    s_barrier
    s_cmp_lt_u32 s60, 10
    s_cbranch_scc1 L_ploop""")
stamp(0); st8(2)
def wpart(start, cnt, thr=0):
    a(f"""    s_mul_i32 s50, s49, {cnt*1024}
    s_add_u32 s50, s50, {start*1024}
    s_and_b32 s51, s29, 3
    s_lshl_b32 s51, s51, 12""")
    if not opt["wrot"]: a("    s_mov_b32 s51, 0")
    for g in range(4):
        if thr: a(f"    s_waitcnt vmcnt({thr})")
        a(f"""    s_add_u32 m0, s50, s51
    s_add_u32 s52, m0, s24
    s_add_u32 s51, s51, 4096
    s_and_b32 s51, s51, 0x3fff""")
        for i in range(4):
            a(f"    buffer_load_dwordx4 v1, {S(SWS)}, s52 offen offset:{i*1024} sc1 lds")
    if cnt > 16:
        a(f"    s_add_u32 m0, s50, 16384\n    s_add_u32 s52, m0, s24")
        for i in range(cnt - 16):
            a(f"    buffer_load_dwordx4 v1, {S(SWS)}, s52 offen offset:{i*1024} sc1 lds")
T = opt["thr"]
if opt["lnd"]:
    a(f"""    v_mov_b32 v144, {L_CNT}
{'' if opt['el'] else '    s_sleep %d' % opt['lnd']}
    ds_read_b32 v145, v144 offset:{O_WOK}
    s_waitcnt lgkmcnt(0)
    v_cmp_eq_u32 vcc, 0, v145
    s_cbranch_vccnz L_lnd0""")
    own_slot(0); own_slot(1)
    a("    s_waitcnt vmcnt(10)")
    lds_add(O_LAND, 144, 145)
    a("    s_branch L_lnd1\nL_lnd0:")
a("    s_waitcnt vmcnt(0)")
lds_add(O_LAND, 144, 145)
lds_spin("wok", O_WOK, 1, 144, 145)
if opt["lnd"]:
    own_slot(0); own_slot(1)
    a("L_lnd1:")
SCH = ["A o0 o1 r4 B X t o2 r8 o3 dr u C o4 o5 T",
       "A o0 o1 r4 B X o2 r8 t C o3 o4 o5 T",
       "A o0 o1 r4 B X r8 t C o2 dr u o3 o4 o5 T",
       "A o0 r4 B X o1 r8 t o2 C dr u o3 o4 o5 T",
       "A o0 o1 r4 B X r8 dr C o2 o3 o4 o5 T",
       "A o0 o1 r4 B X o2 r8 C o3 o4 o5 T",
       "A X o0 o1 r4 B r8 t C o2 o3 T dr u o4 o5",
       "A o0 o1 r4 B X t o2 r8 o3 pd u C o4 o5 T",
       "A o0 o1 r4 B X r8 pd C o2 o3 o4 o5 T",
       "A X o0 r8 pd B C o1 o2 o3 o4 o5 W25 T",
       "A X o0 o1 r8 pd B C o2 o3 o4 o5 W20 T",
       "A X r4 B r8 pd C o0 o1 o2 o3 o4 o5 W30 T",
       "A X o0 r8 T pd B C o1 o2 o3 o4 o5 W25",
       "A X r8 pd B C o0 o1 o2 o3 o4 o5 W30 T",
       "A o0 o1 r4 t B X r8 pd u C o2 o3 o4 o5 T",
       "A o0 o1 X o2 r4 t B r8 pd u C o3 o4 o5 T",
       "A o0 o1 X o2 o3 r4 t B r8 C pd u o4 o5 T",
       "A o0 o1 X r4 t B r8 o2 pd u C o3 o4 o5 W15 T"][opt["sch"]]
def run_sched(sch, tag):
    thr = 0; young = None
    for tok in sch.split():
        n = 0
        if tok == "t": thr = T
        elif tok == "u": thr = 0
        elif tok == "A": wpart(48, 16, thr); n = 16
        elif tok == "B": a("    s_waitcnt vmcnt(40)"); wpart(96, 18, thr); n = 18
        elif tok == "C": a("    s_waitcnt vmcnt(40)"); wpart(0, 16, thr); n = 16
        elif tok == "X": x_init_load(); young = 0
        elif tok[0] == "o": own_w(int(tok[1]), int(tok[1]) + 1, thr); n = 5
        elif tok == "r4": lds_spin(tag + "r4", O_REL, 4, 144, 145)
        elif tok == "r8":
            lds_spin(tag + "r8", O_REL, 8, 144, 145); stamp(1); a("    s_setprio 0")
        elif tok == "dr": lds_spin(tag + "dr", O_CNT, 4, 144, 145)
        elif tok == "pd":
            a(f"    s_cmp_eq_u32 s{sDFT}, 1\n    s_cbranch_scc1 L_{tag}pdd")
            lds_spin(tag + "pd", O_CNT, 4, 144, 145)
        elif tok == "p0": a("    s_setprio 0")
        elif tok[0] == "W":
            a(f"    s_waitcnt vmcnt({tok[1:]})"); lds_add(O_WL, 144, 145)
        elif tok == "T": trig_rows(min(young, 63))
        if young is not None: young += n
if opt["lnd"]: SCH = SCH.replace("o0 ", "").replace("o1 ", "")
run_sched(SCH, "p")
a("    s_branch L_pown")

a.label("L_serv")
a(f"""    s_lshr_b32 s53, s2, 2
    s_and_b32 s54, s2, 3
    s_mul_i32 s51, s53, {32*1280}
    s_mul_i32 s52, s54, 320
    s_add_u32 s51, s51, s52
    s_cmp_ge_u32 s2, 216
    s_cselect_b32 s51, 0x40000000, s51
    s_mov_b32 s56, 3277""")
for q in range(10):
    a(f"""    v_add_u32 v6, {64*q}, v0
    v_mul_u32_u24 v7, s56, v6
    v_lshrrev_b32 v7, 16, v7
    v_mul_u32_u24 v8, 20, v7
    v_sub_u32 v6, v6, v8
    v_mul_u32_u24 v7, 1280, v7
    v_lshl_add_u32 v{88+q}, v6, 4, v7""")
a(f"""    ; column sums: k32-step (m & 1) of matrix (m >> 1) & 1 in the first five stages, on the matrix core
    v_mov_b32 v60, 0x3f803f80
    v_mov_b32 v61, v60
    v_mov_b32 v62, v60
    v_mov_b32 v63, v60
    v_lshrrev_b32 v3, 4, v0
    v_bfe_u32 v6, v0, 2, 2                ; rho
    v_and_b32 v7, 3, v0                   ; gamma
    v_lshl_add_u32 v15, v3, 2, v6
    v_mul_u32_u24 v15, 320, v15
    v_lshl_add_u32 v15, v7, 3, v15
    v_add_u32 v15, {L_SCR}, v15
    s_and_b32 s57, s{sMI}, 1
    s_lshr_b32 s58, s{sMI}, 1
    s_lshl_b32 s52, s58, 13
    s_add_u32 s52, s52, 32768
    s_cmp_eq_u32 s{sDFT}, 1
    s_cbranch_scc1 L_sa_d
    v_lshl_add_u32 v5, v3, 3, v6
    v_lshlrev_b32 v5, 7, v5
    v_lshl_add_u32 v5, v7, 3, v5
    v_lshrrev_b32 v6, 1, v6
    v_and_b32 v7, 1, v3
    v_lshl_add_u32 v6, v7, 1, v6
    v_lshl_add_u32 v5, v6, 5, v5
    s_lshl_b32 s57, s57, 12
    s_add_u32 s52, s52, s57
    v_add_u32 v16, s52, v5
    v_xor_b32 v17, 32, v16
    v_xor_b32 v18, 64, v16
    v_xor_b32 v19, 96, v16
    s_branch L_sa_e
L_sa_d:
    s_lshl_b32 s57, s57, 2
    v_add_u32 v7, s57, v3
    v_bfe_u32 v6, v0, 1, 3
    v_xor_b32 v7, v7, v6
    v_and_b32 v6, 15, v0
    v_lshlrev_b32 v5, 7, v6
    v_lshl_add_u32 v5, v7, 4, v5
    v_add_u32 v16, s52, v5
    v_add_u32 v17, 2048, v16
    v_add_u32 v18, 4096, v16
    v_add_u32 v19, 6144, v16
L_sa_e:
    v_lshlrev_b32 v1, 4, v0
    v_lshlrev_b32 v9, 2, v0
    v_add_u32 v9, {L_CNT}, v9
    v_mov_b32 v7, 0
    s_mov_b64 exec, 0xffff
    ds_write_b32 v9, v7
    s_mov_b64 exec, -1
    v_mov_b32 v10, {L_CNT}
    v_mov_b32 v11, 1""")
for r in range(144, 160): a(f"    v_mov_b32 v{r}, 0")
a("    s_waitcnt lgkmcnt(0)")
mk_ws()
a(f"""    s_mov_b32 s47, {WS_EPOCH}
    buffer_load_dword v137, v7, {S(SWS)}, s47 offen sc1""")
if opt["cpf"] == 1:
    a(f"""    s_getpc_b64 s[60:61]
L_pc:
    s_sub_u32 s60, s60, L_pc - {NAME}
    s_subb_u32 s61, s61, 0
    s_lshr_b32 s52, s2, 3
    s_lshl_b32 s52, s52, 10
    v_lshlrev_b32 v6, 7, v0
    v_add_u32 v6, s52, v6
    v_min_u32 v6, L_end - {NAME}, v6
    s_mov_b64 exec, 0xff
    global_load_dword v138, v6, s[60:61]
    s_mov_b64 exec, -1""")
if opt["tlb"]:
    mk_out()
    if opt["tlb"] == 1:
        a(f"""    v_lshlrev_b32 v6, 21, v0
    v_add_u32 v6, 0x1fff80, v6
    s_mov_b64 exec, 0xff
    buffer_load_dword v139, v6, {S(SWS)}, 0 offen sc1
    s_mov_b64 exec, 3
    v_lshlrev_b32 v6, 21, v0
    buffer_load_dword v140, v6, {S(SOUT)}, 0 offen
    s_mov_b64 exec, -1""")
    else:
        a(f"""    s_lshr_b32 s52, s2, 3
    s_lshl_b32 s52, s52, 3
    v_add_u32 v6, s52, v0
    v_lshlrev_b32 v6, 16, v6
    v_add_u32 v6, 0xff80, v6
    s_mov_b64 exec, 0xff
    buffer_load_dword v139, v6, {S(SWS)}, 0 offen sc1
    s_lshr_b32 s52, s2, 3
    s_lshl_b32 s52, s52, 1
    v_add_u32 v6, s52, v0
    v_lshlrev_b32 v6, 16, v6
    s_mov_b64 exec, 3
    buffer_load_dword v140, v6, {S(SOUT)}, 0 offen
    s_mov_b64 exec, -1""")
mk_wd()
def cs_pass(j):
    if opt["ex"] == 11: return
    a(f"    s_cmp_eq_u32 s{sDFT}, 1\n    s_cbranch_scc1 L_cs{j}_d")
    for i in range(4):
        a(f"    ds_read_b64_tr_b16 {P2(64+4*i)}, v{16+i}")
        a(f"    ds_read_b64_tr_b16 {P2(66+4*i)}, v{16+i} offset:512")
    a(f"    s_branch L_cs{j}_e\nL_cs{j}_d:")
    for i in range(4): a(f"    ds_read_b128 {V(64+4*i)}, v{16+i}")
    d = STG if j % 3 != 2 else -2 * STG
    a(f"L_cs{j}_e:\n    s_mov_b32 s52, {d}")
    for i in range(4): a(f"    v_add_u32 v{16+i}, s52, v{16+i}")
    a("    s_waitcnt lgkmcnt(0)")
    for i in range(4 if opt["ex"] != 10 else 0): a(mfma(144 + 4 * i, 64 + 4 * i, 60))
k2_setup()
a(f"""    s_lshl_b32 s8, s54, 6
    s_add_u32 s8, s8, s53
    s_lshl_b32 s8, s8, 7
    s_add_u32 s8, s8, {WS_EF}
    s_lshl_b32 s11, s{sNT}, 3
    s_add_u32 s11, s11, s{sM}
    s_lshl_b32 s11, s11, 9
    s_lshl_b32 s58, s58, 8
    s_add_u32 s11, s11, s58
    s_add_u32 s11, s11, {WS_CSP}
    v_and_b32 v173, 48, v0
    s_lshl_b32 s9, s{sM}, 5
    s_and_b32 s52, s9, {0x60 if opt['es2'] else 0xe0}
    v_add_u32 v171, s52, v0
    v_add_u32 v171, {(WS_SF - WS_F2) // 128 if opt['sf'] else 0}, v171
    v_and_b32 v170, 7, v0
    v_lshlrev_b32 v170, 5, v170
    v_add_u32 v170, s{sNT}, v170
    v_cmp_gt_u32 vcc, 32, v0
    s_add_u32 s9, s9, s{sNT}
    s_lshl_b32 s9, s9, 7
    v_cndmask_b32 v171, v170, v171, vcc
    v_lshlrev_b32 v171, 7, v171
    v_min_u32 v170, 53, v0
    v_lshlrev_b32 v170, 7, v170
    s_add_u32 s13, s9, {WS_SF}
    s_add_u32 s9, s9, {WS_F2}
    s_lshr_b32 s10, s{sJ2}, 1
    s_lshl_b32 s10, s10, 13
    s_add_u32 s10, s10, {WS_EF}
    s_mul_i32 s12, s54, {2*WFT}
    s_mul_i32 s52, s53, 5120
    s_add_u32 s12, s12, s52
    s_add_u32 s12, s12, {WS_WF}
    s_cmp_ge_u32 s2, 216
    s_cselect_b32 s12, 0x40000000, s12
    v_mov_b32 v174, {L_CNT}
    v_mov_b32 v175, 1""")
def wd_dma(q0=0, q1=10):
    for q in range(q0, q1):
        a(f"    s_mov_b32 m0, {L_SCR + q*1024}\n    s_nop 0\n    buffer_load_dwordx4 v{88+q}, {S(SWD)}, s51 offen{' nt' if opt['wdnt'] else ''} lds")
def tag_up():
    a(f"""    s_waitcnt vmcnt(0)
    v_add_u32 v172, 1, v137
    ds_write_b32 v174, v172 offset:{O_TAG}
    v_readfirstlane_b32 s47, v172""")
def wf_read():
    a("    s_waitcnt vmcnt(0)")
    for jj in range(2):
        for nb in range(5):
            r = 88 + 4 * (5 * jj + nb); o = jj * 160 + nb * 32
            a(f"    ds_read_b64_tr_b16 v[{r}:{r+1}], v15 offset:{o}")
            a(f"    ds_read_b64_tr_b16 v[{r+2}:{r+3}], v15 offset:{o+5120}")
    a("    s_waitcnt lgkmcnt(0)")
def wf_store(i0, i1):
    for i in range(i0, i1):
        jj, nb = divmod(i, 5)
        a(f"    s_add_u32 s52, s12, {jj*WFT + (nb & 4)*1024}\n    buffer_store_dwordx4 {V(88+4*i)}, v1, {S(SWS)}, s52 offen offset:{(nb & 3)*1024} sc1")
def flag(sr):
    a(f"""    s_waitcnt vmcnt(0)
    s_mov_b64 exec, 1
    buffer_store_dword v172, v7, {S(SWS)}, s{sr} offen sc1
    s_mov_b64 exec, -1""")
def cs_store():
    a("    s_nop 7\n    s_mov_b32 exec_lo, 0x00010001\n    s_mov_b32 exec_hi, 0x00010001")
    for i in range(4): a(f"    buffer_store_dwordx4 {V(144+4*i)}, v173, {S(SWS)}, s11 offen offset:{i*64} sc1")
    a("    s_mov_b64 exec, -1")
PLAN = ["cD|c|cRa|cb|cES|F|", "Tc|XcD|c|cRab|cES|F|", "Tc|c|cD|c|cSRa|bF|E", "Tc|c|c|cD|cS|FRab|E", "cd|ce|c|cRa|cSb|EF|",
        "Tc|cD|c|cRa|cSb|EF|", "Tc|c|cd|ce|cS|FRab|E"][opt["wdt"]].split("|")
did_tag = False
for j, tasks in enumerate(PLAN):
    bar(f"B_{j-1}", j)
    for t in tasks:
        if t == "c": cs_pass(j)
        elif t == "T": tag_up(); did_tag = True
        elif t == "D": wd_dma()
        elif t == "d": wd_dma(0, 5)
        elif t == "e": wd_dma(5, 10)
        elif t == "R":
            if not did_tag: tag_up(); did_tag = True
            wf_read()
        elif t == "a": wf_store(0, 5)
        elif t == "b": wf_store(5, 10)
        elif t == "E": flag(8)
        elif t == "F": flag(9)
        elif t == "X" and opt["sf"]: flag(13)
        elif t == "S": cs_store()
a("    s_mov_b32 s51, s10")
bar("B_6", 7)
a(f"""    s_mov_b32 s50, {WS_F2}
    buffer_load_dword v5, v170, {S(SWS)}, s51 offen sc1
    buffer_load_dword v6, v171, {S(SWS)}, s50 offen sc1""")
bar("B_7", 8)
stamp(0)
a(f"""    s_waitcnt vmcnt(0)
    v_cmp_ne_u32 s[58:59], s47, v5
    v_cmp_ne_u32 vcc, s47, v6
    s_cbranch_vccz L_p3d
    s_cmp_lg_u64 s[58:59], 0
    s_cbranch_scc1 L_p3w
    ds_write_b32 v174, v175 offset:{O_WOK}
L_p3w:""")
poll("p3", 171, "s50", 6, "s47", 3)
a(f"""    v_lshlrev_b32 v6, 3, v0
    v_lshrrev_b32 v5, 5, v0
    v_lshl_add_u32 v5, v5, 10, v6
    s_lshl_b32 s50, s{sM}, 11
    s_lshl_b32 s52, s{sNT}, 12
    s_add_u32 s52, s52, {WS_CSP}""")
for n in range(4):
    a(f"    buffer_load_dwordx2 v[{128+4*n}:{129+4*n}], v6, {S(SWS)}, s50 offen offset:{n*512} sc1")
for n in range(4):
    a(f"    buffer_load_dwordx2 {P2(144+2*n)}, v5, {S(SWS)}, s52 offen offset:{(n>>1)*2048+(n&1)*512} sc1")
a(f"""    s_cmp_eq_u64 s[58:59], 0
    s_cbranch_scc1 L_p1d""")
poll("p1", 170, "s51", 5, "s47", 3)
a(f"    ds_write_b32 v174, v175 offset:{O_WOK}")
a(f"    s_waitcnt vmcnt(0)")
for n in range(4): a(f"    v_rsq_f32 v{152+n}, v{129+4*n}")
for n in range(1, 4): a(f"    v_add_f32 v144, v144, v{144+2*n}\n    v_add_f32 v145, v145, v{145+2*n}")
a(f"""    v_add_u32 v6, {L_CS}, v6
    ds_write_b64 v6, v[144:145]
    s_cmp_eq_u32 s{sDFT}, 1
    s_cbranch_scc1 L_serv_cdft
    v_add_u32 v6, {L_STAT}, v1""")
for n in range(4):
    b = 128 + 4 * n
    a(f"""    v_mov_b32 v{b+3}, v{b+1}
    v_mul_f32 v156, v{152+n}, v{152+n}
    v_xor_b32 v{b}, 0x80000000, v{b}
    v_mul_f32 v{b+1}, {f2u(-K1C):#x}, v{152+n}
    v_mul_f32 v156, v156, v{152+n}
    v_mul_f32 v{b+2}, {f2u(-K2C):#x}, v156
    ds_write_b128 v6, {V(b)} offset:{n*1024}""")
a(f"""    s_branch L_serv_cd
L_serv_cdft:
    v_lshlrev_b32 v6, 2, v0
    v_add_u32 v6, {L_STAT}, v6""")
for n in range(4):
    b = 128 + 4 * n
    a(f"""    v_mul_f32 v{b}, v{b}, v{152+n}
    v_xor_b32 v{b}, 0x80000000, v{b}
    ds_write_b32 v6, v{152+n} offset:{n*256}
    ds_write_b32 v6, v{b} offset:{1024+n*256}""")
a(f"""L_serv_cd:
    ds_write_b32 v174, v175 offset:{O_RDY}""")
stamp(1)
a("    s_waitcnt lgkmcnt(0)")
SSCH = ["X o0 o1 o2 o3 p0 t o4 o5 pd T", "X o0 o1 o2 o3 p0 T t o4 o5 pd", "X o0 o1 o2 o3 o4 o5 T p0 pd", "X o0 o1 T p0 t o2 o3 o4 o5 pd", "X o0 p0 T pd", "X o0 o1 p0 T pd", "X p0 T pd", "X o0 o1 p0 T t o2 o3 pd"][opt["ssch"]]
SREST = [sl for sl in range(6) if f"o{sl}" not in SSCH]
run_sched(SSCH, "s")

def item(vit, va, vg, t0):
    t1, t2 = t0 + 1, t0 + 2
    a(f"""    v_mul_u32_u24 v{t0}, s50, v{vit}
    v_lshrrev_b32 v{t0}, 16, v{t0}
    v_mul_u32_u24 v{t1}, 20, v{t0}
    v_sub_u32 v{t1}, v{vit}, v{t1}
    v_and_b32 v{vg}, 31, v{t0}
    v_lshlrev_b32 v{vg}, 6, v{vg}
    v_and_b32 v{t2}, 32, v{t0}
    v_add3_u32 v{vg}, v{vg}, v{t2}, s{sT1}
    v_mul_u32_u24 v{vg}, 1280, v{vg}
    v_lshl_add_u32 v{vg}, v{t1}, 3, v{vg}
    v_mul_u32_u24 v{va}, {PSTR}, v{t0}
    v_lshl_add_u32 v{va}, v{t1}, 3, v{va}""")
def fin_addr(tb):
    a(f"""    s_mov_b32 s50, 3277
    s_lshl_b32 s51, s{sW}, 7
    v_add_u32 v{tb}, s51, v0""")
    item(tb, 4, 6, tb + 1)
    a(f"    v_add_u32 v{tb}, 64, v{tb}")
    item(tb, 5, 7, tb + 1)
    a(f"    s_mul_i32 s59, s{sJ2}, 160")
    mk_out()
def x_loads(r):
    a(f"""    buffer_load_dwordx4 {V(r)}, v6, {S(SX)}, s59 offen
    s_mov_b64 exec, 0xffff
    buffer_load_dwordx4 {V(r+4)}, v7, {S(SX)}, s59 offen
    s_mov_b64 exec, -1""")
def part_addr(t0):
    a(f"""    v_and_b32 v{t0}, 15, v0
    v_lshrrev_b32 v{t0+1}, 4, v0
    v_mul_u32_u24 v{t0}, {PSTR}, v{t0}
    v_lshl_add_u32 v{t0}, v{t0+1}, 3, v{t0}""")
def capture(fn):
    n0 = len(a.lines); fn(); out = a.lines[n0:]; del a.lines[n0:]; return out
def k2_mfma(wbase, hbase, fill=(), start=0):
    fill = list(fill); k = 0
    for nb in range(5):
        for ts in range(4):
            a(mfma(ACC2 + 4 * (nb * 4 + ts), wbase + 4 * nb, hbase + 4 * ts))
            if k >= start and fill: a(fill.pop(0))
            k += 1
    for l in fill: a(l)
def h_load(hbase, cnt, n, oob=None, base=61):
    a(f"    s_lshl_b32 s52, s{cnt}, 17\n    s_add_u32 s52, s52, s{base}")
    if oob: a(oob)
    if opt["ex"] == 20: a("    s_mov_b32 s52, 0x40000000")
    for ts in range(4):
        a(f"    buffer_load_dwordx4 {V(hbase+4*ts)}, v1, {S(SWS)}, s52 offen offset:{ts*1024} sc1")
    rot_next(cnt, n)
def put(nb, ts, t, pr=None):
    d = ACC2 + 4 * (nb * 4 + ts)
    if pr is not None:
        a(f"""    v_lshlrev_b32 v{t}, 16, v{pr}
    v_and_b32 v{t+1}, 0xffff0000, v{pr}
    v_lshlrev_b32 v{t+2}, 16, v{pr+1}
    v_and_b32 v{t+3}, 0xffff0000, v{pr+1}""")
        for i in range(4): a(f"    v_add_f32 v{d+i}, v{d+i}, v{t+i}")
    a(f"""    v_cvt_pk_bf16_f32 v{d}, v{d}, v{d+1}
    v_cvt_pk_bf16_f32 v{d+1}, v{d+2}, v{d+3}
    ds_write_b64 v2, {P2(d)} offset:{ts*16*PSTR+nb*32}""")
def tail(steps, t, PR=None):
    for nb in range(5):
        i = 0
        if nb == 1 and PR: a("    s_waitcnt lgkmcnt(0)")
        for wb, hb in steps:
            for ts in range(4):
                a(mfma(ACC2 + 4 * (nb * 4 + ts), wb + 4 * nb, hb + 4 * ts))
                i += 1
                if nb and i >= 5: put(nb - 1, i - 5, t, PR(nb - 1, i - 5) if PR else None)
    stamp(5); st3(7)
    a("    s_nop 7")
    for ts in range(4): put(4, ts, t, PR(4, ts) if PR else None)

K2ON[0] = True
a.label("L_pown")
a(f"    v_mov_b32 v160, {L_CNT}\n    ds_read_b32 v161, v160 offset:{O_TAG}")
fin_addr(144)
a(f"""    s_mul_i32 s52, s{sJ2}, 80
    v_add_u32 v2, s52, v2             ; e (nb = 0)
    v_mul_u32_u24 v3, 5120, v3
    s_xor_b32 s56, s{sT1}, s58
    s_add_u32 s56, s56, s57
    s_and_b32 s56, s56, 31
    s_mul_i32 s56, s56, 81920
    s_mul_i32 s52, s49, {4*5120}
    s_add_u32 s56, s56, s52
    s_add_u32 s56, s56, {WS_G}
    s_cmp_ge_u32 s{sJ2}, 4
    s_cselect_b32 s57, 640, -1
    s_waitcnt lgkmcnt(0)
    v_readfirstlane_b32 s47, v161
    s_cmp_eq_u32 s{sW}, 7
    s_cbranch_scc1 L_sv2""")
if "W" not in SCH:
    a("    s_waitcnt vmcnt(0)")
    lds_add(O_WL, 144, 145)
stamp(4)
lds_spin("s1", O_S1, 1, 144, 145)
a(f"""    s_branch L_k2p
L_sv2:
"""[:-1])
a(f"""    s_lshr_b32 s50, s{sT1}, 2
    s_lshl_b32 s50, s50, 5
    v_min_u32 v144, 26, v0
    v_add_u32 v144, s50, v144
    v_lshlrev_b32 v144, 7, v144
    s_mov_b32 s50, {WS_FLAGS}""")
stamp(2)
if opt["slp"]: a(f"    s_sleep {opt['slp']}")
poll("p2", 144, "s50", 145, "s47", opt["pslp"])
stamp(4)
a(f"""    v_mov_b32 v145, 1
    ds_write_b32 v160, v145 offset:{O_S1}""")
for sl in SREST: own_slot(sl)
a("L_k2p:")
stamp(3); st3(0)
hl = [144, 160, 8, 144, 28, 160] if opt["il2"] else [144, 160, 144, 8, 160, 28]
a(f"    s_setprio {opt['pp']}")
def ph(i): h_load(hl[i], 28, 6, base=26)
def block_with_loads(wb, hb, i0, pre=()):
    if not opt["il2"]:
        k2_mfma(wb, hb)
        for l in pre: a(l)
        ph(i0); ph(i0 + 1)
        return
    A, B = capture(lambda: ph(i0)), capture(lambda: ph(i0 + 1))
    B = [l.replace("s52", "s53") for l in B]
    if opt["ex"] == 20: A = [A[0], A[2]] + A[3:]; B = [B[0], B[2]] + B[3:]
    slots = {0: A[0:1], 1: A[1:2], 2: list(pre), 4: A[2:3], 5: A[6:7], 6: A[7:8], 7: A[8:9], 8: A[3:4], 9: B[0:1], 10: B[1:2], 12: A[4:5],
             13: B[6:7], 14: B[7:8], 15: B[8:9], 16: A[5:6] + B[2:3], 17: B[3:4], 18: B[4:5], 19: B[5:6]}
    k = 0
    for nb in range(5):
        for ts in range(4):
            a(mfma(ACC2 + 4 * (nb * 4 + ts), wb + 4 * nb, hb + 4 * ts))
            for l in slots.get(k, []): a(l)
            k += 1
ph(0); ph(1)
a(f"""    s_sub_u32 s50, 7, s{sJ2}
    s_min_u32 s50, s50, s{sJ2}
    s_add_u32 s51, s50, 27
    s_mov_b32 s50, {WS_FLAGS}
    s_waitcnt vmcnt(4)""")
st3(1)
block_with_loads(8, hl[0], 2)
a(f"""    v_and_b32 v24, 7, v0
    v_lshlrev_b32 v24, 5, v24
    v_bfe_u32 v25, v0, 3, 1
    v_add3_u32 v24, v24, v25, s51
    v_lshlrev_b32 v24, 7, v24
    s_waitcnt vmcnt(8)""")
st3(2)
block_with_loads(28, hl[1], 4, [f"    buffer_load_dword v25, v24, {S(SWS)}, s50 offen sc1"])
a(f"    s_setprio {opt['pp2']}\n    s_waitcnt vmcnt(13)")
st3(3)
k2_mfma(48, hl[2])
a(f"""    s_waitcnt vmcnt(8)
    v_cmp_ne_u32 vcc, s47, v25
    s_cbranch_vccz L_pgd""")
GT = hl[2]
poll("pg", 24, "s50", 25, "s47", 2)
for nb in range(5):
    a(f"""    v_add_u32 v{GT}, {16*nb}, v2
    v_xor_b32 v{GT+1}, s58, v{GT}
    v_add_u32 v{GT+1}, s57, v{GT+1}
    v_lshl_add_u32 v{GT+1}, v{GT+1}, 4, v3""")
    if nb == 0:
        a(f"""    v_cmp_eq_u32 vcc, 0, v{GT}
    v_mov_b32 v{GT+2}, 0x40000000
    s_nop 0
    v_cndmask_b32 v{GT+1}, v{GT+1}, v{GT+2}, vcc""")
    a(f"    buffer_load_dwordx4 {V(48+4*nb)}, v{GT+1}, {S(SWS)}, s56 offen sc1")
st3(4)
k2_mfma(68, hl[3])
a("    s_waitcnt vmcnt(9)")
st3(5)
k2_mfma(88, hl[4])
part_addr(16)
a(f"""    s_mul_i32 s50, s49, 40960
    s_cmp_eq_u32 s49, 3
    s_cselect_b32 s50, {PBASE[3]}, s50
    s_add_u32 s50, s50, {64*PSTR}
    v_add_u32 v2, s50, v16
    s_lshl_b32 s50, s49, 2
    s_add_u32 s50, s50, {L_CNT + O_PF}""")
lds_spin("pf", "s50", 1, 16, 17)
a("    s_waitcnt vmcnt(0)")
st3(6)
tail(((108, hl[5]), (48, 128)), 16)
a("    s_branch L_final")

K2ON[0] = False
a.label("L_cons")
sNH, sSH = 47, 49
ESEL2 = f"""    s_cmp_ge_u32 s{sM}, 4
    s_cbranch_scc1 L_ch3
    s_mov_b32 s53, s36
    s_mov_b32 s52, s{sNH}
    s_lshl_b32 s54, s{sSH}, 2
    s_add_u32 s54, s54, s{sM}"""
ESEL = f"""    s_bitcmp1_b32 s36, 1
    s_cbranch_scc1 L_ch3
    s_and_b32 s52, s36, 1
    s_add_u32 s53, s36, s52
    s_add_u32 s53, s53, s{sSH}           ; s1 = 4 j + 2 g + (w >> 1)
    s_mov_b32 s52, s{sNH}""" if opt["es"] else f"""    s_add_u32 s52, s{sW}, 1
    s_and_b32 s52, s52, 2
    s_cmp_eq_u32 s52, 0
    s_cbranch_scc1 L_ch3
    s_sub_u32 s52, s{sW}, 1
    s_mov_b32 s53, s36"""
a(f"""    s_and_b32 s{sNH}, s{sW}, 1
    s_lshr_b32 s{sSH}, s{sW}, 1
    v_and_b32 v2, 15, v0
    v_lshrrev_b32 v3, 4, v0
    v_bfe_u32 v6, v0, 1, 3
    s_lshl_b32 s50, s{sSH}, 14
    v_lshlrev_b32 v1, 7, v2
    v_add_u32 v1, s50, v1
    v_xor_b32 v7, v3, v6
    v_lshl_add_u32 v8, v7, 4, v1
    v_xor_b32 v9, 64, v8
{ESEL2 if opt['es2'] else ESEL}
{'' if opt['es2'] else '    s_mov_b32 s54, s%d' % sM}
    v_mul_u32_u24 v6, 1280, v3
    v_lshl_add_u32 v6, v2, 4, v6
    s_lshl_b32 s50, s53, 6
    s_lshl_b32 s51, s52, 5
    s_add_u32 s50, s50, s51
    s_lshl_b32 s51, s54, 2
    s_add_u32 s50, s50, s51
    s_mul_i32 s50, s50, 1280
    s_waitcnt lgkmcnt(0)""")
mk_x()
for j in range(5): a(f"    buffer_load_dwordx4 {V(16+4*j)}, v6, {S(SX)}, s50 offen offset:{j*256}")
mk_ws()
for r in range(128, 256): a(f"    v_mov_b32 v{r}, 0")
for r in range(40, 48): a(f"    v_mov_b32 v{r}, 0")
a(f"""    s_lshl_b32 s50, s54, 11
    s_lshl_b32 s51, s52, 10
    s_add_u32 s50, s50, s51
    s_lshl_b32 s51, s53, 3
    s_add_u32 s50, s50, s51
    v_lshlrev_b32 v4, 8, v3
    s_waitcnt vmcnt(0)
    v_lshlrev_b32 v36, 16, v16
    s_nop 1
    v_mov_b32_dpp v36, v36 row_newbcast:0 row_mask:0xf bank_mask:0xf""")
for g in range(0, 20, 4):
    for i in range(g, g + 4): a(f"    v_lshlrev_b32 v{48+2*(i&3)}, 16, v{16+i}\n    v_and_b32 v{49+2*(i&3)}, 0xffff0000, v{16+i}")
    for i in range(g, g + 4): a(f"    v_pk_add_f32 {P2(48+2*(i&3))}, {P2(48+2*(i&3))}, v[36:37] op_sel_hi:[1,0] neg_lo:[0,1] neg_hi:[0,1]")
    for i in range(g, g + 4): a(f"    v_pk_add_f32 {P2(40+2*(i&1))}, {P2(40+2*(i&1))}, {P2(48+2*(i&3))}")
    for i in range(g, g + 4): a(f"    v_pk_fma_f32 {P2(44+2*(i&1))}, {P2(48+2*(i&3))}, {P2(48+2*(i&3))}, {P2(44+2*(i&1))}")
a("""    v_pk_add_f32 v[40:41], v[40:41], v[42:43]
    v_pk_add_f32 v[44:45], v[44:45], v[46:47]
    v_add_f32 v40, v40, v41
    v_add_f32 v44, v44, v45""")
for mode in ("quad_perm:[1,0,3,2]", "quad_perm:[2,3,0,1]", "row_half_mirror", "row_mirror"):
    a("    s_nop 1")
    for r in (40, 44): a(f"    v_add_f32_dpp v{r}, v{r}, v{r} {mode} row_mask:0xf bank_mask:0xf")
a(f"""    v_mul_f32 v40, {f2u(1/640):#x}, v40
    v_mov_b32 v39, {f2u(1e-5):#x}
    v_fmac_f32 v39, {f2u(1/640):#x}, v44
    v_add_f32 v38, v40, v36
    v_fma_f32 v39, -v40, v40, v39
    v_max_f32 v39, {f2u(1e-5):#x}, v39
    s_mov_b32 exec_lo, 0x00010001
    s_mov_b32 exec_hi, 0x00010001
    buffer_store_dwordx2 v[38:39], v4, {S(SWS)}, s50 offen sc1
    s_mov_b64 exec, -1
    s_branch L_chd
L_ch3:
    s_waitcnt lgkmcnt(0)""")
if opt["tch"] & 1:
    a(f"    s_cmp_lg_u32 s{sW}, 0\n    s_cbranch_scc1 L_nt")
    w_touch(1, opt["tch"] & 2, 6, 127, 50)
    a("L_nt:")
mk_ws()
for r in range(128, 256): a(f"    v_mov_b32 v{r}, 0")
a(f"""L_chd:
    s_mov_b32 s60, 10
    s_mov_b32 s61, 0
    v_mov_b32 v120, {L_CNT}
    v_mov_b32 v121, 1
    s_cmp_eq_u32 s{sDFT}, 1
    s_cbranch_scc1 L_cdft""")

XF = 16
WF = [48, 64]
def acc(i, st): return 128 + 16 * st + 4 * i
def xr(st, kk): return f"    ds_read_b128 {V(XF+4*st)}, v{8+kk} offset:{st*2048}"
def wr(dft, kk):
    b = WF[kk]
    if dft: return [[f"    ds_read_b128 {V(b+4*i)}, v{12+kk} offset:{(i>>1)*8192+(i&1)*2048}"] for i in range(4)]
    return [[f"    ds_read_b64_tr_b16 {P2(b+4*i)}, v{12+(i&1)} offset:{kk*4096+(i>>1)*8192}",
             f"    ds_read_b64_tr_b16 {P2(b+4*i+2)}, v{12+(i&1)} offset:{kk*4096+(i>>1)*8192+512}"] for i in range(4)]
def main_loop(dft, tag):
    nw = 1 if dft else 2
    stamp(8); st8(0)
    bar("B_-1")
    stamp(0); st8(1)
    W = wr(dft, 0)
    a(xr(0, 0)); a(xr(1, 0))
    for st in range(2, 8):
        a(xr(st, 0))
        if st < 6:
            for r in W[st - 2]: a(r)
    a(".p2align 3")
    a.label(f"L_{tag}_loop")
    for kk in range(2):
        W = wr(dft, 1 - kk)
        for st in range(8):
            if st == 0: a(f"    s_waitcnt lgkmcnt({2 if kk == 0 else 5})")
            if st == 4 and kk == 0: a(f"    s_waitcnt lgkmcnt({4 + 4*nw})")
            if kk == 1 and st == 2:
                a(f"""    s_cmp_le_u32 s60, 2
    s_cbranch_scc1 L_{tag}_rel
    s_waitcnt vmcnt(0) lgkmcnt(0)
    s_barrier
L_{tag}_reld:""")
                a(xr(0, 0)); a(xr(1, 0))
            ex = []
            if kk == 0: ex = [xr(st, 1)] + (W[st] if st < 4 else [])
            elif st >= 2: ex = [xr(st, 0)] + (W[st - 2] if st < 6 else [])
            for i in range(4):
                w, x = WF[kk] + 4 * i, XF + 4 * st
                i2, st2 = i, st
                if opt["ex"] == 6: i2, st2 = st & 3, (st & 4) + i
                if opt["ex"] == 7: i2, st2 = (i if st % 2 == 0 else 3 - i), st
                if opt["ex"] == 8: i2, st2 = (st >> 1), 4 * (st & 1) + i
                w, x = WF[kk] + 4 * i2, XF + 4 * st2
                if opt["ex"] == 9: a(mfma(acc(i2, st2), x, w))
                else: a(mfma(acc(i2, st2), x, w) if dft else mfma(acc(i2, st2), w, x))
                if i == 3: a(ex[0]) if ex else None
                elif i < len(ex) - 1: a(ex[1 + i])
            if kk == 0 and st == 7: a(f"    ds_read_b32 v122, v120 offset:{O_LAND}")
            if kk == 1 and st == 0:
                a(f"""    s_add_u32 s61, s61, 1
    s_cmp_eq_u32 s61, 3
    s_cselect_b32 s62, {-3*STG}, 0
    s_cselect_b32 s61, 0, s61
    s_add_u32 s62, s62, {STG}""")
            if kk == 1 and st == 1:
                for r in (8, 9, 12, 13): a(f"    v_add_u32 v{r}, s62, v{r}")
    a(f"""    s_sub_u32 s60, s60, 1
    s_cmp_lg_u32 s60, {1 if opt['fin'] and not dft else 0}
    s_cbranch_scc1 L_{tag}_loop
    s_branch L_{tag}_epi
L_{tag}_rel:
    s_mov_b32 s62, 0
    s_waitcnt lgkmcnt(0)
    s_mov_b64 exec, 1
    ds_add_u32 v120, v121 offset:{O_REL}
    s_mov_b64 exec, -1
L_{tag}_land:
    v_cmp_gt_u32 vcc, 3, v122
    s_cbranch_vccz L_{tag}_reld
    ds_read_b32 v122, v120 offset:{O_LAND}
    s_add_u32 s62, s62, 1
    s_waitcnt lgkmcnt(0)
    s_cmp_lt_u32 s62, 0x400000
    s_cbranch_scc1 L_{tag}_land
    s_branch L_{tag}_reld
L_{tag}_epi:""")
    stamp(1); st8(2); st9(0)
    if opt["fin"] and not dft:
        for r in wr(False, 1):
            for q in r: a(q)
        a(f"    ds_read_b128 {V(80)}, v9 offset:0")
        a("    s_waitcnt lgkmcnt(11)")
        for i in range(4): a(mfma(acc(i, 0), WF[0] + 4 * i, XF))
    a("    s_setprio 3\n    s_mov_b32 s60, 0")
    a.label(f"L_{tag}_rdy")
    a(f"    ds_read_b32 v122, v120 offset:{O_RDY}\n    ds_read_b32 v123, v120 offset:{O_TAG}")
def rdy_check(tag, n):
    a(f"""    s_waitcnt lgkmcnt({n})
    v_cmp_eq_u32 vcc, 0, v122
    s_add_u32 s60, s60, 1
    s_cbranch_vccz L_{tag}_go
    s_cmp_lt_u32 s60, 0x400000
    s_cbranch_scc1 L_{tag}_rdy
L_{tag}_go:""")

a(f"""    v_bfe_u32 v6, v0, 2, 2            ; rho
    v_lshl_add_u32 v7, v3, 3, v6
    v_lshlrev_b32 v12, 7, v7
    v_and_b32 v7, 3, v0
    v_lshl_add_u32 v12, v7, 3, v12
    v_lshrrev_b32 v6, 1, v6
    v_and_b32 v7, 1, v3
    v_lshl_add_u32 v6, v7, 1, v6
    s_lshl_b32 s50, s{sNH}, 1
    v_xor_b32 v6, s50, v6
    v_lshl_add_u32 v12, v6, 5, v12
    v_add_u32 v12, 32768, v12
    v_xor_b32 v13, 32, v12
    s_lshl_b32 s50, s{sNH}, 7
    s_add_u32 s50, s50, {L_CS}
    v_lshl_add_u32 v4, v3, 4, s50
    s_lshl_b32 s51, s{sSH}, 11
    s_add_u32 s51, s51, {L_STAT}
    v_lshl_add_u32 v5, v2, 4, s51
    v_lshlrev_b32 v6, 4, v0
    s_lshl_b32 s50, s{sNT}, 1
    s_add_u32 s50, s50, s{sNH}
    s_lshl_b32 s50, s50, 17
    s_lshl_b32 s51, s{sM}, 14
    s_add_u32 s50, s50, s51
    s_lshl_b32 s51, s{sSH}, 11
    s_add_u32 s50, s50, s51
    s_add_u32 s50, s50, {WS_H}""")
main_loop(False, "cf")
if opt["fin"]:
    CG, RC, Z = 96, 112, 88
    for i in range(4): a(f"    ds_read_b128 {V(CG+4*i)}, v4 offset:{(i>>1)*256+(i&1)*64}")
    a(f"    ds_read_b128 {V(RC)}, v5")
    rdy_check("cf", 0)
    st9(1)
    def mf(st, kk): return [mfma(acc(i, st), WF[kk] + 4 * i, (XF + 4 * st) if kk == 0 else 80 + 4 * (st & 1)) for i in range(4)]
    a(f"    ds_read_b128 {V(84)}, v9 offset:2048")
    for m_ in mf(0, 1): a(m_)
    for st in range(8):
        c0, c1 = P2(RC + 4 * (st & 1)), P2(RC + 2 + 4 * (st & 1))
        A = lambda i: P2(acc(0, st) + 2 * i)
        U = lambda i: P2(acc(2, st) + 2 * i)
        ZZ = lambda i: P2(Z + 2 * i)
        nx = st + 1
        a("    s_waitcnt lgkmcnt(0)")
        if nx < 8: a(f"    ds_read_b128 {V(RC+4*(nx&1))}, v5 offset:{nx*256}")
        if nx < 7: a(f"    ds_read_b128 {V(80+4*(st&1))}, v9 offset:{(nx+1)*2048}")
        if nx == 7:
            a(f"    s_mov_b64 exec, 1\n    ds_add_u32 v120, v121 offset:{O_REL}\n    s_mov_b64 exec, -1")
        if st == 0: a("    s_nop 4")
        for i in range(4): a(f"    v_pk_fma_f32 {A(i)}, {P2(CG+2*i)}, {c0}, {A(i)} op_sel_hi:[1,0,1]")
        for i in range(4): a(f"    v_pk_mul_f32 {ZZ(i)}, {A(i)}, {A(i)}")
        for i in range(4): a(f"    v_pk_fma_f32 {ZZ(i)}, {ZZ(i)}, {c1}, {c0} op_sel:[0,0,1] op_sel_hi:[1,0,1]")
        for i in range(4): a(f"    v_pk_mul_f32 {ZZ(i)}, {ZZ(i)}, {A(i)}")
        for i in range(4): a(f"    v_pk_fma_f32 {U(i)}, {P2(CG+8+2*i)}, {c0}, {U(i)} op_sel_hi:[1,0,1]")
        for i in range(4): a(f"    v_pk_mul_f32 {U(i)}, {U(i)}, {A(i)}")
        m0_ = mf(nx, 0) if nx < 8 else [None] * 4
        m1_ = mf(nx, 1) if nx < 8 else [None] * 4
        for i in range(4):
            if m0_[i]: a(m0_[i])
            a(f"    v_exp_f32 v{Z+2*i}, v{Z+2*i}\n    v_exp_f32 v{Z+2*i+1}, v{Z+2*i+1}")
        if opt["pkd"]:
            for i in range(4): a(f"    v_pk_fma_f32 {ZZ(i)}, {ZZ(i)}, {c1}, {c1} op_sel:[0,1,1] op_sel_hi:[1,1,1]")
        else:
            for i in range(8): a(f"    v_fma_f32 v{Z+i}, v{Z+i}, v{RC+3+4*(st&1)}, v{RC+3+4*(st&1)}")
        for i in range(4):
            if m1_[i]: a(m1_[i])
            a(f"    v_rcp_f32 v{Z+2*i}, v{Z+2*i}\n    v_rcp_f32 v{Z+2*i+1}, v{Z+2*i+1}")
        for i in range(4): a(f"    v_pk_mul_f32 {U(i)}, {U(i)}, {ZZ(i)}")
        for i in range(4): a(f"    v_cvt_pk_bf16_f32 v{acc(0,st)+i}, v{acc(2,st)+2*i}, v{acc(2,st)+2*i+1}")
        a(f"    buffer_store_dwordx4 {V(acc(0,st))}, v6, {S(SWS)}, s50 offen offset:{(st&1)*1024} sc1")
        if st & 1 and st < 7: a("    s_add_u32 s50, s50, 4096")
        if st in (0, 1, 2, 3, 5, 7): st9({0: 2, 1: 3, 2: 4, 3: 5, 5: 6, 7: 7}[st])
else:
    a(f"    ds_read_b128 {V(32)}, v5")
    for i in range(4): a(f"    ds_read_b128 {V(16+4*i)}, v4 offset:{(i>>1)*256+(i&1)*64}")
    for st in range(1, 8): a(f"    ds_read_b128 {V(32+4*st)}, v5 offset:{st*256}")
    rdy_check("cf", 7)
    for st in range(8):
        c0, c1 = P2(32 + 4 * st), P2(34 + 4 * st)
        if st == 1: a("    s_waitcnt lgkmcnt(0)")
        ob = 88 + 4 * (st & 1)
        TG = lambda i: 64 + 2 * i
        TU = lambda i: 72 + 2 * i
        Z = lambda i: 80 + 2 * i
        for i in range(4): a(f"    v_pk_fma_f32 {P2(TG(i))}, {P2(16+2*i)}, {c0}, {P2(acc(0,st)+2*i)} op_sel_hi:[1,0,1]")
        for i in range(4): a(f"    v_pk_mul_f32 {P2(Z(i))}, {P2(TG(i))}, {P2(TG(i))}")
        for i in range(4): a(f"    v_pk_fma_f32 {P2(Z(i))}, {P2(Z(i))}, {c1}, {c0} op_sel:[0,0,1] op_sel_hi:[1,0,1]")
        for i in range(4): a(f"    v_pk_mul_f32 {P2(Z(i))}, {P2(Z(i))}, {P2(TG(i))}")
        for i in range(4): a(f"    v_exp_f32 v{Z(i)}, v{Z(i)}\n    v_exp_f32 v{Z(i)+1}, v{Z(i)+1}")
        for i in range(4): a(f"    v_pk_fma_f32 {P2(TU(i))}, {P2(24+2*i)}, {c0}, {P2(acc(2,st)+2*i)} op_sel_hi:[1,0,1]")
        for i in range(4): a(f"    v_pk_fma_f32 {P2(Z(i))}, {P2(Z(i))}, {c1}, {c1} op_sel:[0,1,1] op_sel_hi:[1,1,1]")
        for i in range(4): a(f"    v_rcp_f32 v{Z(i)}, v{Z(i)}\n    v_rcp_f32 v{Z(i)+1}, v{Z(i)+1}")
        for i in range(4): a(f"    v_pk_mul_f32 {P2(TU(i))}, {P2(TU(i))}, {P2(TG(i))}")
        for i in range(4): a(f"    v_pk_mul_f32 {P2(TU(i))}, {P2(TU(i))}, {P2(Z(i))}")
        for i in range(4): a(f"    v_cvt_pk_bf16_f32 v{ob+i}, v{TU(i)}, v{TU(i)+1}")
        a(f"    buffer_store_dwordx4 {V(ob)}, v6, {S(SWS)}, s50 offen offset:{(st&1)*1024} sc1")
        if st & 1 and st < 7: a("    s_add_u32 s50, s50, 4096")
a("    s_branch L_cdone")

a.label("L_cdft")
a(f"""    s_lshl_b32 s50, s{sNH}, 12
    s_lshl_b32 s51, s{sSH}, 14
    s_sub_u32 s50, s50, s51
    s_add_u32 s50, s50, 32768
    v_add_u32 v12, s50, v8
    v_add_u32 v13, s50, v9
    s_lshl_b32 s51, s{sSH}, 9
    s_add_u32 s51, s51, {L_STAT}
    v_lshl_add_u32 v1, v3, 4, s51
    s_lshl_b32 s50, s{sNH}, 7
    s_add_u32 s50, s50, {L_CS}
    v_lshl_add_u32 v7, v2, 2, s50
    v_mul_u32_u24 v6, {4*81920}, v3
    v_lshl_add_u32 v6, v2, 4, v6
    s_lshl_b32 s50, s{sSH}, 3
    s_add_u32 s50, s50, s{sM}
    s_mul_i32 s50, s50, 5120
    s_sub_u32 s51, s{sNT}, 27
    s_lshl_b32 s51, s51, 1
    s_add_u32 s51, s51, s{sNH}
    s_lshl_b32 s51, s51, 9
    s_add_u32 s50, s50, s51
    s_add_u32 s50, s50, {WS_G}
    ; 32-point DFT fragments (row t1 = 16 th + (l & 15), s1 = 16 b + 4 (l >> 4) + 0..3): cos v80.., sin v88.., -cos v96..
    v_lshlrev_b32 v104, 2, v3""")
for th in range(2):
    a(f"    v_add_u32 v105, {16*th}, v2")
    for b in range(2):
        a(f"""    v_add_u32 v106, {16*b}, v104
    v_mul_u32_u24 v108, v106, v105
    v_add_u32 v109, v108, v105
    v_add_u32 v110, v109, v105
    v_add_u32 v111, v110, v105""")
        trig4(108, 80 + 4 * th + 2 * b, 88 + 4 * th + 2 * b, 31, 1 / 32, False)
for r in range(8): a(f"    v_xor_b32 v{96+r}, 0x80008000, v{80+r}")
main_loop(True, "cd")
for i in range(4): a(f"    ds_read_b32 v{8+i}, v7 offset:{(i>>1)*256+(i&1)*64}")
def rd_rows(st):
    a(f"    ds_read_b128 {V(16+4*st)}, v1 offset:{st*64}\n    ds_read_b128 {V(48+4*st)}, v1 offset:{1024+st*64}")
for st in range(4): rd_rows(st)
rdy_check("cd", 0)
for st in range(4, 8): rd_rows(st)
for et in range(2):
    for c in range(4):
        if et == 0 and c == 2: a("    s_waitcnt lgkmcnt(0)")
        for mat in range(2):
            i = 2 * mat + et
            cs = P2(8 + (i & ~1)); sel = "op_sel_hi:[1,0]" if (i & 1) == 0 else "op_sel:[0,1] op_sel_hi:[1,1]"
            q = [(st, p) for st in (2 * c, 2 * c + 1) for p in range(2)]
            for n, (st, p) in enumerate(q): a(f"    v_pk_mul_f32 {P2(104+2*n)}, {P2(48+4*st+2*p)}, {cs} {sel}")
            for n, (st, p) in enumerate(q): a(f"    v_pk_fma_f32 {P2(104+2*n)}, {P2(acc(i,st)+2*p)}, {P2(16+4*st+2*p)}, {P2(104+2*n)}")
            for n, (st, p) in enumerate(q): a(f"    v_cvt_pk_bf16_f32 v{acc(i,2*c)+n}, v{104+2*n}, v{105+2*n}")
def dreg(rnd, c, im): return acc(2 * im + (rnd & 1), 2 * c + 1)
def g_store(rnd, r):
    et, th = rnd >> 1, rnd & 1
    ob = 104 + 4 * (r & 1)
    return [f"    v_cvt_pk_bf16_f32 v{ob}, v{dreg(rnd,0,0)+r}, v{dreg(rnd,1,0)+r}",
            f"    v_cvt_pk_bf16_f32 v{ob+1}, v{dreg(rnd,2,0)+r}, v{dreg(rnd,3,0)+r}",
            f"    v_cvt_pk_bf16_f32 v{ob+2}, v{dreg(rnd,0,1)+r}, v{dreg(rnd,1,1)+r}",
            f"    v_cvt_pk_bf16_f32 v{ob+3}, v{dreg(rnd,2,1)+r}, v{dreg(rnd,3,1)+r}",
            f"    s_add_u32 s51, s50, {(16*th + r)*81920 + et*256}\n    buffer_store_dwordx4 {V(ob)}, v6, {S(SWS)}, s51 offen sc1"]
a("    s_nop 1")
for rnd in range(4):
    et, th = rnd >> 1, rnd & 1
    mf = []
    for c in range(4):
        mf.append(mfma(dreg(rnd, c, 0), 80 + 4 * th, acc(et, 2 * c), "0"))
        mf.append(mfma(dreg(rnd, c, 1), 88 + 4 * th, acc(et, 2 * c), "0"))
    for c in range(4):
        mf.append(mfma(dreg(rnd, c, 0), 88 + 4 * th, acc(2 + et, 2 * c)))
        mf.append(mfma(dreg(rnd, c, 1), 96 + 4 * th, acc(2 + et, 2 * c)))
    fill = sum((g_store(rnd - 1, r) for r in range(4)), []) if rnd else []
    for n, m_ in enumerate(mf):
        a(m_)
        if n >= 8 and fill:
            for o in fill[:3]: a(o)
            fill = fill[3:]
    for o in fill: a(o)
a("    s_nop 7")
for r in range(4):
    for o in g_store(3, r): a(o)

K2ON[0] = True
a.label("L_cdone")
stamp(2)
a(f"""    s_lshl_b32 s46, s{sM}, 5
    s_add_u32 s46, s46, s{sNT}
    s_lshl_b32 s46, s46, 7
    s_add_u32 s46, s46, {WS_FLAGS}
    v_mov_b32 v124, 0""")
def publish(tag):
    a(f"""    s_mov_b64 exec, 1
    ds_add_rtn_u32 v122, v120, v121
    s_waitcnt lgkmcnt(0)
    v_cmp_eq_u32 vcc, 3, v122
    s_cbranch_vccz L_{tag}
    buffer_store_dword v123, v124, {S(SWS)}, s46 offen sc1
L_{tag}:
    s_mov_b64 exec, -1""")
if opt["dfl"]: a(f"    s_cmp_eq_u32 s{sDFT}, 1\n    s_cbranch_scc1 L_late")
a("    s_waitcnt vmcnt(0)")
st9(8)
publish("nofl")
if opt["dfl"]: a("L_late:")
stamp(3)
a(f"    s_setprio {opt['cp']}")
fin_addr(8)
for r in range(ACC2, 256): a(f"    v_mov_b32 v{r}, 0")
a(f"""    v_lshlrev_b32 v1, 4, v0
    s_lshl_b32 s50, s{sW}, 3
    s_cmp_eq_u32 s{sW}, 3
    s_cselect_b32 s50, 23, s50
    s_mul_i32 s55, s50, 5120
    v_add_u32 v3, s55, v1
    s_lshl_b32 s61, s50, 17
    s_lshl_b32 s62, s{sT1}, 12
    s_add_u32 s61, s61, s62
    s_add_u32 s61, s61, {WS_H}
    s_cmp_lt_u32 s{sW}, 2
    s_cselect_b32 s62, 8, 7
    s_cmp_ge_u32 s39, s62
    s_cselect_b32 s63, 0, s39""")
if not opt["rot2"]: a("    s_mov_b32 s63, 0")
lds_spin("cs1", O_S1, 1, 8, 9)
stamp(4); st3(0)
LA = opt['la']
def c_hload(st):
    h_load(48 + 16 * st, 63, "s62", oob=(f"    s_cmp_lt_u32 s{sW}, 2\n    s_cselect_b32 s52, s52, 0x40000000" if st == 7 else None))
a("    s_mov_b32 s58, s63")
for st in range(opt["h1st"] or LA): c_hload(st)
if opt["dfl"]:
    a(f"    s_cmp_eq_u32 s{sDFT}, 1\n    s_cbranch_scc0 L_late2\n    s_waitcnt vmcnt({4*(opt['h1st'] or LA)})")
    publish("nofl2")
    a("    s_waitcnt vmcnt(0)\nL_late2:")
lds_spin("cwl", O_WL, 3, 8, 9)
def w_reads(st):
    b = 8 + 20 * (st & 1)
    a("    s_mul_i32 s52, s58, 5120\n    v_add_u32 v2, s52, v3")
    rot_next(58, "s62")
    for nb in range(5): a(f"    ds_read_b128 {V(b+4*nb)}, v2 offset:{nb*1024}")
w_reads(0)
for st in range(opt["h1st"] or LA, LA): c_hload(st)
if opt["il"]:
    for st in range(6):
        a(f"    s_waitcnt vmcnt({4 * min(LA - 1, 7 - st)}) lgkmcnt(0)")
        st3(1 + st)
        fill = capture(lambda: w_reads(st + 1))
        if st + LA < 8: fill += capture(lambda: c_hload(st + LA))
        k2_mfma(8 + 20 * (st & 1), 48 + 16 * st, fill)
else:
    for st in range(6):
        w_reads(st + 1)
        a(f"    s_waitcnt vmcnt({4 * min(LA - 1, 7 - st)}) lgkmcnt(5)")
        if PROF == 3: a("    s_waitcnt lgkmcnt(0)"); st3(1 + st)
        k2_mfma(8 + 20 * (st & 1), 48 + 16 * st)
        if st + LA < 8: c_hload(st + LA)
w_reads(7)
part_addr(56)
a(f"""    s_lshl_b32 s50, s{sW}, 2
    s_add_u32 s50, s50, {L_CNT + O_PF}
    v_mov_b32 v57, s50
    v_mov_b32 v58, 1
    s_waitcnt vmcnt(0) lgkmcnt(0)
    ds_write_b32 v57, v58
    v_add_u32 v2, s55, v56""")
tail(((8, 144), (28, 160)), 60)
st3(8)

a(f"""    s_mov_b32 s50, 3277
    s_lshl_b32 s51, s{sW}, 6
    s_add_u32 s51, s51, 1024
    v_add_u32 v64, s51, v0""")
item(64, 8, 9, 65)
a.label("L_final")
a(f"""    v_add_u32 v16, 81920, v4
    v_add_u32 v17, 81920, v5
    v_add_u32 v18, 81920, v8
    s_waitcnt lgkmcnt(0)""")
bar("R2")
stamp(6)
OST = ["", " sc1", " nt"][opt["ost"]]
def rd_item(va, vb, dst):
    for w in range(8):
        b = PBASE[w & 3] + (w >> 2) * 64 * PSTR
        r, o = (va, b) if b < 65536 else (vb, b - 81920)
        a(f"    ds_read_b64 {P2(dst+2*w)}, v{r} offset:{o}")
def sum_item(dst, t, vg):
    for w in range(0, 8, 2):
        for k in range(2):
            u = t + 4 * k if w == 0 else 20 + 4 * k
            for i in range(2): a(f"    v_lshlrev_b32 v{u+2*i}, 16, v{dst+2*(w+k)+i}\n    v_and_b32 v{u+1+2*i}, 0xffff0000, v{dst+2*(w+k)+i}")
        for k in range(4 if w else 0): a(f"    v_pk_add_f32 {P2(t+2*k)}, {P2(t+2*k)}, {P2(20+2*k)}")
    a(f"    v_pk_add_f32 {P2(t)}, {P2(t)}, {P2(t+4)}\n    v_pk_add_f32 {P2(t+2)}, {P2(t+2)}, {P2(t+6)}")
    a(f"    v_cvt_pk_bf16_f32 v{t+8}, v{t}, v{t+1}\n    v_cvt_pk_bf16_f32 v{t+9}, v{t+2}, v{t+3}")
    a(f"    buffer_store_dwordx2 {P2(t+8)}, v{vg}, {S(SOUT)}, s59 offen{OST}")
rd_item(4, 16, 64)
rd_item(5, 17, 80)
a(f"""    s_cmp_ge_u32 s{sW}, 4
    s_cbranch_scc1 L_fin2
    s_waitcnt lgkmcnt(8)""")
rd_item(8, 18, 96)
sum_item(64, 32, 6)
a("    s_waitcnt lgkmcnt(8)")
sum_item(80, 44, 7)
a("    s_waitcnt lgkmcnt(0)")
sum_item(96, 32, 9)
a("    s_branch L_fin3\nL_fin2:\n    s_waitcnt lgkmcnt(8)")
sum_item(64, 32, 6)
a("    s_waitcnt lgkmcnt(0)")
sum_item(80, 44, 7)
a("L_fin3:")
stamp(7)
a(f"""    s_cmp_lg_u32 s2, 0
    s_cbranch_scc1 L_noep
    s_cmp_lg_u32 s{sW}, 7
    s_cbranch_scc1 L_noep
    s_mov_b64 exec, -1
    v_lshlrev_b32 v8, 9, v0
    s_mov_b32 s50, {WS_EF}
    s_mov_b32 s60, 0
L_ep:
    buffer_load_dword v12, v8, {S(SWS)}, s50 offen sc1
    buffer_load_dword v13, v8, {S(SWS)}, s50 offen offset:128 sc1
    buffer_load_dword v14, v8, {S(SWS)}, s50 offen offset:256 sc1
    buffer_load_dword v15, v8, {S(SWS)}, s50 offen offset:384 sc1
    s_add_u32 s60, s60, 1
    s_waitcnt vmcnt(0)
    v_xor_b32 v12, s47, v12
    v_xor_b32 v13, s47, v13
    v_xor_b32 v14, s47, v14
    v_xor_b32 v15, s47, v15
    v_or3_b32 v12, v12, v13, v14
    v_or_b32 v12, v12, v15
    v_cmp_ne_u32 vcc, 0, v12
    s_cbranch_vccz L_epd
    s_sleep 4
    s_cmp_lt_u32 s60, 0x40000
    s_cbranch_scc1 L_ep
L_epd:
    v_mov_b32 v12, s47
    v_mov_b32 v13, 0
    s_mov_b32 s50, {WS_EPOCH}
    s_mov_b64 exec, 1
    buffer_store_dword v12, v13, {S(SWS)}, s50 offen sc1
L_noep:""")
if PROF == 88:
    mk_dbg()
    a(f"""    s_cmp_lg_u32 s2, 77
    s_cbranch_scc1 L_end
    s_memrealtime s[88:89]
    s_waitcnt lgkmcnt(0)
    s_sub_u32 s93, s88, s100
    s_lshr_b32 s50, s{sW}, 1
    s_lshl_b32 s50, s50, 4
    s_bitcmp1_b32 s{sW}, 0
    s_cbranch_scc1 L_end
    v_mov_b32 v7, 0
    s_mov_b64 exec, 1""")
    for k in range(4):
        a(f"    v_mov_b32 v6, s{90+k}\n    buffer_store_dword v6, v7, {S(SDBG)}, s50 offen offset:{4*k}")
elif PROF:
    mk_ws()
    a(f"""    s_memrealtime s[88:89]
    s_waitcnt lgkmcnt(0)
    s_mov_b32 s99, s88
    s_lshl_b32 s50, s2, 3
    s_add_u32 s50, s50, s{sW}
    s_lshl_b32 s50, s50, 6
    s_add_u32 s50, s50, {WS_PROF}
    v_mov_b32 v7, 0
    s_mov_b64 exec, 1""")
    for k in range(10):
        a(f"    v_mov_b32 v6, s{90+k}\n    buffer_store_dword v6, v7, {S(SWS)}, s50 offen offset:{4*k}")
a.label("L_end")
a("    s_endpgm")
a('.section .rodata,"a"')
a(kd(NAME, 256, 102, 256))
open(sys.argv[1], "w").write(a.text())
```

```python
import sys, math, struct
from asmlib import *

NAME = "parallel_sum__spectral_fnet__geglu_ffn__prompt_kernel"
opt = dict(prof=0, xo=2, irot=1, rot2=1, la=3, nodma=0, wrot=1, thr=4, pslp=3, touch=0, pp=0, cp=0, slp=0, nt=0, ost=1, pkd=0, spr=1, bst=1, hp=3, sch=17, ssch=7, pp2=0, h1st=0, ex=0, fin=1, map2=0, cpf=1, tlb=0, mgm=1, dfl=0, sf=1, eb=0, es2=0, lnd=3, el=0, il=1, il2=1, rmap=0, es=0, wdnt=1, wdt=1, tch=0, sst=0)
for a_ in sys.argv[2:]:
    k, v = a_.split("="); assert k in opt, k; opt[k] = int(v)
PROF = opt["prof"]

WS_STATS, WS_FLAGS, WS_WF, WS_CSP, WS_H, WS_G = 0, 0x8000, 0x10000, 0x300000, 0x400000, 0xC00000
WS_EF, WS_F2, WS_SF, WS_EPOCH = 0x340000, 0x348000, 0x350000, 0x4800
WS_SIZE = 0x1000000
WS_PROF = 0xF80000
WFT = 54 * 5120
STG = 49152
L_SCR, L_STAT, L_CS, L_CNT = 147456, 157696, 161792, 162304
O_CNT, O_REL, O_RDY, O_LAND, O_WOK, O_TAG, O_S1, O_WL, O_PF = 0, 4, 8, 12, 16, 20, 24, 28, 32
PSTR = 176
K1C = 2.0 * math.sqrt(2.0 / math.pi) * math.log2(math.e)
K2C = K1C * 0.044715
def f2u(x): return struct.unpack("<I", struct.pack("<f", x))[0]

a = Asm()
HDR = open("parallel_sum__spectral_fnet__geglu_ffn__prompt.s.ref").read().split("; Override launch")[0]
a(HDR.rstrip())
a("; @launch grid=(256,1,1) block=(512,1,1) lds=163840")
a("""; One persistent launch, one workgroup per CU, 8 waves: 0..3 matrix waves, 4..6 LDS-DMA loaders, 7 service wave.
;   FFN tiles: h = gelu(g) * u -> ws; DFT tiles: 32-point DFT over s1 (s = 64 s1 + s2) on the matrix core -> G in ws.
; Hand-offs: write-through stores, drained, then a flag word holding this launch's tag (epoch word in ws + 1).""")
a('.amdgcn_target "amdgcn-amd-amdhsa--gfx950"\n.text')
kernel_head(a, NAME)

SX, SWA, SWB, SWS, SWD, SOUT, SDBG = 4, 8, 12, 16, 20, 32, 36
sM, sNT, sW, sDFT, sT1, sJ2, sMI = 40, 41, 42, 43, 44, 45, 48
P_X, P_HRE, P_HIM, P_WG, P_WU, P_WD, P_OUT, P_DBG, P_WS = 64, 70, 72, 76, 78, 80, 82, 84, 86
def S(b): return f"s[{b}:{b+3}]"
def V(b, n=4): return f"v[{b}:{b+n-1}]"
def P2(r): return f"v[{r}:{r+1}]"
def mk_x(): srd(a, SX, P_X, 2621440)
def mk_ws(): srd(a, SWS, P_WS, WS_SIZE)
def mk_wd(): srd(a, SWD, P_WD, 1728 * 1280)
def mk_out(): srd(a, SOUT, P_OUT, 2621440)
def mk_dbg(): srd(a, SDBG, P_DBG, 256)
def st_txt(k): return f"    s_memtime s[88:89]\n    s_waitcnt lgkmcnt(0)\n    s_sub_u32 s{90+k}, s88, s100"
def stamp(k):
    if PROF == 1: a(st_txt(k))
    if PROF == 4 or (PROF == 6 and k == 7): a(f"    s_memrealtime s[88:89]\n    s_waitcnt lgkmcnt(0)\n    s_sub_u32 s{90+k}, s88, s100")
def st8(k):
    if PROF == 8: a(f"    s_memrealtime s[88:89]\n    s_waitcnt lgkmcnt(0)\n    s_sub_u32 s{90+k}, s88, s100")
def st9(k):
    if PROF == 9: a(st_txt(k))
def st3(k):
    if PROF == 3: a(st_txt(k))
def bar(name, k=None):
    a(f"    s_barrier            ; {name}")
    if PROF == 2 and k is not None: a(st_txt(k))
def mfma(d, x, y, c=None):
    if opt["ex"] == 21 and d >= 176 and K2ON[0]: return "    s_nop 0"
    return f"    v_mfma_f32_16x16x32_bf16 {V(d)}, {V(x)}, {V(y)}, {V(d) if c is None else c}"
ACC2 = 176
K2ON = [False]
_u = [0]
def uniq():
    _u[0] += 1
    return _u[0]
PBASE = [0, 40960, 81920, 117760]
def lds_spin(tag, off, target, va, vd):
    if isinstance(off, int): a(f"    v_mov_b32 v{va}, {L_CNT + off}")
    else: a(f"    v_mov_b32 v{va}, {off}")
    a(f"""    s_mov_b32 s60, 0
L_{tag}:
    ds_read_b32 v{vd}, v{va}
    s_add_u32 s60, s60, 1
    s_waitcnt lgkmcnt(0)
    v_cmp_gt_u32 vcc, {target}, v{vd}
    s_cbranch_vccz L_{tag}d
    s_sleep 1
    s_cmp_lt_u32 s60, 0x400000
    s_cbranch_scc1 L_{tag}
L_{tag}d:""")
def lds_add(off, va, vd):
    a(f"""    v_mov_b32 v{va}, {L_CNT + off}
    v_mov_b32 v{vd}, 1
    s_mov_b64 exec, 1
    ds_add_u32 v{va}, v{vd}
    s_mov_b64 exec, -1""")
def poll(tag, vaddr, soff, vd, cmp, slp):
    a(f"""    s_mov_b32 s60, 0
L_{tag}:
    buffer_load_dword v{vd}, v{vaddr}, {S(SWS)}, {soff} offen sc1
    s_add_u32 s60, s60, 1
    s_waitcnt vmcnt(0)
    v_cmp_ne_u32 vcc, {cmp}, v{vd}
    s_cbranch_vccz L_{tag}d
    s_sleep {slp}
    s_cmp_lt_u32 s60, 0x40000
    s_cbranch_scc1 L_{tag}
L_{tag}d:""")
def rot_next(c, n):
    a(f"    s_add_u32 s{c}, s{c}, 1\n    s_cmp_eq_u32 s{c}, {n}\n    s_cselect_b32 s{c}, 0, s{c}")
def k2_setup():
    a(f"""    v_lshlrev_b32 v1, 4, v0
    s_mul_i32 s24, s{sJ2}, {WFT}
    s_add_u32 s24, s24, {WS_WF}
    s_mul_i32 s28, s39, {3 if opt['map2'] else 4}
    s_lshr_b32 s28, s28, 2
    s_add_u32 s28, s28, s29
    s_cmp_ge_u32 s28, 6
    s_cselect_b32 s30, 6, 0
    s_sub_u32 s28, s28, s30""")
    if not opt["rot2"]: a("    s_mov_b32 s28, 0")
    a(f"""    s_mul_i32 s26, s49, 6
    s_add_u32 s26, s26, 30
    s_mul_i32 s25, s26, 5120
    s_add_u32 s25, s25, s24
    s_lshl_b32 s26, s26, 17
    s_lshl_b32 s27, s{sT1}, 12
    s_add_u32 s26, s26, s27
    s_add_u32 s26, s26, {WS_H}
    s_mov_b32 s27, s28""")
def own_slot(sl):
    a("    s_mul_i32 s30, s27, 5120\n    s_add_u32 s30, s30, s25\n    s_add_u32 s31, s30, 4096")
    for nb in range(5):
        if nb < 4: a(f"    buffer_load_dwordx4 {V(8+20*sl+4*nb)}, v1, {S(SWS)}, s30 offen offset:{nb*1024} sc1")
        else: a(f"    buffer_load_dwordx4 {V(8+20*sl+4*nb)}, v1, {S(SWS)}, s31 offen sc1")
    rot_next(27, 6)
def own_w(s0, s1, thr=0):
    for sl in range(s0, s1):
        if thr: a(f"    s_waitcnt vmcnt({thr})")
        own_slot(sl)
def x_init_load():
    mk_x()
    a(f"""    v_and_b32 v2, 15, v0
    v_lshlrev_b32 v2, 6, v2
    v_add_u32 v2, s{sT1}, v2
    v_mul_u32_u24 v2, 1280, v2
    v_lshrrev_b32 v3, 4, v0
    v_lshl_add_u32 v2, v3, 3, v2
    s_and_b32 s30, s49, 1
    s_mul_i32 s30, s30, {1024*1280}
    s_lshr_b32 s31, s49, 1
    s_mul_i32 s31, s31, {32*1280}
    s_add_u32 s30, s30, s31
    s_mul_i32 s31, s{sJ2}, 160
    s_add_u32 s30, s30, s31""")
    for nb in range(5):
        a(f"    buffer_load_dwordx2 {P2(160+2*nb)}, v2, {S(SX)}, s30 offen offset:{32*nb}")
def trig4(t, d_cos, d_sin, mask, scale, neg):
    for i in range(4): a(f"    v_and_b32 v{t+i}, {mask}, v{t+i}")
    for i in range(4): a(f"    v_cvt_f32_u32 v{t+i}, v{t+i}")
    for i in range(4): a(f"    v_mul_f32 v{t+i}, {f2u(scale):#x}, v{t+i}")
    for i in range(4): a(f"    v_cos_f32 v{t+4+i}, v{t+i}")
    for i in range(4): a(f"    v_sin_f32 v{t+i}, {'-' if neg else ''}v{t+i}")
    a(f"""    v_cvt_pk_bf16_f32 v{d_cos}, v{t+4}, v{t+5}
    v_cvt_pk_bf16_f32 v{d_cos+1}, v{t+6}, v{t+7}
    v_cvt_pk_bf16_f32 v{d_sin}, v{t}, v{t+1}
    v_cvt_pk_bf16_f32 v{d_sin+1}, v{t+2}, v{t+3}""")

def trig_rows(young):
    a(f"""    s_cmp_ge_u32 s{sJ2}, 4
    s_cselect_b32 s58, -1, 0
    s_and_b32 s57, s58, 1
    v_and_b32 v2, 15, v0
    v_lshlrev_b32 v144, 6, v2
    v_add_u32 v144, s{sT1}, v144
    v_lshrrev_b32 v3, 4, v0
    s_lshl_b32 s52, s49, 4
    v_lshl_add_u32 v145, v3, 2, s52""")
    for ts in range(4):
        a(f"""    v_add_u32 v146, {1024*(ts&1) + 32*(ts>>1)}, v144
    v_xor_b32 v146, s58, v146
    v_add_u32 v146, s57, v146
    v_and_b32 v146, 2047, v146
    v_mul_u32_u24 v148, v146, v145
    v_add_u32 v149, v148, v146
    v_add_u32 v150, v149, v146
    v_add_u32 v151, v150, v146""")
        trig4(148, 128 + 4 * ts, 130 + 4 * ts, 2047, 1 / 2048, True)
    for r in range(ACC2, 256): a(f"    v_mov_b32 v{r}, 0")
    u = uniq()
    a(f"    s_waitcnt vmcnt({young})")
    for ts in range(4):
        a(f"    s_cmp_lg_u32 s49, {ts}\n    s_cbranch_scc1 L_xi{u}_{ts}")
        for nb in range(5):
            d = ACC2 + 4 * (nb * 4 + ts); x = 160 + 2 * nb
            a(f"""    v_lshlrev_b32 v{d}, 16, v{x}
    v_and_b32 v{d+1}, 0xffff0000, v{x}
    v_lshlrev_b32 v{d+2}, 16, v{x+1}
    v_and_b32 v{d+3}, 0xffff0000, v{x+1}""")
        a(f"L_xi{u}_{ts}:")

def w_touch(j, two, va, vd, sa):
    a(f"""    v_lshrrev_b32 v{va}, 5, v0
    v_mul_u32_u24 v{va}, {1728 - 32}, v{va}
    v_add_u32 v{va}, v{va}, v0
    s_lshr_b32 s{sa}, s2, 2
    s_mul_i32 s{sa}, s{sa}, 27
    s_bfe_u32 s{sa+1}, s2, 0x10001
    s_mul_i32 s{sa+1}, s{sa+1}, {5*1728}
    s_add_u32 s{sa}, s{sa}, s{sa+1}
    s_add_u32 s{sa}, s{sa}, {j*1728}
    v_add_u32 v{va}, s{sa}, v{va}
    v_lshlrev_b32 v{va}, 7, v{va}
    s_bitcmp1_b32 s2, 0
    s_cselect_b32 s{sa}, s{P_WU}, s{P_WG}
    s_cselect_b32 s{sa+1}, s{P_WU+1}, s{P_WG+1}
    s_mov_b32 exec_lo, 0x07ffffff
    s_mov_b32 exec_hi, {'0x07ffffff' if two else '0'}
    global_load_dword v{vd}, v{va}, s[{sa}:{sa+1}]
    s_mov_b64 exec, -1""")
RMAP = f"""    s_sub_u32 s50, s36, 24
    s_lshl_b32 s50, s50, 2
    s_lshr_b32 s50, 0x72651043, s50
    s_and_b32 s50, s50, 15
    s_add_u32 s50, s50, 24
    s_cmp_ge_u32 s36, 24
    s_cselect_b32 s{sNT}, s50, s{sNT}
""" if opt["rmap"] else ""
MAP2 = f"""    s_mov_b32 s38, s{sJ2}
    s_lshl_b32 s{sT1}, s47, 3
    s_bfe_u32 s29, s2, 0x30003
    s_add_u32 s{sT1}, s{sT1}, s29
    s_lshr_b32 s39, s2, 6
    s_and_b32 s{sJ2}, s46, 1
    s_lshl_b32 s{sJ2}, s{sJ2}, 2
    s_add_u32 s{sJ2}, s{sJ2}, s39
    s_lshl_b32 s39, s39, 1""" if opt["map2"] else f"""    s_mov_b32 s38, s{sJ2}
    s_mov_b32 s39, s{sJ2}
    s_mov_b32 s29, s{sMI}
    s_lshl_b32 s{sT1}, s46, 2
    s_add_u32 s{sT1}, s{sT1}, s{sMI}"""
a(f"""    s_cmp_ge_u32 s2, 256
    s_cbranch_scc1 L_end
    s_load_dwordx16 s[64:79], s[0:1], 0
    s_load_dwordx8 s[80:87], s[0:1], 64""")
if PROF:
    a("    s_memtime s[100:101]" if PROF not in (4, 6, 8) else "    s_memrealtime s[100:101]")
    for k in range(10): a(f"    s_mov_b32 s{90+k}, 0")
if opt["cpf"] >= 2:
    NL = 1 if opt["cpf"] == 2 else 4
    a(f"""    s_getpc_b64 s[60:61]
L_pc:
    s_sub_u32 s60, s60, L_pc - {NAME}
    s_subb_u32 s61, s61, 0
    s_lshr_b32 s52, s2, 3
    s_and_b32 s52, s52, {32 // NL - 1}
    s_lshl_b32 s52, s52, {10 + (NL // 2)}
    v_and_b32 v2, 63, v0
    v_lshlrev_b32 v2, 7, v2
    v_lshrrev_b32 v1, 6, v0
    v_lshl_add_u32 v1, v1, {7 + (NL // 2)}, v2
    v_add_u32 v1, s52, v1
    v_min_u32 v1, L_end - {NAME}, v1
    s_mov_b64 exec, {(1 << NL) - 1}
    global_load_dword v127, v1, s[60:61]
    s_mov_b64 exec, -1""")
a(f"""    v_lshrrev_b32 v1, 6, v0
    v_and_b32 v0, 63, v0
    v_readfirstlane_b32 s{sW}, v1
    s_and_b32 s46, s2, 7
    s_lshr_b32 s47, s2, 3
    {'s_lshr_b32 s%d, s46, 2' % sM if opt['mgm'] else 's_and_b32 s%d, s46, 1' % sM}
    s_lshl_b32 s{sM}, s{sM}, 2
    s_and_b32 s{sMI}, s47, 3
    s_add_u32 s{sM}, s{sM}, s{sMI}
    s_lshr_b32 s{sJ2}, s47, 2
    s_lshl_b32 s{sNT}, s{sJ2}, 2
    {'s_and_b32 s47, s46, 3' if opt['mgm'] else 's_lshr_b32 s47, s46, 1'}             ; n-group g
    s_add_u32 s{sNT}, s{sNT}, s47
    s_mov_b32 s36, s{sNT}              ; slot 4 j + g
{RMAP}{MAP2}
    s_cmp_ge_u32 s{sNT}, 27
    s_cselect_b32 s{sDFT}, 1, 0
    s_cmp_lt_u32 s{sW}, 4
    s_cbranch_scc1 L_cons
    s_setprio {opt['hp']}
    s_sub_u32 s49, s{sW}, 4
    s_cmp_eq_u32 s{sW}, 7
    s_cbranch_scc1 L_serv
    v_lshrrev_b32 v2, 3, v0
    v_and_b32 v3, 7, v0
    v_lshrrev_b32 v5, 1, v2
    s_lshl_b32 s63, s47, 2
    s_lshr_b32 s63, {[0, 0x3210, 0x8530][opt['xo']]:#x}, s63
    s_and_b32 s63, s63, 15
    s_lshr_b32 s62, s{sM}, 2
    s_mul_i32 s62, s62, 5
    s_add_u32 s63, s63, s62
    s_cmp_ge_u32 s63, 10
    s_cselect_b32 s62, 10, 0
    s_sub_u32 s63, s63, s62
    s_cmp_eq_u32 s{sW}, 6
    s_cbranch_scc1 L_prodw
    v_mul_u32_u24 v4, 81920, v2
    v_xor_b32 v3, v3, v5
    v_lshl_add_u32 v8, v3, 4, v4
    v_xor_b32 v9, 64, v8
    s_lshl_b32 s50, s49, 5
    s_lshl_b32 s51, s{sM}, 2
    s_add_u32 s50, s50, s51
    s_mul_i32 s50, s50, 1280
    s_lshl_b32 s52, s63, 7
    s_add_u32 s50, s50, s52
    s_lshl_b32 s51, s49, 14
    s_lshl_b32 s57, s38, 1""")
if not opt["irot"]: a("    s_mov_b32 s57, 0")
a(f"""    s_lshl_b32 s53, s57, 10
    s_mov_b32 s54, 0x3fff
    s_mov_b32 s55, 0
    s_mov_b32 s56, 128
    s_mov_b32 s62, 1280
    s_waitcnt lgkmcnt(0)""")
st8(0)
srd(a, SWA, P_X, 2621440); srd(a, SWB, P_X, 2621440)
def dma(n, isw=0):
    a(f"""    s_add_u32 m0, s51, s53
    s_add_u32 s53, s53, 1024
    s_and_b32 s53, s53, s54""")
    if not opt["nodma"]: a(f"    buffer_load_dwordx4 v{128+n}, {S(SWA if n < 8 else SWB)}, s50 offen{' nt' if opt['nt'] >> isw & 1 else ''} lds")
for n in range(16):
    a(f"""    s_add_u32 s52, s57, {n}
    s_and_b32 s58, s52, 3
    s_mul_i32 s58, s58, {512*1280}
    s_bfe_u32 s52, s52, 0x20002
    s_mul_i32 s52, s52, 1280
    s_add_u32 s52, s52, s58
    v_add_u32 v{128+n}, s52, v{8 + (n & 1)}""")
    dma(n)
a(f"""    s_branch L_pfirst
L_prodw:
    s_mov_b32 s51, 32768
    s_lshl_b32 s57, s{sMI}, 1""")
if not opt["irot"]: a("    s_mov_b32 s57, 0")
a(f"""    s_lshl_b32 s53, s57, 10
    s_mov_b32 s54, 0x1fff
    s_mov_b32 s55, 8192
    s_cmp_eq_u32 s{sDFT}, 1
    s_cbranch_scc1 L_prodw_dft
    v_mul_u32_u24 v4, 3456, v2
    v_and_b32 v5, 1, v5
    v_lshlrev_b32 v5, 1, v5
    v_xor_b32 v3, v3, v5
    v_lshl_add_u32 v8, v3, 4, v4
    v_xor_b32 v9, 64, v8
    s_lshl_b32 s50, s{sNT}, 7
    s_mov_b32 s58, {8*3456}
    s_mov_b32 s56, {64*3456}
    s_waitcnt lgkmcnt(0)""")
st8(0)
srd(a, SWA, P_WG, 640 * 3456); srd(a, SWB, P_WU, 640 * 3456)
a(f"""    s_branch L_prodw_go
L_prodw_dft:
    v_mul_u32_u24 v4, 1280, v2
    v_xor_b32 v3, v3, v5
    v_lshl_add_u32 v8, v3, 4, v4
    v_xor_b32 v9, 64, v8
    s_sub_u32 s50, s{sNT}, 27
    s_lshl_b32 s50, s50, 6
    s_add_u32 s50, s50, 1
    s_mul_i32 s50, s50, 1280
    s_mov_b32 s58, {8*1280}
    s_mov_b32 s56, 128
    s_waitcnt lgkmcnt(0)""")
srd(a, SWA, P_HRE, 640 * 1280); srd(a, SWB, P_HIM, 640 * 1280)
a(f"""L_prodw_go:
    s_mul_i32 s52, s63, s56
    s_add_u32 s50, s50, s52
    s_mul_i32 s62, s56, 10""")
for n in range(8):
    a(f"""    s_add_u32 s52, s57, {n}
    s_and_b32 s52, s52, 7
    s_mul_i32 s52, s52, s58
    v_add_u32 v{128+n}, s52, v{8 + (n & 1)}
    v_add_u32 v{136+n}, s52, v{8 + (n & 1)}""")
    dma(n, 1)
a("    s_add_u32 s51, s51, s55")
for n in range(8, 16): dma(n, 1)
a.label("L_pfirst")
st8(1)
mk_ws()
k2_setup()
a(f"""    v_mov_b32 v144, {L_CNT}
    s_mov_b32 s60, 0
    s_branch L_pnext
L_ploop:""")
if opt["nt"] in (1, 2):
    a(f"    s_cmp_eq_u32 s{sW}, 6\n    s_cbranch_scc0 L_ploopx")
    for n in range(16):
        if n == 8: a("    s_add_u32 s51, s51, s55")
        dma(n, 1)
    a("    s_branch L_pnext\nL_ploopx:")
for n in range(16):
    if n == 8: a("    s_add_u32 s51, s51, s55")
    if opt["eb"] and n == opt["eb"]:
        a(f"""    s_cmp_lg_u32 s60, 1
    s_cbranch_scc1 L_peb
    s_waitcnt vmcnt({n})
    s_barrier            ; B_-1
L_peb:""")
    dma(n)
a(f"""L_pnext:
    s_sub_u32 s51, s51, s55
    s_add_u32 s50, s50, s56
    s_add_u32 s63, s63, 1
    s_cmp_eq_u32 s63, 10
    s_cselect_b32 s63, 0, s63
    s_cselect_b32 s52, s62, 0
    s_sub_u32 s50, s50, s52
    s_add_u32 s51, s51, {STG}
    s_cmp_ge_u32 s51, {3*STG}
    s_cselect_b32 s52, {3*STG}, 0
    s_sub_u32 s51, s51, s52
    s_add_u32 s60, s60, 1
    s_cmp_lt_u32 s60, {3 if opt['eb'] else 2}
    s_cbranch_scc1 L_ploop
    s_waitcnt vmcnt(16)
    s_barrier
    s_cmp_lt_u32 s60, 10
    s_cbranch_scc1 L_ploop""")
stamp(0); st8(2)
def wpart(start, cnt, thr=0):
    a(f"""    s_mul_i32 s50, s49, {cnt*1024}
    s_add_u32 s50, s50, {start*1024}
    s_and_b32 s51, s29, 3
    s_lshl_b32 s51, s51, 12""")
    if not opt["wrot"]: a("    s_mov_b32 s51, 0")
    for g in range(4):
        if thr: a(f"    s_waitcnt vmcnt({thr})")
        a(f"""    s_add_u32 m0, s50, s51
    s_add_u32 s52, m0, s24
    s_add_u32 s51, s51, 4096
    s_and_b32 s51, s51, 0x3fff""")
        for i in range(4):
            a(f"    buffer_load_dwordx4 v1, {S(SWS)}, s52 offen offset:{i*1024} sc1 lds")
    if cnt > 16:
        a(f"    s_add_u32 m0, s50, 16384\n    s_add_u32 s52, m0, s24")
        for i in range(cnt - 16):
            a(f"    buffer_load_dwordx4 v1, {S(SWS)}, s52 offen offset:{i*1024} sc1 lds")
T = opt["thr"]
if opt["lnd"]:
    a(f"""    v_mov_b32 v144, {L_CNT}
{'' if opt['el'] else '    s_sleep %d' % opt['lnd']}
    ds_read_b32 v145, v144 offset:{O_WOK}
    s_waitcnt lgkmcnt(0)
    v_cmp_eq_u32 vcc, 0, v145
    s_cbranch_vccnz L_lnd0""")
    own_slot(0); own_slot(1)
    a("    s_waitcnt vmcnt(10)")
    lds_add(O_LAND, 144, 145)
    a("    s_branch L_lnd1\nL_lnd0:")
a("    s_waitcnt vmcnt(0)")
lds_add(O_LAND, 144, 145)
lds_spin("wok", O_WOK, 1, 144, 145)
if opt["lnd"]:
    own_slot(0); own_slot(1)
    a("L_lnd1:")
SCH = ["A o0 o1 r4 B X t o2 r8 o3 dr u C o4 o5 T",
       "A o0 o1 r4 B X o2 r8 t C o3 o4 o5 T",
       "A o0 o1 r4 B X r8 t C o2 dr u o3 o4 o5 T",
       "A o0 r4 B X o1 r8 t o2 C dr u o3 o4 o5 T",
       "A o0 o1 r4 B X r8 dr C o2 o3 o4 o5 T",
       "A o0 o1 r4 B X o2 r8 C o3 o4 o5 T",
       "A X o0 o1 r4 B r8 t C o2 o3 T dr u o4 o5",
       "A o0 o1 r4 B X t o2 r8 o3 pd u C o4 o5 T",
       "A o0 o1 r4 B X r8 pd C o2 o3 o4 o5 T",
       "A X o0 r8 pd B C o1 o2 o3 o4 o5 W25 T",
       "A X o0 o1 r8 pd B C o2 o3 o4 o5 W20 T",
       "A X r4 B r8 pd C o0 o1 o2 o3 o4 o5 W30 T",
       "A X o0 r8 T pd B C o1 o2 o3 o4 o5 W25",
       "A X r8 pd B C o0 o1 o2 o3 o4 o5 W30 T",
       "A o0 o1 r4 t B X r8 pd u C o2 o3 o4 o5 T",
       "A o0 o1 X o2 r4 t B r8 pd u C o3 o4 o5 T",
       "A o0 o1 X o2 o3 r4 t B r8 C pd u o4 o5 T",
       "A o0 o1 X r4 t B r8 o2 pd u C o3 o4 o5 W15 T"][opt["sch"]]
def run_sched(sch, tag):
    thr = 0; young = None
    for tok in sch.split():
        n = 0
        if tok == "t": thr = T
        elif tok == "u": thr = 0
        elif tok == "A": wpart(48, 16, thr); n = 16
        elif tok == "B": a("    s_waitcnt vmcnt(40)"); wpart(96, 18, thr); n = 18
        elif tok == "C": a("    s_waitcnt vmcnt(40)"); wpart(0, 16, thr); n = 16
        elif tok == "X": x_init_load(); young = 0
        elif tok[0] == "o": own_w(int(tok[1]), int(tok[1]) + 1, thr); n = 5
        elif tok == "r4": lds_spin(tag + "r4", O_REL, 4, 144, 145)
        elif tok == "r8":
            lds_spin(tag + "r8", O_REL, 8, 144, 145); stamp(1); a("    s_setprio 0")
        elif tok == "dr": lds_spin(tag + "dr", O_CNT, 4, 144, 145)
        elif tok == "pd":
            a(f"    s_cmp_eq_u32 s{sDFT}, 1\n    s_cbranch_scc1 L_{tag}pdd")
            lds_spin(tag + "pd", O_CNT, 4, 144, 145)
        elif tok == "p0": a("    s_setprio 0")
        elif tok[0] == "W":
            a(f"    s_waitcnt vmcnt({tok[1:]})"); lds_add(O_WL, 144, 145)
        elif tok == "T": trig_rows(min(young, 63))
        if young is not None: young += n
if opt["lnd"]: SCH = SCH.replace("o0 ", "").replace("o1 ", "")
run_sched(SCH, "p")
a("    s_branch L_pown")

a.label("L_serv")
a(f"""    s_lshr_b32 s53, s2, 2
    s_and_b32 s54, s2, 3
    s_mul_i32 s51, s53, {32*1280}
    s_mul_i32 s52, s54, 320
    s_add_u32 s51, s51, s52
    s_cmp_ge_u32 s2, 216
    s_cselect_b32 s51, 0x40000000, s51
    s_mov_b32 s56, 3277""")
for q in range(10):
    a(f"""    v_add_u32 v6, {64*q}, v0
    v_mul_u32_u24 v7, s56, v6
    v_lshrrev_b32 v7, 16, v7
    v_mul_u32_u24 v8, 20, v7
    v_sub_u32 v6, v6, v8
    v_mul_u32_u24 v7, 1280, v7
    v_lshl_add_u32 v{88+q}, v6, 4, v7""")
a(f"""    ; column sums: k32-step (m & 1) of matrix (m >> 1) & 1 in the first five stages, on the matrix core
    v_mov_b32 v60, 0x3f803f80
    v_mov_b32 v61, v60
    v_mov_b32 v62, v60
    v_mov_b32 v63, v60
    v_lshrrev_b32 v3, 4, v0
    v_bfe_u32 v6, v0, 2, 2                ; rho
    v_and_b32 v7, 3, v0                   ; gamma
    v_lshl_add_u32 v15, v3, 2, v6
    v_mul_u32_u24 v15, 320, v15
    v_lshl_add_u32 v15, v7, 3, v15
    v_add_u32 v15, {L_SCR}, v15
    s_and_b32 s57, s{sMI}, 1
    s_lshr_b32 s58, s{sMI}, 1
    s_lshl_b32 s52, s58, 13
    s_add_u32 s52, s52, 32768
    s_cmp_eq_u32 s{sDFT}, 1
    s_cbranch_scc1 L_sa_d
    v_lshl_add_u32 v5, v3, 3, v6
    v_lshlrev_b32 v5, 7, v5
    v_lshl_add_u32 v5, v7, 3, v5
    v_lshrrev_b32 v6, 1, v6
    v_and_b32 v7, 1, v3
    v_lshl_add_u32 v6, v7, 1, v6
    v_lshl_add_u32 v5, v6, 5, v5
    s_lshl_b32 s57, s57, 12
    s_add_u32 s52, s52, s57
    v_add_u32 v16, s52, v5
    v_xor_b32 v17, 32, v16
    v_xor_b32 v18, 64, v16
    v_xor_b32 v19, 96, v16
    s_branch L_sa_e
L_sa_d:
    s_lshl_b32 s57, s57, 2
    v_add_u32 v7, s57, v3
    v_bfe_u32 v6, v0, 1, 3
    v_xor_b32 v7, v7, v6
    v_and_b32 v6, 15, v0
    v_lshlrev_b32 v5, 7, v6
    v_lshl_add_u32 v5, v7, 4, v5
    v_add_u32 v16, s52, v5
    v_add_u32 v17, 2048, v16
    v_add_u32 v18, 4096, v16
    v_add_u32 v19, 6144, v16
L_sa_e:
    v_lshlrev_b32 v1, 4, v0
    v_lshlrev_b32 v9, 2, v0
    v_add_u32 v9, {L_CNT}, v9
    v_mov_b32 v7, 0
    s_mov_b64 exec, 0xffff
    ds_write_b32 v9, v7
    s_mov_b64 exec, -1
    v_mov_b32 v10, {L_CNT}
    v_mov_b32 v11, 1""")
for r in range(144, 160): a(f"    v_mov_b32 v{r}, 0")
a("    s_waitcnt lgkmcnt(0)")
mk_ws()
a(f"""    s_mov_b32 s47, {WS_EPOCH}
    buffer_load_dword v137, v7, {S(SWS)}, s47 offen sc1""")
if opt["cpf"] == 1:
    a(f"""    s_getpc_b64 s[60:61]
L_pc:
    s_sub_u32 s60, s60, L_pc - {NAME}
    s_subb_u32 s61, s61, 0
    s_lshr_b32 s52, s2, 3
    s_lshl_b32 s52, s52, 10
    v_lshlrev_b32 v6, 7, v0
    v_add_u32 v6, s52, v6
    v_min_u32 v6, L_end - {NAME}, v6
    s_mov_b64 exec, 0xff
    global_load_dword v138, v6, s[60:61]
    s_mov_b64 exec, -1""")
if opt["tlb"]:
    mk_out()
    if opt["tlb"] == 1:
        a(f"""    v_lshlrev_b32 v6, 21, v0
    v_add_u32 v6, 0x1fff80, v6
    s_mov_b64 exec, 0xff
    buffer_load_dword v139, v6, {S(SWS)}, 0 offen sc1
    s_mov_b64 exec, 3
    v_lshlrev_b32 v6, 21, v0
    buffer_load_dword v140, v6, {S(SOUT)}, 0 offen
    s_mov_b64 exec, -1""")
    else:
        a(f"""    s_lshr_b32 s52, s2, 3
    s_lshl_b32 s52, s52, 3
    v_add_u32 v6, s52, v0
    v_lshlrev_b32 v6, 16, v6
    v_add_u32 v6, 0xff80, v6
    s_mov_b64 exec, 0xff
    buffer_load_dword v139, v6, {S(SWS)}, 0 offen sc1
    s_lshr_b32 s52, s2, 3
    s_lshl_b32 s52, s52, 1
    v_add_u32 v6, s52, v0
    v_lshlrev_b32 v6, 16, v6
    s_mov_b64 exec, 3
    buffer_load_dword v140, v6, {S(SOUT)}, 0 offen
    s_mov_b64 exec, -1""")
mk_wd()
def cs_pass(j):
    if opt["ex"] == 11: return
    a(f"    s_cmp_eq_u32 s{sDFT}, 1\n    s_cbranch_scc1 L_cs{j}_d")
    for i in range(4):
        a(f"    ds_read_b64_tr_b16 {P2(64+4*i)}, v{16+i}")
        a(f"    ds_read_b64_tr_b16 {P2(66+4*i)}, v{16+i} offset:512")
    a(f"    s_branch L_cs{j}_e\nL_cs{j}_d:")
    for i in range(4): a(f"    ds_read_b128 {V(64+4*i)}, v{16+i}")
    d = STG if j % 3 != 2 else -2 * STG
    a(f"L_cs{j}_e:\n    s_mov_b32 s52, {d}")
    for i in range(4): a(f"    v_add_u32 v{16+i}, s52, v{16+i}")
    a("    s_waitcnt lgkmcnt(0)")
    for i in range(4 if opt["ex"] != 10 else 0): a(mfma(144 + 4 * i, 64 + 4 * i, 60))
k2_setup()
a(f"""    s_lshl_b32 s8, s54, 6
    s_add_u32 s8, s8, s53
    s_lshl_b32 s8, s8, 7
    s_add_u32 s8, s8, {WS_EF}
    s_lshl_b32 s11, s{sNT}, 3
    s_add_u32 s11, s11, s{sM}
    s_lshl_b32 s11, s11, 9
    s_lshl_b32 s58, s58, 8
    s_add_u32 s11, s11, s58
    s_add_u32 s11, s11, {WS_CSP}
    v_and_b32 v173, 48, v0
    s_lshl_b32 s9, s{sM}, 5
    s_and_b32 s52, s9, {0x60 if opt['es2'] else 0xe0}
    v_add_u32 v171, s52, v0
    v_add_u32 v171, {(WS_SF - WS_F2) // 128 if opt['sf'] else 0}, v171
    v_and_b32 v170, 7, v0
    v_lshlrev_b32 v170, 5, v170
    v_add_u32 v170, s{sNT}, v170
    v_cmp_gt_u32 vcc, 32, v0
    s_add_u32 s9, s9, s{sNT}
    s_lshl_b32 s9, s9, 7
    v_cndmask_b32 v171, v170, v171, vcc
    v_lshlrev_b32 v171, 7, v171
    v_min_u32 v170, 53, v0
    v_lshlrev_b32 v170, 7, v170
    s_add_u32 s13, s9, {WS_SF}
    s_add_u32 s9, s9, {WS_F2}
    s_lshr_b32 s10, s{sJ2}, 1
    s_lshl_b32 s10, s10, 13
    s_add_u32 s10, s10, {WS_EF}
    s_mul_i32 s12, s54, {2*WFT}
    s_mul_i32 s52, s53, 5120
    s_add_u32 s12, s12, s52
    s_add_u32 s12, s12, {WS_WF}
    s_cmp_ge_u32 s2, 216
    s_cselect_b32 s12, 0x40000000, s12
    v_mov_b32 v174, {L_CNT}
    v_mov_b32 v175, 1""")
def wd_dma(q0=0, q1=10):
    for q in range(q0, q1):
        a(f"    s_mov_b32 m0, {L_SCR + q*1024}\n    s_nop 0\n    buffer_load_dwordx4 v{88+q}, {S(SWD)}, s51 offen{' nt' if opt['wdnt'] else ''} lds")
def tag_up():
    a(f"""    s_waitcnt vmcnt(0)
    v_add_u32 v172, 1, v137
    ds_write_b32 v174, v172 offset:{O_TAG}
    v_readfirstlane_b32 s47, v172""")
def wf_read():
    a("    s_waitcnt vmcnt(0)")
    for jj in range(2):
        for nb in range(5):
            r = 88 + 4 * (5 * jj + nb); o = jj * 160 + nb * 32
            a(f"    ds_read_b64_tr_b16 v[{r}:{r+1}], v15 offset:{o}")
            a(f"    ds_read_b64_tr_b16 v[{r+2}:{r+3}], v15 offset:{o+5120}")
    a("    s_waitcnt lgkmcnt(0)")
def wf_store(i0, i1):
    for i in range(i0, i1):
        jj, nb = divmod(i, 5)
        a(f"    s_add_u32 s52, s12, {jj*WFT + (nb & 4)*1024}\n    buffer_store_dwordx4 {V(88+4*i)}, v1, {S(SWS)}, s52 offen offset:{(nb & 3)*1024} sc1")
def flag(sr):
    a(f"""    s_waitcnt vmcnt(0)
    s_mov_b64 exec, 1
    buffer_store_dword v172, v7, {S(SWS)}, s{sr} offen sc1
    s_mov_b64 exec, -1""")
def cs_store():
    a("    s_nop 7\n    s_mov_b32 exec_lo, 0x00010001\n    s_mov_b32 exec_hi, 0x00010001")
    for i in range(4): a(f"    buffer_store_dwordx4 {V(144+4*i)}, v173, {S(SWS)}, s11 offen offset:{i*64} sc1")
    a("    s_mov_b64 exec, -1")
PLAN = ["cD|c|cRa|cb|cES|F|", "Tc|XcD|c|cRab|cES|F|", "Tc|c|cD|c|cSRa|bF|E", "Tc|c|c|cD|cS|FRab|E", "cd|ce|c|cRa|cSb|EF|",
        "Tc|cD|c|cRa|cSb|EF|", "Tc|c|cd|ce|cS|FRab|E"][opt["wdt"]].split("|")
did_tag = False
for j, tasks in enumerate(PLAN):
    bar(f"B_{j-1}", j)
    for t in tasks:
        if t == "c": cs_pass(j)
        elif t == "T": tag_up(); did_tag = True
        elif t == "D": wd_dma()
        elif t == "d": wd_dma(0, 5)
        elif t == "e": wd_dma(5, 10)
        elif t == "R":
            if not did_tag: tag_up(); did_tag = True
            wf_read()
        elif t == "a": wf_store(0, 5)
        elif t == "b": wf_store(5, 10)
        elif t == "E": flag(8)
        elif t == "F": flag(9)
        elif t == "X" and opt["sf"]: flag(13)
        elif t == "S": cs_store()
a("    s_mov_b32 s51, s10")
bar("B_6", 7)
a(f"""    s_mov_b32 s50, {WS_F2}
    buffer_load_dword v5, v170, {S(SWS)}, s51 offen sc1
    buffer_load_dword v6, v171, {S(SWS)}, s50 offen sc1""")
bar("B_7", 8)
stamp(0)
a(f"""    s_waitcnt vmcnt(0)
    v_cmp_ne_u32 s[58:59], s47, v5
    v_cmp_ne_u32 vcc, s47, v6
    s_cbranch_vccz L_p3d
    s_cmp_lg_u64 s[58:59], 0
    s_cbranch_scc1 L_p3w
    ds_write_b32 v174, v175 offset:{O_WOK}
L_p3w:""")
poll("p3", 171, "s50", 6, "s47", 3)
a(f"""    v_lshlrev_b32 v6, 3, v0
    v_lshrrev_b32 v5, 5, v0
    v_lshl_add_u32 v5, v5, 10, v6
    s_lshl_b32 s50, s{sM}, 11
    s_lshl_b32 s52, s{sNT}, 12
    s_add_u32 s52, s52, {WS_CSP}""")
for n in range(4):
    a(f"    buffer_load_dwordx2 v[{128+4*n}:{129+4*n}], v6, {S(SWS)}, s50 offen offset:{n*512} sc1")
for n in range(4):
    a(f"    buffer_load_dwordx2 {P2(144+2*n)}, v5, {S(SWS)}, s52 offen offset:{(n>>1)*2048+(n&1)*512} sc1")
a(f"""    s_cmp_eq_u64 s[58:59], 0
    s_cbranch_scc1 L_p1d""")
poll("p1", 170, "s51", 5, "s47", 3)
a(f"    ds_write_b32 v174, v175 offset:{O_WOK}")
a(f"    s_waitcnt vmcnt(0)")
for n in range(4): a(f"    v_rsq_f32 v{152+n}, v{129+4*n}")
for n in range(1, 4): a(f"    v_add_f32 v144, v144, v{144+2*n}\n    v_add_f32 v145, v145, v{145+2*n}")
a(f"""    v_add_u32 v6, {L_CS}, v6
    ds_write_b64 v6, v[144:145]
    s_cmp_eq_u32 s{sDFT}, 1
    s_cbranch_scc1 L_serv_cdft
    v_add_u32 v6, {L_STAT}, v1""")
for n in range(4):
    b = 128 + 4 * n
    a(f"""    v_mov_b32 v{b+3}, v{b+1}
    v_mul_f32 v156, v{152+n}, v{152+n}
    v_xor_b32 v{b}, 0x80000000, v{b}
    v_mul_f32 v{b+1}, {f2u(-K1C):#x}, v{152+n}
    v_mul_f32 v156, v156, v{152+n}
    v_mul_f32 v{b+2}, {f2u(-K2C):#x}, v156
    ds_write_b128 v6, {V(b)} offset:{n*1024}""")
a(f"""    s_branch L_serv_cd
L_serv_cdft:
    v_lshlrev_b32 v6, 2, v0
    v_add_u32 v6, {L_STAT}, v6""")
for n in range(4):
    b = 128 + 4 * n
    a(f"""    v_mul_f32 v{b}, v{b}, v{152+n}
    v_xor_b32 v{b}, 0x80000000, v{b}
    ds_write_b32 v6, v{152+n} offset:{n*256}
    ds_write_b32 v6, v{b} offset:{1024+n*256}""")
a(f"""L_serv_cd:
    ds_write_b32 v174, v175 offset:{O_RDY}""")
stamp(1)
a("    s_waitcnt lgkmcnt(0)")
SSCH = ["X o0 o1 o2 o3 p0 t o4 o5 pd T", "X o0 o1 o2 o3 p0 T t o4 o5 pd", "X o0 o1 o2 o3 o4 o5 T p0 pd", "X o0 o1 T p0 t o2 o3 o4 o5 pd", "X o0 p0 T pd", "X o0 o1 p0 T pd", "X p0 T pd", "X o0 o1 p0 T t o2 o3 pd"][opt["ssch"]]
SREST = [sl for sl in range(6) if f"o{sl}" not in SSCH]
run_sched(SSCH, "s")

def item(vit, va, vg, t0):
    t1, t2 = t0 + 1, t0 + 2
    a(f"""    v_mul_u32_u24 v{t0}, s50, v{vit}
    v_lshrrev_b32 v{t0}, 16, v{t0}
    v_mul_u32_u24 v{t1}, 20, v{t0}
    v_sub_u32 v{t1}, v{vit}, v{t1}
    v_and_b32 v{vg}, 31, v{t0}
    v_lshlrev_b32 v{vg}, 6, v{vg}
    v_and_b32 v{t2}, 32, v{t0}
    v_add3_u32 v{vg}, v{vg}, v{t2}, s{sT1}
    v_mul_u32_u24 v{vg}, 1280, v{vg}
    v_lshl_add_u32 v{vg}, v{t1}, 3, v{vg}
    v_mul_u32_u24 v{va}, {PSTR}, v{t0}
    v_lshl_add_u32 v{va}, v{t1}, 3, v{va}""")
def fin_addr(tb):
    a(f"""    s_mov_b32 s50, 3277
    s_lshl_b32 s51, s{sW}, 7
    v_add_u32 v{tb}, s51, v0""")
    item(tb, 4, 6, tb + 1)
    a(f"    v_add_u32 v{tb}, 64, v{tb}")
    item(tb, 5, 7, tb + 1)
    a(f"    s_mul_i32 s59, s{sJ2}, 160")
    mk_out()
def x_loads(r):
    a(f"""    buffer_load_dwordx4 {V(r)}, v6, {S(SX)}, s59 offen
    s_mov_b64 exec, 0xffff
    buffer_load_dwordx4 {V(r+4)}, v7, {S(SX)}, s59 offen
    s_mov_b64 exec, -1""")
def part_addr(t0):
    a(f"""    v_and_b32 v{t0}, 15, v0
    v_lshrrev_b32 v{t0+1}, 4, v0
    v_mul_u32_u24 v{t0}, {PSTR}, v{t0}
    v_lshl_add_u32 v{t0}, v{t0+1}, 3, v{t0}""")
def capture(fn):
    n0 = len(a.lines); fn(); out = a.lines[n0:]; del a.lines[n0:]; return out
def k2_mfma(wbase, hbase, fill=(), start=0):
    fill = list(fill); k = 0
    for nb in range(5):
        for ts in range(4):
            a(mfma(ACC2 + 4 * (nb * 4 + ts), wbase + 4 * nb, hbase + 4 * ts))
            if k >= start and fill: a(fill.pop(0))
            k += 1
    for l in fill: a(l)
def h_load(hbase, cnt, n, oob=None, base=61):
    a(f"    s_lshl_b32 s52, s{cnt}, 17\n    s_add_u32 s52, s52, s{base}")
    if oob: a(oob)
    if opt["ex"] == 20: a("    s_mov_b32 s52, 0x40000000")
    for ts in range(4):
        a(f"    buffer_load_dwordx4 {V(hbase+4*ts)}, v1, {S(SWS)}, s52 offen offset:{ts*1024} sc1")
    rot_next(cnt, n)
def put(nb, ts, t, pr=None):
    d = ACC2 + 4 * (nb * 4 + ts)
    if pr is not None:
        a(f"""    v_lshlrev_b32 v{t}, 16, v{pr}
    v_and_b32 v{t+1}, 0xffff0000, v{pr}
    v_lshlrev_b32 v{t+2}, 16, v{pr+1}
    v_and_b32 v{t+3}, 0xffff0000, v{pr+1}""")
        for i in range(4): a(f"    v_add_f32 v{d+i}, v{d+i}, v{t+i}")
    a(f"""    v_cvt_pk_bf16_f32 v{d}, v{d}, v{d+1}
    v_cvt_pk_bf16_f32 v{d+1}, v{d+2}, v{d+3}
    ds_write_b64 v2, {P2(d)} offset:{ts*16*PSTR+nb*32}""")
def tail(steps, t, PR=None):
    for nb in range(5):
        i = 0
        if nb == 1 and PR: a("    s_waitcnt lgkmcnt(0)")
        for wb, hb in steps:
            for ts in range(4):
                a(mfma(ACC2 + 4 * (nb * 4 + ts), wb + 4 * nb, hb + 4 * ts))
                i += 1
                if nb and i >= 5: put(nb - 1, i - 5, t, PR(nb - 1, i - 5) if PR else None)
    stamp(5); st3(7)
    a("    s_nop 7")
    for ts in range(4): put(4, ts, t, PR(4, ts) if PR else None)

K2ON[0] = True
a.label("L_pown")
a(f"    v_mov_b32 v160, {L_CNT}\n    ds_read_b32 v161, v160 offset:{O_TAG}")
fin_addr(144)
a(f"""    s_mul_i32 s52, s{sJ2}, 80
    v_add_u32 v2, s52, v2             ; e (nb = 0)
    v_mul_u32_u24 v3, 5120, v3
    s_xor_b32 s56, s{sT1}, s58
    s_add_u32 s56, s56, s57
    s_and_b32 s56, s56, 31
    s_mul_i32 s56, s56, 81920
    s_mul_i32 s52, s49, {4*5120}
    s_add_u32 s56, s56, s52
    s_add_u32 s56, s56, {WS_G}
    s_cmp_ge_u32 s{sJ2}, 4
    s_cselect_b32 s57, 640, -1
    s_waitcnt lgkmcnt(0)
    v_readfirstlane_b32 s47, v161
    s_cmp_eq_u32 s{sW}, 7
    s_cbranch_scc1 L_sv2""")
if "W" not in SCH:
    a("    s_waitcnt vmcnt(0)")
    lds_add(O_WL, 144, 145)
stamp(4)
lds_spin("s1", O_S1, 1, 144, 145)
a(f"""    s_branch L_k2p
L_sv2:
"""[:-1])
a(f"""    s_lshr_b32 s50, s{sT1}, 2
    s_lshl_b32 s50, s50, 5
    v_min_u32 v144, 26, v0
    v_add_u32 v144, s50, v144
    v_lshlrev_b32 v144, 7, v144
    s_mov_b32 s50, {WS_FLAGS}""")
stamp(2)
if opt["slp"]: a(f"    s_sleep {opt['slp']}")
poll("p2", 144, "s50", 145, "s47", opt["pslp"])
stamp(4)
a(f"""    v_mov_b32 v145, 1
    ds_write_b32 v160, v145 offset:{O_S1}""")
for sl in SREST: own_slot(sl)
a("L_k2p:")
stamp(3); st3(0)
hl = [144, 160, 8, 144, 28, 160] if opt["il2"] else [144, 160, 144, 8, 160, 28]
a(f"    s_setprio {opt['pp']}")
def ph(i): h_load(hl[i], 28, 6, base=26)
def block_with_loads(wb, hb, i0, pre=()):
    if not opt["il2"]:
        k2_mfma(wb, hb)
        for l in pre: a(l)
        ph(i0); ph(i0 + 1)
        return
    A, B = capture(lambda: ph(i0)), capture(lambda: ph(i0 + 1))
    B = [l.replace("s52", "s53") for l in B]
    if opt["ex"] == 20: A = [A[0], A[2]] + A[3:]; B = [B[0], B[2]] + B[3:]
    slots = {0: A[0:1], 1: A[1:2], 2: list(pre), 4: A[2:3], 5: A[6:7], 6: A[7:8], 7: A[8:9], 8: A[3:4], 9: B[0:1], 10: B[1:2], 12: A[4:5],
             13: B[6:7], 14: B[7:8], 15: B[8:9], 16: A[5:6] + B[2:3], 17: B[3:4], 18: B[4:5], 19: B[5:6]}
    k = 0
    for nb in range(5):
        for ts in range(4):
            a(mfma(ACC2 + 4 * (nb * 4 + ts), wb + 4 * nb, hb + 4 * ts))
            for l in slots.get(k, []): a(l)
            k += 1
ph(0); ph(1)
a(f"""    s_sub_u32 s50, 7, s{sJ2}
    s_min_u32 s50, s50, s{sJ2}
    s_add_u32 s51, s50, 27
    s_mov_b32 s50, {WS_FLAGS}
    s_waitcnt vmcnt(4)""")
st3(1)
block_with_loads(8, hl[0], 2)
a(f"""    v_and_b32 v24, 7, v0
    v_lshlrev_b32 v24, 5, v24
    v_bfe_u32 v25, v0, 3, 1
    v_add3_u32 v24, v24, v25, s51
    v_lshlrev_b32 v24, 7, v24
    s_waitcnt vmcnt(8)""")
st3(2)
block_with_loads(28, hl[1], 4, [f"    buffer_load_dword v25, v24, {S(SWS)}, s50 offen sc1"])
a(f"    s_setprio {opt['pp2']}\n    s_waitcnt vmcnt(13)")
st3(3)
k2_mfma(48, hl[2])
a(f"""    s_waitcnt vmcnt(8)
    v_cmp_ne_u32 vcc, s47, v25
    s_cbranch_vccz L_pgd""")
GT = hl[2]
poll("pg", 24, "s50", 25, "s47", 2)
for nb in range(5):
    a(f"""    v_add_u32 v{GT}, {16*nb}, v2
    v_xor_b32 v{GT+1}, s58, v{GT}
    v_add_u32 v{GT+1}, s57, v{GT+1}
    v_lshl_add_u32 v{GT+1}, v{GT+1}, 4, v3""")
    if nb == 0:
        a(f"""    v_cmp_eq_u32 vcc, 0, v{GT}
    v_mov_b32 v{GT+2}, 0x40000000
    s_nop 0
    v_cndmask_b32 v{GT+1}, v{GT+1}, v{GT+2}, vcc""")
    a(f"    buffer_load_dwordx4 {V(48+4*nb)}, v{GT+1}, {S(SWS)}, s56 offen sc1")
st3(4)
k2_mfma(68, hl[3])
a("    s_waitcnt vmcnt(9)")
st3(5)
k2_mfma(88, hl[4])
part_addr(16)
a(f"""    s_mul_i32 s50, s49, 40960
    s_cmp_eq_u32 s49, 3
    s_cselect_b32 s50, {PBASE[3]}, s50
    s_add_u32 s50, s50, {64*PSTR}
    v_add_u32 v2, s50, v16
    s_lshl_b32 s50, s49, 2
    s_add_u32 s50, s50, {L_CNT + O_PF}""")
lds_spin("pf", "s50", 1, 16, 17)
a("    s_waitcnt vmcnt(0)")
st3(6)
tail(((108, hl[5]), (48, 128)), 16)
a("    s_branch L_final")

K2ON[0] = False
a.label("L_cons")
sNH, sSH = 47, 49
ESEL2 = f"""    s_cmp_ge_u32 s{sM}, 4
    s_cbranch_scc1 L_ch3
    s_mov_b32 s53, s36
    s_mov_b32 s52, s{sNH}
    s_lshl_b32 s54, s{sSH}, 2
    s_add_u32 s54, s54, s{sM}"""
ESEL = f"""    s_bitcmp1_b32 s36, 1
    s_cbranch_scc1 L_ch3
    s_and_b32 s52, s36, 1
    s_add_u32 s53, s36, s52
    s_add_u32 s53, s53, s{sSH}           ; s1 = 4 j + 2 g + (w >> 1)
    s_mov_b32 s52, s{sNH}""" if opt["es"] else f"""    s_add_u32 s52, s{sW}, 1
    s_and_b32 s52, s52, 2
    s_cmp_eq_u32 s52, 0
    s_cbranch_scc1 L_ch3
    s_sub_u32 s52, s{sW}, 1
    s_mov_b32 s53, s36"""
a(f"""    s_and_b32 s{sNH}, s{sW}, 1
    s_lshr_b32 s{sSH}, s{sW}, 1
    v_and_b32 v2, 15, v0
    v_lshrrev_b32 v3, 4, v0
    v_bfe_u32 v6, v0, 1, 3
    s_lshl_b32 s50, s{sSH}, 14
    v_lshlrev_b32 v1, 7, v2
    v_add_u32 v1, s50, v1
    v_xor_b32 v7, v3, v6
    v_lshl_add_u32 v8, v7, 4, v1
    v_xor_b32 v9, 64, v8
{ESEL2 if opt['es2'] else ESEL}
{'' if opt['es2'] else '    s_mov_b32 s54, s%d' % sM}
    v_mul_u32_u24 v6, 1280, v3
    v_lshl_add_u32 v6, v2, 4, v6
    s_lshl_b32 s50, s53, 6
    s_lshl_b32 s51, s52, 5
    s_add_u32 s50, s50, s51
    s_lshl_b32 s51, s54, 2
    s_add_u32 s50, s50, s51
    s_mul_i32 s50, s50, 1280
    s_waitcnt lgkmcnt(0)""")
mk_x()
for j in range(5): a(f"    buffer_load_dwordx4 {V(16+4*j)}, v6, {S(SX)}, s50 offen offset:{j*256}")
mk_ws()
for r in range(128, 256): a(f"    v_mov_b32 v{r}, 0")
for r in range(40, 48): a(f"    v_mov_b32 v{r}, 0")
a(f"""    s_lshl_b32 s50, s54, 11
    s_lshl_b32 s51, s52, 10
    s_add_u32 s50, s50, s51
    s_lshl_b32 s51, s53, 3
    s_add_u32 s50, s50, s51
    v_lshlrev_b32 v4, 8, v3
    s_waitcnt vmcnt(0)
    v_lshlrev_b32 v36, 16, v16
    s_nop 1
    v_mov_b32_dpp v36, v36 row_newbcast:0 row_mask:0xf bank_mask:0xf""")
for g in range(0, 20, 4):
    for i in range(g, g + 4): a(f"    v_lshlrev_b32 v{48+2*(i&3)}, 16, v{16+i}\n    v_and_b32 v{49+2*(i&3)}, 0xffff0000, v{16+i}")
    for i in range(g, g + 4): a(f"    v_pk_add_f32 {P2(48+2*(i&3))}, {P2(48+2*(i&3))}, v[36:37] op_sel_hi:[1,0] neg_lo:[0,1] neg_hi:[0,1]")
    for i in range(g, g + 4): a(f"    v_pk_add_f32 {P2(40+2*(i&1))}, {P2(40+2*(i&1))}, {P2(48+2*(i&3))}")
    for i in range(g, g + 4): a(f"    v_pk_fma_f32 {P2(44+2*(i&1))}, {P2(48+2*(i&3))}, {P2(48+2*(i&3))}, {P2(44+2*(i&1))}")
a("""    v_pk_add_f32 v[40:41], v[40:41], v[42:43]
    v_pk_add_f32 v[44:45], v[44:45], v[46:47]
    v_add_f32 v40, v40, v41
    v_add_f32 v44, v44, v45""")
for mode in ("quad_perm:[1,0,3,2]", "quad_perm:[2,3,0,1]", "row_half_mirror", "row_mirror"):
    a("    s_nop 1")
    for r in (40, 44): a(f"    v_add_f32_dpp v{r}, v{r}, v{r} {mode} row_mask:0xf bank_mask:0xf")
a(f"""    v_mul_f32 v40, {f2u(1/640):#x}, v40
    v_mov_b32 v39, {f2u(1e-5):#x}
    v_fmac_f32 v39, {f2u(1/640):#x}, v44
    v_add_f32 v38, v40, v36
    v_fma_f32 v39, -v40, v40, v39
    v_max_f32 v39, {f2u(1e-5):#x}, v39
    s_mov_b32 exec_lo, 0x00010001
    s_mov_b32 exec_hi, 0x00010001
    buffer_store_dwordx2 v[38:39], v4, {S(SWS)}, s50 offen sc1
    s_mov_b64 exec, -1
    s_branch L_chd
L_ch3:
    s_waitcnt lgkmcnt(0)""")
if opt["tch"] & 1:
    a(f"    s_cmp_lg_u32 s{sW}, 0\n    s_cbranch_scc1 L_nt")
    w_touch(1, opt["tch"] & 2, 6, 127, 50)
    a("L_nt:")
mk_ws()
for r in range(128, 256): a(f"    v_mov_b32 v{r}, 0")
a(f"""L_chd:
    s_mov_b32 s60, 10
    s_mov_b32 s61, 0
    v_mov_b32 v120, {L_CNT}
    v_mov_b32 v121, 1
    s_cmp_eq_u32 s{sDFT}, 1
    s_cbranch_scc1 L_cdft""")

XF = 16
WF = [48, 64]
def acc(i, st): return 128 + 16 * st + 4 * i
def xr(st, kk): return f"    ds_read_b128 {V(XF+4*st)}, v{8+kk} offset:{st*2048}"
def wr(dft, kk):
    b = WF[kk]
    if dft: return [[f"    ds_read_b128 {V(b+4*i)}, v{12+kk} offset:{(i>>1)*8192+(i&1)*2048}"] for i in range(4)]
    return [[f"    ds_read_b64_tr_b16 {P2(b+4*i)}, v{12+(i&1)} offset:{kk*4096+(i>>1)*8192}",
             f"    ds_read_b64_tr_b16 {P2(b+4*i+2)}, v{12+(i&1)} offset:{kk*4096+(i>>1)*8192+512}"] for i in range(4)]
def main_loop(dft, tag):
    nw = 1 if dft else 2
    stamp(8); st8(0)
    bar("B_-1")
    stamp(0); st8(1)
    W = wr(dft, 0)
    for st in range(8):
        if opt["bst"] <= st < opt["bst"] + 4:
            for r in W[st - opt["bst"]]: a(r)
        a(xr(st, 0))
    a(".p2align 3")
    a.label(f"L_{tag}_loop")
    last = 1 if opt['fin'] and not dft else 0
    gaps = {(0, 4, 0): "    s_add_u32 s61, s61, 1", (0, 4, 1): "    s_cmp_eq_u32 s61, 3", (0, 4, 2): f"    s_cselect_b32 s62, {-3*STG}, 0",
            (0, 5, 0): "    s_cselect_b32 s61, 0, s61", (0, 5, 1): f"    s_add_u32 s62, s62, {STG}", (0, 5, 2): "    v_add_u32 v8, s62, v8",
            (0, 6, 0): "    v_add_u32 v12, s62, v12", (0, 6, 1): "    v_add_u32 v13, s62, v13", (0, 6, 2): "    s_sub_u32 s60, s60, 1",
            (1, 0, 0): "    v_add_u32 v9, s62, v9", (1, 0, 1): "    s_cmp_le_u32 s60, 1",
            (1, 7, 2): f"    s_cmp_lg_u32 s60, {last}"}
    BST = opt["bst"]
    for kk in range(2):
        W = wr(dft, 1 - kk)
        for st in range(8):
            if st == 0: a(f"    s_waitcnt lgkmcnt({(4 - BST) if kk == 0 else 5})")
            if st == 4 and kk == 0: a(f"    s_waitcnt lgkmcnt({4 + 4*nw})")
            if kk == 1 and st == BST:
                a(f"""    s_cbranch_scc1 L_{tag}_rel
    s_waitcnt vmcnt(0) lgkmcnt(0)
    s_barrier
L_{tag}_reld:""")
                for q in range(BST): a(xr(q, 0))
            ex = []
            if kk == 0: ex = [xr(st, 1)] + (W[st] if st < 4 else [])
            elif st >= BST: ex = [xr(st, 0)] + (W[st - BST] if st < BST + 4 else [])
            for i in range(4):
                w, x = WF[kk] + 4 * i, XF + 4 * st
                a(mfma(acc(i, st), x, w) if dft else mfma(acc(i, st), w, x))
                if i == 3: a(ex[0]) if ex else None
                elif i < len(ex) - 1: a(ex[1 + i])
                if (kk, st, i) in gaps: a(gaps[(kk, st, i)])
            if kk == 0 and st == 7: a(f"    ds_read_b32 v122, v120 offset:{O_LAND}")
    a(f"""    s_cbranch_scc1 L_{tag}_loop
    s_branch L_{tag}_epi
L_{tag}_rel:
    s_mov_b32 s62, 0
    s_waitcnt lgkmcnt(0)
    s_mov_b64 exec, 1
    ds_add_u32 v120, v121 offset:{O_REL}
    s_mov_b64 exec, -1
L_{tag}_land:
    v_cmp_gt_u32 vcc, 3, v122
    s_cbranch_vccz L_{tag}_reld
    ds_read_b32 v122, v120 offset:{O_LAND}
    s_add_u32 s62, s62, 1
    s_waitcnt lgkmcnt(0)
    s_cmp_lt_u32 s62, 0x400000
    s_cbranch_scc1 L_{tag}_land
    s_branch L_{tag}_reld
L_{tag}_epi:""")
    stamp(1); st8(2); st9(0)
    if opt["fin"] and not dft:
        for r in wr(False, 1):
            for q in r: a(q)
        a(f"    ds_read_b128 {V(80)}, v9 offset:0")
        a(f"    s_waitcnt lgkmcnt({13 - opt['bst']})")
        for i in range(4): a(mfma(acc(i, 0), WF[0] + 4 * i, XF))
    a("    s_setprio 3\n    s_mov_b32 s60, 0")
    a.label(f"L_{tag}_rdy")
    a(f"    ds_read_b32 v122, v120 offset:{O_RDY}\n    ds_read_b32 v123, v120 offset:{O_TAG}")
def rdy_check(tag, n):
    a(f"""    s_waitcnt lgkmcnt({n})
    v_cmp_eq_u32 vcc, 0, v122
    s_add_u32 s60, s60, 1
    s_cbranch_vccz L_{tag}_go
    s_cmp_lt_u32 s60, 0x400000
    s_cbranch_scc1 L_{tag}_rdy
L_{tag}_go:""")

a(f"""    v_bfe_u32 v6, v0, 2, 2            ; rho
    v_lshl_add_u32 v7, v3, 3, v6
    v_lshlrev_b32 v12, 7, v7
    v_and_b32 v7, 3, v0
    v_lshl_add_u32 v12, v7, 3, v12
    v_lshrrev_b32 v6, 1, v6
    v_and_b32 v7, 1, v3
    v_lshl_add_u32 v6, v7, 1, v6
    s_lshl_b32 s50, s{sNH}, 1
    v_xor_b32 v6, s50, v6
    v_lshl_add_u32 v12, v6, 5, v12
    v_add_u32 v12, 32768, v12
    v_xor_b32 v13, 32, v12
    s_lshl_b32 s50, s{sNH}, 7
    s_add_u32 s50, s50, {L_CS}
    v_lshl_add_u32 v4, v3, 4, s50
    s_lshl_b32 s51, s{sSH}, 11
    s_add_u32 s51, s51, {L_STAT}
    v_lshl_add_u32 v5, v2, 4, s51
    v_lshlrev_b32 v6, 4, v0
    s_lshl_b32 s50, s{sNT}, 1
    s_add_u32 s50, s50, s{sNH}
    s_lshl_b32 s50, s50, 17
    s_lshl_b32 s51, s{sM}, 14
    s_add_u32 s50, s50, s51
    s_lshl_b32 s51, s{sSH}, 11
    s_add_u32 s50, s50, s51
    s_add_u32 s50, s50, {WS_H}""")
main_loop(False, "cf")
if opt["fin"]:
    CG, RC, Z = 96, 112, 88
    for i in range(4): a(f"    ds_read_b128 {V(CG+4*i)}, v4 offset:{(i>>1)*256+(i&1)*64}")
    a(f"    ds_read_b128 {V(RC)}, v5")
    rdy_check("cf", 0)
    st9(1)
    def mf(st, kk): return [mfma(acc(i, st), WF[kk] + 4 * i, (XF + 4 * st) if kk == 0 else 80 + 4 * (st & 1)) for i in range(4)]
    a(f"    ds_read_b128 {V(84)}, v9 offset:2048")
    for m_ in mf(0, 1): a(m_)
    for st in range(8):
        c0, c1 = P2(RC + 4 * (st & 1)), P2(RC + 2 + 4 * (st & 1))
        A = lambda i: P2(acc(0, st) + 2 * i)
        U = lambda i: P2(acc(2, st) + 2 * i)
        ZZ = lambda i: P2(Z + 2 * i)
        nx = st + 1
        a("    s_waitcnt lgkmcnt(0)")
        if nx < 8: a(f"    ds_read_b128 {V(RC+4*(nx&1))}, v5 offset:{nx*256}")
        if nx < 7: a(f"    ds_read_b128 {V(80+4*(st&1))}, v9 offset:{(nx+1)*2048}")
        if nx == 7:
            a(f"    s_mov_b64 exec, 1\n    ds_add_u32 v120, v121 offset:{O_REL}\n    s_mov_b64 exec, -1")
        if st == 0: a("    s_nop 4")
        for i in range(4): a(f"    v_pk_fma_f32 {A(i)}, {P2(CG+2*i)}, {c0}, {A(i)} op_sel_hi:[1,0,1]")
        for i in range(4): a(f"    v_pk_mul_f32 {ZZ(i)}, {A(i)}, {A(i)}")
        for i in range(4): a(f"    v_pk_fma_f32 {ZZ(i)}, {ZZ(i)}, {c1}, {c0} op_sel:[0,0,1] op_sel_hi:[1,0,1]")
        for i in range(4): a(f"    v_pk_mul_f32 {ZZ(i)}, {ZZ(i)}, {A(i)}")
        for i in range(4): a(f"    v_pk_fma_f32 {U(i)}, {P2(CG+8+2*i)}, {c0}, {U(i)} op_sel_hi:[1,0,1]")
        for i in range(4): a(f"    v_pk_mul_f32 {U(i)}, {U(i)}, {A(i)}")
        m0_ = mf(nx, 0) if nx < 8 else [None] * 4
        m1_ = mf(nx, 1) if nx < 8 else [None] * 4
        for i in range(4):
            if m0_[i]: a(m0_[i])
            a(f"    v_exp_f32 v{Z+2*i}, v{Z+2*i}\n    v_exp_f32 v{Z+2*i+1}, v{Z+2*i+1}")
        if opt["pkd"]:
            for i in range(4): a(f"    v_pk_fma_f32 {ZZ(i)}, {ZZ(i)}, {c1}, {c1} op_sel:[0,1,1] op_sel_hi:[1,1,1]")
        else:
            for i in range(8): a(f"    v_fma_f32 v{Z+i}, v{Z+i}, v{RC+3+4*(st&1)}, v{RC+3+4*(st&1)}")
        for i in range(4):
            if m1_[i]: a(m1_[i])
            a(f"    v_rcp_f32 v{Z+2*i}, v{Z+2*i}\n    v_rcp_f32 v{Z+2*i+1}, v{Z+2*i+1}")
        for i in range(4): a(f"    v_pk_mul_f32 {U(i)}, {U(i)}, {ZZ(i)}")
        for i in range(4): a(f"    v_cvt_pk_bf16_f32 v{acc(0,st)+i}, v{acc(2,st)+2*i}, v{acc(2,st)+2*i+1}")
        a(f"    buffer_store_dwordx4 {V(acc(0,st))}, v6, {S(SWS)}, s50 offen offset:{(st&1)*1024} sc1")
        if st & 1 and st < 7: a("    s_add_u32 s50, s50, 4096")
        if st in (0, 1, 2, 3, 5, 7): st9({0: 2, 1: 3, 2: 4, 3: 5, 5: 6, 7: 7}[st])
else:
    a(f"    ds_read_b128 {V(32)}, v5")
    for i in range(4): a(f"    ds_read_b128 {V(16+4*i)}, v4 offset:{(i>>1)*256+(i&1)*64}")
    for st in range(1, 8): a(f"    ds_read_b128 {V(32+4*st)}, v5 offset:{st*256}")
    rdy_check("cf", 7)
    for st in range(8):
        c0, c1 = P2(32 + 4 * st), P2(34 + 4 * st)
        if st == 1: a("    s_waitcnt lgkmcnt(0)")
        ob = 88 + 4 * (st & 1)
        TG = lambda i: 64 + 2 * i
        TU = lambda i: 72 + 2 * i
        Z = lambda i: 80 + 2 * i
        for i in range(4): a(f"    v_pk_fma_f32 {P2(TG(i))}, {P2(16+2*i)}, {c0}, {P2(acc(0,st)+2*i)} op_sel_hi:[1,0,1]")
        for i in range(4): a(f"    v_pk_mul_f32 {P2(Z(i))}, {P2(TG(i))}, {P2(TG(i))}")
        for i in range(4): a(f"    v_pk_fma_f32 {P2(Z(i))}, {P2(Z(i))}, {c1}, {c0} op_sel:[0,0,1] op_sel_hi:[1,0,1]")
        for i in range(4): a(f"    v_pk_mul_f32 {P2(Z(i))}, {P2(Z(i))}, {P2(TG(i))}")
        for i in range(4): a(f"    v_exp_f32 v{Z(i)}, v{Z(i)}\n    v_exp_f32 v{Z(i)+1}, v{Z(i)+1}")
        for i in range(4): a(f"    v_pk_fma_f32 {P2(TU(i))}, {P2(24+2*i)}, {c0}, {P2(acc(2,st)+2*i)} op_sel_hi:[1,0,1]")
        for i in range(4): a(f"    v_pk_fma_f32 {P2(Z(i))}, {P2(Z(i))}, {c1}, {c1} op_sel:[0,1,1] op_sel_hi:[1,1,1]")
        for i in range(4): a(f"    v_rcp_f32 v{Z(i)}, v{Z(i)}\n    v_rcp_f32 v{Z(i)+1}, v{Z(i)+1}")
        for i in range(4): a(f"    v_pk_mul_f32 {P2(TU(i))}, {P2(TU(i))}, {P2(TG(i))}")
        for i in range(4): a(f"    v_pk_mul_f32 {P2(TU(i))}, {P2(TU(i))}, {P2(Z(i))}")
        for i in range(4): a(f"    v_cvt_pk_bf16_f32 v{ob+i}, v{TU(i)}, v{TU(i)+1}")
        a(f"    buffer_store_dwordx4 {V(ob)}, v6, {S(SWS)}, s50 offen offset:{(st&1)*1024} sc1")
        if st & 1 and st < 7: a("    s_add_u32 s50, s50, 4096")
a("    s_branch L_cdone")

a.label("L_cdft")
a(f"""    s_lshl_b32 s50, s{sNH}, 12
    s_lshl_b32 s51, s{sSH}, 14
    s_sub_u32 s50, s50, s51
    s_add_u32 s50, s50, 32768
    v_add_u32 v12, s50, v8
    v_add_u32 v13, s50, v9
    s_lshl_b32 s51, s{sSH}, 9
    s_add_u32 s51, s51, {L_STAT}
    v_lshl_add_u32 v1, v3, 4, s51
    s_lshl_b32 s50, s{sNH}, 7
    s_add_u32 s50, s50, {L_CS}
    v_lshl_add_u32 v7, v2, 2, s50
    v_mul_u32_u24 v6, {4*81920}, v3
    v_lshl_add_u32 v6, v2, 4, v6
    s_lshl_b32 s50, s{sSH}, 3
    s_add_u32 s50, s50, s{sM}
    s_mul_i32 s50, s50, 5120
    s_sub_u32 s51, s{sNT}, 27
    s_lshl_b32 s51, s51, 1
    s_add_u32 s51, s51, s{sNH}
    s_lshl_b32 s51, s51, 9
    s_add_u32 s50, s50, s51
    s_add_u32 s50, s50, {WS_G}
    ; 32-point DFT fragments (row t1 = 16 th + (l & 15), s1 = 16 b + 4 (l >> 4) + 0..3): cos v80.., sin v88.., -cos v96..
    v_lshlrev_b32 v104, 2, v3""")
for th in range(2):
    a(f"    v_add_u32 v105, {16*th}, v2")
    for b in range(2):
        a(f"""    v_add_u32 v106, {16*b}, v104
    v_mul_u32_u24 v108, v106, v105
    v_add_u32 v109, v108, v105
    v_add_u32 v110, v109, v105
    v_add_u32 v111, v110, v105""")
        trig4(108, 80 + 4 * th + 2 * b, 88 + 4 * th + 2 * b, 31, 1 / 32, False)
for r in range(8): a(f"    v_xor_b32 v{96+r}, 0x80008000, v{80+r}")
main_loop(True, "cd")
for i in range(4): a(f"    ds_read_b32 v{8+i}, v7 offset:{(i>>1)*256+(i&1)*64}")
def rd_rows(st):
    a(f"    ds_read_b128 {V(16+4*st)}, v1 offset:{st*64}\n    ds_read_b128 {V(48+4*st)}, v1 offset:{1024+st*64}")
for st in range(4): rd_rows(st)
rdy_check("cd", 0)
for st in range(4, 8): rd_rows(st)
for et in range(2):
    for c in range(4):
        if et == 0 and c == 2: a("    s_waitcnt lgkmcnt(0)")
        for mat in range(2):
            i = 2 * mat + et
            cs = P2(8 + (i & ~1)); sel = "op_sel_hi:[1,0]" if (i & 1) == 0 else "op_sel:[0,1] op_sel_hi:[1,1]"
            q = [(st, p) for st in (2 * c, 2 * c + 1) for p in range(2)]
            for n, (st, p) in enumerate(q): a(f"    v_pk_mul_f32 {P2(104+2*n)}, {P2(48+4*st+2*p)}, {cs} {sel}")
            for n, (st, p) in enumerate(q): a(f"    v_pk_fma_f32 {P2(104+2*n)}, {P2(acc(i,st)+2*p)}, {P2(16+4*st+2*p)}, {P2(104+2*n)}")
            for n, (st, p) in enumerate(q): a(f"    v_cvt_pk_bf16_f32 v{acc(i,2*c)+n}, v{104+2*n}, v{105+2*n}")
def dreg(rnd, c, im): return acc(2 * im + (rnd & 1), 2 * c + 1)
def g_store(rnd, r):
    et, th = rnd >> 1, rnd & 1
    ob = 104 + 4 * (r & 1)
    return [f"    v_cvt_pk_bf16_f32 v{ob}, v{dreg(rnd,0,0)+r}, v{dreg(rnd,1,0)+r}",
            f"    v_cvt_pk_bf16_f32 v{ob+1}, v{dreg(rnd,2,0)+r}, v{dreg(rnd,3,0)+r}",
            f"    v_cvt_pk_bf16_f32 v{ob+2}, v{dreg(rnd,0,1)+r}, v{dreg(rnd,1,1)+r}",
            f"    v_cvt_pk_bf16_f32 v{ob+3}, v{dreg(rnd,2,1)+r}, v{dreg(rnd,3,1)+r}",
            f"    s_add_u32 s51, s50, {(16*th + r)*81920 + et*256}\n    buffer_store_dwordx4 {V(ob)}, v6, {S(SWS)}, s51 offen sc1"]
a("    s_nop 1")
for rnd in range(4):
    et, th = rnd >> 1, rnd & 1
    mf = []
    for c in range(4):
        mf.append(mfma(dreg(rnd, c, 0), 80 + 4 * th, acc(et, 2 * c), "0"))
        mf.append(mfma(dreg(rnd, c, 1), 88 + 4 * th, acc(et, 2 * c), "0"))
    for c in range(4):
        mf.append(mfma(dreg(rnd, c, 0), 88 + 4 * th, acc(2 + et, 2 * c)))
        mf.append(mfma(dreg(rnd, c, 1), 96 + 4 * th, acc(2 + et, 2 * c)))
    fill = sum((g_store(rnd - 1, r) for r in range(4)), []) if rnd else []
    for n, m_ in enumerate(mf):
        a(m_)
        if n >= 8 and fill:
            for o in fill[:3]: a(o)
            fill = fill[3:]
    for o in fill: a(o)
a("    s_nop 7")
for r in range(4):
    for o in g_store(3, r): a(o)

K2ON[0] = True
a.label("L_cdone")
stamp(2)
a(f"""    s_lshl_b32 s46, s{sM}, 5
    s_add_u32 s46, s46, s{sNT}
    s_lshl_b32 s46, s46, 7
    s_add_u32 s46, s46, {WS_FLAGS}
    v_mov_b32 v124, 0""")
def publish(tag):
    a(f"""    s_mov_b64 exec, 1
    ds_add_rtn_u32 v122, v120, v121
    s_waitcnt lgkmcnt(0)
    v_cmp_eq_u32 vcc, 3, v122
    s_cbranch_vccz L_{tag}
    buffer_store_dword v123, v124, {S(SWS)}, s46 offen sc1
L_{tag}:
    s_mov_b64 exec, -1""")
if opt["dfl"]: a(f"    s_cmp_eq_u32 s{sDFT}, 1\n    s_cbranch_scc1 L_late")
a("    s_waitcnt vmcnt(0)")
st9(8)
publish("nofl")
if opt["dfl"]: a("L_late:")
stamp(3)
a(f"    s_setprio {opt['cp']}")
fin_addr(8)
for r in range(ACC2, 256): a(f"    v_mov_b32 v{r}, 0")
a(f"""    v_lshlrev_b32 v1, 4, v0
    s_lshl_b32 s50, s{sW}, 3
    s_cmp_eq_u32 s{sW}, 3
    s_cselect_b32 s50, 23, s50
    s_mul_i32 s55, s50, 5120
    v_add_u32 v3, s55, v1
    s_lshl_b32 s61, s50, 17
    s_lshl_b32 s62, s{sT1}, 12
    s_add_u32 s61, s61, s62
    s_add_u32 s61, s61, {WS_H}
    s_cmp_lt_u32 s{sW}, 2
    s_cselect_b32 s62, 8, 7
    s_cmp_ge_u32 s39, s62
    s_cselect_b32 s63, 0, s39""")
if not opt["rot2"]: a("    s_mov_b32 s63, 0")
lds_spin("cs1", O_S1, 1, 8, 9)
stamp(4); st3(0)
LA = opt['la']
def c_hload(st):
    h_load(48 + 16 * st, 63, "s62", oob=(f"    s_cmp_lt_u32 s{sW}, 2\n    s_cselect_b32 s52, s52, 0x40000000" if st == 7 else None))
a("    s_mov_b32 s58, s63")
for st in range(opt["h1st"] or LA): c_hload(st)
if opt["dfl"]:
    a(f"    s_cmp_eq_u32 s{sDFT}, 1\n    s_cbranch_scc0 L_late2\n    s_waitcnt vmcnt({4*(opt['h1st'] or LA)})")
    publish("nofl2")
    a("    s_waitcnt vmcnt(0)\nL_late2:")
lds_spin("cwl", O_WL, 3, 8, 9)
def w_reads(st):
    b = 8 + 20 * (st & 1)
    a("    s_mul_i32 s52, s58, 5120\n    v_add_u32 v2, s52, v3")
    rot_next(58, "s62")
    for nb in range(5): a(f"    ds_read_b128 {V(b+4*nb)}, v2 offset:{nb*1024}")
w_reads(0)
for st in range(opt["h1st"] or LA, LA): c_hload(st)
if opt["il"]:
    for st in range(6):
        a(f"    s_waitcnt vmcnt({4 * min(LA - 1, 7 - st)}) lgkmcnt(0)")
        st3(1 + st)
        fill = capture(lambda: w_reads(st + 1))
        if st + LA < 8: fill += capture(lambda: c_hload(st + LA))
        k2_mfma(8 + 20 * (st & 1), 48 + 16 * st, fill)
else:
    for st in range(6):
        w_reads(st + 1)
        a(f"    s_waitcnt vmcnt({4 * min(LA - 1, 7 - st)}) lgkmcnt(5)")
        if PROF == 3: a("    s_waitcnt lgkmcnt(0)"); st3(1 + st)
        k2_mfma(8 + 20 * (st & 1), 48 + 16 * st)
        if st + LA < 8: c_hload(st + LA)
w_reads(7)
part_addr(56)
a(f"""    s_lshl_b32 s50, s{sW}, 2
    s_add_u32 s50, s50, {L_CNT + O_PF}
    v_mov_b32 v57, s50
    v_mov_b32 v58, 1
    s_waitcnt vmcnt(0) lgkmcnt(0)
    ds_write_b32 v57, v58
    v_add_u32 v2, s55, v56""")
tail(((8, 144), (28, 160)), 60)
st3(8)

a(f"""    s_mov_b32 s50, 3277
    s_lshl_b32 s51, s{sW}, 6
    s_add_u32 s51, s51, 1024
    v_add_u32 v64, s51, v0""")
item(64, 8, 9, 65)
a.label("L_final")
a(f"""    v_add_u32 v16, 81920, v4
    v_add_u32 v17, 81920, v5
    v_add_u32 v18, 81920, v8
    s_waitcnt lgkmcnt(0)""")
bar("R2")
stamp(6)
OST = ["", " sc1", " nt"][opt["ost"]]
def rd_item(va, vb, dst):
    for w in range(8):
        b = PBASE[w & 3] + (w >> 2) * 64 * PSTR
        r, o = (va, b) if b < 65536 else (vb, b - 81920)
        a(f"    ds_read_b64 {P2(dst+2*w)}, v{r} offset:{o}")
def sum_item(dst, t, vg):
    for w in range(0, 8, 2):
        for k in range(2):
            u = t + 4 * k if w == 0 else 20 + 4 * k
            for i in range(2): a(f"    v_lshlrev_b32 v{u+2*i}, 16, v{dst+2*(w+k)+i}\n    v_and_b32 v{u+1+2*i}, 0xffff0000, v{dst+2*(w+k)+i}")
        for k in range(4 if w else 0): a(f"    v_pk_add_f32 {P2(t+2*k)}, {P2(t+2*k)}, {P2(20+2*k)}")
    a(f"    v_pk_add_f32 {P2(t)}, {P2(t)}, {P2(t+4)}\n    v_pk_add_f32 {P2(t+2)}, {P2(t+2)}, {P2(t+6)}")
    a(f"    v_cvt_pk_bf16_f32 v{t+8}, v{t}, v{t+1}\n    v_cvt_pk_bf16_f32 v{t+9}, v{t+2}, v{t+3}")
    a(f"    buffer_store_dwordx2 {P2(t+8)}, v{vg}, {S(SOUT)}, s59 offen{OST}")
rd_item(4, 16, 64)
rd_item(5, 17, 80)
a(f"""    s_cmp_ge_u32 s{sW}, 4
    s_cbranch_scc1 L_fin2
    s_waitcnt lgkmcnt(8)""")
rd_item(8, 18, 96)
sum_item(64, 32, 6)
a("    s_waitcnt lgkmcnt(8)")
sum_item(80, 44, 7)
a("    s_waitcnt lgkmcnt(0)")
sum_item(96, 32, 9)
a("    s_branch L_fin3\nL_fin2:\n    s_waitcnt lgkmcnt(8)")
sum_item(64, 32, 6)
a("    s_waitcnt lgkmcnt(0)")
sum_item(80, 44, 7)
a("L_fin3:")
stamp(7)
a(f"""    s_cmp_lg_u32 s2, 0
    s_cbranch_scc1 L_noep
    s_cmp_lg_u32 s{sW}, 7
    s_cbranch_scc1 L_noep
    s_mov_b64 exec, -1
    v_lshlrev_b32 v8, 9, v0
    s_mov_b32 s50, {WS_EF}
    s_mov_b32 s60, 0
L_ep:
    buffer_load_dword v12, v8, {S(SWS)}, s50 offen sc1
    buffer_load_dword v13, v8, {S(SWS)}, s50 offen offset:128 sc1
    buffer_load_dword v14, v8, {S(SWS)}, s50 offen offset:256 sc1
    buffer_load_dword v15, v8, {S(SWS)}, s50 offen offset:384 sc1
    s_add_u32 s60, s60, 1
    s_waitcnt vmcnt(0)
    v_xor_b32 v12, s47, v12
    v_xor_b32 v13, s47, v13
    v_xor_b32 v14, s47, v14
    v_xor_b32 v15, s47, v15
    v_or3_b32 v12, v12, v13, v14
    v_or_b32 v12, v12, v15
    v_cmp_ne_u32 vcc, 0, v12
    s_cbranch_vccz L_epd
    s_sleep 4
    s_cmp_lt_u32 s60, 0x40000
    s_cbranch_scc1 L_ep
L_epd:
    v_mov_b32 v12, s47
    v_mov_b32 v13, 0
    s_mov_b32 s50, {WS_EPOCH}
    s_mov_b64 exec, 1
    buffer_store_dword v12, v13, {S(SWS)}, s50 offen sc1
L_noep:""")
if PROF == 88:
    mk_dbg()
    a(f"""    s_cmp_lg_u32 s2, 77
    s_cbranch_scc1 L_end
    s_memrealtime s[88:89]
    s_waitcnt lgkmcnt(0)
    s_sub_u32 s93, s88, s100
    s_lshr_b32 s50, s{sW}, 1
    s_lshl_b32 s50, s50, 4
    s_bitcmp1_b32 s{sW}, 0
    s_cbranch_scc1 L_end
    v_mov_b32 v7, 0
    s_mov_b64 exec, 1""")
    for k in range(4):
        a(f"    v_mov_b32 v6, s{90+k}\n    buffer_store_dword v6, v7, {S(SDBG)}, s50 offen offset:{4*k}")
elif PROF:
    mk_ws()
    a(f"""    s_memrealtime s[88:89]
    s_waitcnt lgkmcnt(0)
    s_mov_b32 s99, s88
    s_lshl_b32 s50, s2, 3
    s_add_u32 s50, s50, s{sW}
    s_lshl_b32 s50, s50, 6
    s_add_u32 s50, s50, {WS_PROF}
    v_mov_b32 v7, 0
    s_mov_b64 exec, 1""")
    for k in range(10):
        a(f"    v_mov_b32 v6, s{90+k}\n    buffer_store_dword v6, v7, {S(SWS)}, s50 offen offset:{4*k}")
a.label("L_end")
a("    s_endpgm")
a('.section .rodata,"a"')
a(kd(NAME, 256, 102, 256))
open(sys.argv[1], "w").write(a.text())
```
